```python
import torch

def _softmax(x, axis=-1):
    return torch.softmax(x, dim=axis)
def _gelu(x):
    return torch.nn.functional.gelu(x, approximate="tanh")
def _silu(x):
    return torch.nn.functional.silu(x)
def _sigmoid(x):
    return torch.sigmoid(x)
def _layernorm(x, axis=-1, eps=1e-5):
    m = x.mean(dim=axis, keepdim=True)
    v = x.var(dim=axis, keepdim=True, unbiased=False)
    return (x - m) / torch.sqrt(v + eps)
def _scatter_add(tgt, idx, src, axis=0):
    return tgt.clone().index_add_(axis, idx, src)
def _segment_sum(src, seg, n):
    out = torch.zeros((n,) + src.shape[1:], dtype=src.dtype)
    return out.index_add_(0, seg, src)
def _pad(x, pw):
    flat = tuple(v for pair in reversed(pw) for v in pair)
    return torch.nn.functional.pad(x, flat)

kernel_name = 'sequential_preLN__sliding_local_dilated__dense_activation_squared_relu__prompt'

def setup_inputs():

    _w = (lambda a: (lambda t: t.to(torch.bfloat16) if t.is_floating_point() else t)(torch.as_tensor(a)))
    def _A_setup():
        B, S, D = 1, 2048, 640
        return {
            "x": _w((lambda *s: torch.randn(*s, dtype=torch.bfloat16) * 0.05)(B, S, D)),
            "wqkv": _w((lambda *s: torch.randn(*s, dtype=torch.bfloat16) * 0.05)(D, 3 * D)),
            "wo": _w((lambda *s: torch.randn(*s, dtype=torch.bfloat16) * 0.05)(D, D)),
        }
    _A_in = _A_setup()

    def _B_setup():
        B, S, D, F = 1, 2048, 640, 1536
        return {
            "x": _w((lambda *s: torch.randn(*s, dtype=torch.bfloat16) * 0.05)(B, S, D)),
            "w1": _w((lambda *s: torch.randn(*s, dtype=torch.bfloat16) * 0.05)(D, F)),
            "b1": _w((lambda *s: torch.randn(*s, dtype=torch.bfloat16) * 0.4)(F)),
            "w2": _w((lambda *s: torch.randn(*s, dtype=torch.bfloat16) * 0.05)(F, D)),
            "b2": _w((lambda *s: torch.randn(*s, dtype=torch.bfloat16) * 1.6)(D)),
        }
    _B_in = _B_setup()

    return {
        "A_x": _A_in["x"],
        "A_wqkv": _A_in["wqkv"],
        "A_wo": _A_in["wo"],
        "B_x": _B_in["x"],
        "B_w1": _B_in["w1"],
        "B_b1": _B_in["b1"],
        "B_w2": _B_in["w2"],
        "B_b2": _B_in["b2"],
    }

def reference(A_x, A_wqkv, A_wo, B_x, B_w1, B_b1, B_w2, B_b2):
    def _A_ref(x, wqkv, wo):
        B, S, D = x.shape
        H = 32; Dh = D // H
        W, dil = 8, 2
        qkv = (lambda x, *d: x.permute(*d))((x @ wqkv).reshape(B, S, 3, H, Dh), 2, 0, 3, 1, 4)
        q, k, v = qkv[0], qkv[1], qkv[2]
        scale = Dh ** -0.5
        pos = torch.arange(S)
        off = torch.arange(W) * dil
        idx = pos[:, None] - off[None, :]
        mask = idx >= 0
        idx_c = torch.where(mask, idx, 0).reshape(-1)
        kg = k[:, :, idx_c, :].reshape(B, H, S, W, Dh)
        vg = v[:, :, idx_c, :].reshape(B, H, S, W, Dh)
        logits = torch.einsum("bhsd,bhswd->bhsw", q, kg) * scale
        logits = torch.where(mask[None, None, :, :], logits, -1e9)
        attn = _softmax(logits, axis=-1)
        o = torch.einsum("bhsw,bhswd->bhsd", attn, vg)
        return (lambda x, *d: x.permute(*d))(o, 0, 2, 1, 3).reshape(B, S, D) @ wo

    def _B_ref(x, w1, b1, w2, b2):
        h = torch.einsum("bsd,df->bsf", x, w1) + b1
        zero = torch.zeros_like(h)
        r = torch.where(h > zero, h, zero)
        h = r * r
        out = torch.einsum("bsf,fd->bsd", h, w2) + b2
        return out

    x = A_x
    h = x + _A_ref(_layernorm(x, axis=-1), A_wqkv, A_wo)
    h2 = h + _B_ref(_layernorm(h, axis=-1), B_w1, B_b1, B_w2, B_b2)
    return h2
```

```python
import re

def regs_of(tok):
    tok = tok.strip()
    neg = tok.lstrip('-|').rstrip('|')
    m = re.fullmatch(r'([vas])(\d+)', neg)
    if m: return [(m.group(1), int(m.group(2)))]
    m = re.fullmatch(r'([vas])\[(\d+):(\d+)\]', neg)
    if m: return [(m.group(1), i) for i in range(int(m.group(2)), int(m.group(3)) + 1)]
    if neg == 'vcc': return [('s', 106), ('s', 107)]
    if neg == 'vcc_lo': return [('s', 106)]
    if neg == 'vcc_hi': return [('s', 107)]
    if neg == 'exec': return [('s', 126), ('s', 127)]
    if neg == 'exec_lo': return [('s', 126)]
    if neg == 'exec_hi': return [('s', 127)]
    if neg == 'm0': return [('s', 124)]
    return []

TRANS = ('v_exp_', 'v_log_', 'v_rcp_', 'v_rsq_', 'v_sqrt_', 'v_sin_', 'v_cos_')

class Ins:
    def __init__(self, text):
        self.text = text
        t = text.split(';')[0].strip()
        self.label = None
        self.op = ''
        self.rd = []; self.wr = []
        self.kind = 'none'
        self.srcc = []; self.srcab = []
        self.data = []
        if not t or t.startswith('.'):
            return
        if t.endswith(':'):
            self.label = t[:-1]; return
        parts = t.split(None, 1)
        op = parts[0]; self.op = op
        rest = parts[1] if len(parts) > 1 else ''
        ops = []; cur = ''; d = 0
        for ch in rest:
            if ch == '[' or ch == '(': d += 1
            if ch == ']' or ch == ')': d -= 1
            if ch == ',' and d == 0: ops.append(cur.strip()); cur = ''
            else: cur += ch
        if cur.strip(): ops.append(cur.strip())
        mods = ''
        if ops:
            sp = ops[-1].split(None, 1)
            ops[-1] = sp[0]
            mods = sp[1] if len(sp) > 1 else ''
        self.ops = ops; self.mods = mods
        R = [regs_of(o) for o in ops]
        flat = lambda L: [x for l in L for x in l]
        if op.startswith('v_mfma'):
            self.kind = 'mfma'; self.wr = R[0]; self.srcab = R[1] + R[2]; self.srcc = R[3]; self.rd = self.srcab + self.srcc
            self.passes = 8 if '32x32' in op else 4
        elif op.startswith('v_permlane') and 'swap' in op:
            self.kind = 'valu'; self.wr = R[0] + R[1]; self.rd = R[0] + R[1]
        elif op.startswith('v_'):
            self.kind = 'valu'
            self.wr = R[0]; self.rd = flat(R[1:])
            if op.startswith('v_cmpx'): self.wr = self.wr + regs_of('exec')
            if 'dpp' in op or 'fmac' in op or 'dot2c' in op or op.startswith('v_writelane') or 'row_' in mods or 'quad_perm' in mods:
                self.rd = self.rd + R[0]
            if op.startswith('v_cndmask') and len(ops) == 3: self.rd = self.rd + regs_of('vcc')
            if '_co_' in op: self.wr = R[0] + R[1]; self.rd = flat(R[2:])
            self.dpp = ('dpp' in op) or ('row_' in mods) or ('quad_perm' in mods)
        elif op.startswith('ds_'):
            self.kind = 'ds'
            if op.startswith('ds_write'): self.rd = flat(R); self.data = flat(R[1:])
            else: self.wr = R[0]; self.rd = flat(R[1:])
        elif op.startswith('buffer_') or op.startswith('global_'):
            self.kind = 'vmem'
            islds = (' lds' in (' ' + mods)) or ('_lds_' in op)
            self.lds = islds
            if 'load' in op and not islds: self.wr = R[0]; self.rd = flat(R[1:])
            elif 'load' in op: self.rd = flat(R) + regs_of('m0')
            elif op.startswith('buffer_'):
                self.rd = flat(R); self.data = R[0]
                if 'atomic' in op and 'sc0' in mods: self.wr = R[0]
            else:
                self.rd = flat(R); self.data = R[1]
        elif op.startswith('s_load') or op.startswith('s_buffer_load') or op.startswith('s_mem'):
            self.kind = 'smem'; self.wr = R[0]; self.rd = flat(R[1:])
        elif op.startswith('s_'):
            self.kind = 'salu'
            if op.startswith(('s_cmp', 's_waitcnt', 's_barrier', 's_branch', 's_cbranch', 's_nop', 's_endpgm', 's_sleep', 's_setprio', 's_bitcmp')):
                self.rd = flat(R)
            else:
                self.wr = R[0]; self.rd = flat(R[1:])
                if 'saveexec' in op: self.wr = self.wr + regs_of('exec')
        else:
            raise ValueError('unknown op ' + op)
    def states(self):
        if self.op == 's_nop': return int(self.ops[0], 0) + 1
        return 1 if self.op else 0

def need(p, c):
    n = 0
    pw = set(p.wr);
    if p.kind == 'valu':
        vw = {r for r in pw if r[0] != 's'}; sw = {r for r in pw if r[0] == 's'}
        if c.kind == 'mfma' and vw & set(c.rd): n = max(n, 3 if p.op.startswith('v_dot') else 2)
        if c.kind == 'valu':
            if c.op.startswith('v_permlane') and vw & set(c.rd): n = max(n, 2)
            if getattr(c, 'dpp', False) and vw & set(c.rd): n = max(n, 2)
            if c.op.startswith(('v_readlane', 'v_readfirstlane')) and vw & set(c.rd): n = max(n, 1)
            if p.op.startswith(TRANS) and vw & set(c.rd): n = max(n, 1)
            if sw & set(c.rd): n = max(n, 4 if c.op.startswith(('v_readlane', 'v_writelane', 'v_div_fmas')) else 2)
            if ('op_sel' in p.mods or 'sdwa' in p.op or 'dst_sel' in p.mods) and not p.op.startswith('v_pk_') and vw & (set(c.rd) | set(c.wr)): n = max(n, 1)
            if ('s', 126) in sw:
                if getattr(c, 'dpp', False): n = max(n, 5)
                if c.op.startswith(('v_readlane', 'v_readfirstlane', 'v_writelane', 'v_permlane')): n = max(n, 4)
        if p.op.startswith('v_dot') and c.kind in ('valu', 'vmem', 'ds') and vw & (set(c.rd) | set(c.wr)):
            same_c = (c.op == p.op and c.kind == 'valu' and not (vw & set(x for o in c.ops[1:3] for x in regs_of(o))))
            if not same_c: n = max(n, 3)
        if c.kind == 'mfma' and ('s', 126) in sw: n = max(n, 4)
        if c.kind == 'vmem' and sw & set(c.rd): n = max(n, 5)
        if c.op.startswith('s_cbranch_vcc') and ('s', 106) in sw: n = max(n, 0)
    elif p.kind == 'mfma':
        big = 8 if p.passes == 4 else 12
        if c.kind == 'mfma':
            if pw & set(c.srcab): n = max(n, big)
            if pw & set(c.srcc) and not (c.srcc == p.wr and c.passes == p.passes): n = max(n, 6 if p.passes == 4 else 10)
            if pw & set(c.wr) and not (pw & set(c.srcc)): n = max(n, 0)
        elif c.kind in ('valu', 'vmem', 'ds'):
            if pw & (set(c.rd) | set(c.wr)): n = max(n, big)
        if c.kind == 'valu' and set(p.srcc) & set(c.wr): n = max(n, 3 if p.passes == 4 else 7)
    elif p.kind == 'salu':
        if ('s', 124) in pw and c.kind == 'vmem' and getattr(c, 'lds', False): n = max(n, 1)
        if ('s', 124) in pw and c.kind == 'ds' and 'addtid' in c.op: n = max(n, 1)
    if p.kind == 'vmem' and len(p.data) >= 3 and set(p.data) & set(c.wr): n = max(n, 2 if c.kind in ('valu', 'mfma') else 1)
    if p.kind != 'valu' and getattr(c, 'dpp', False) and c.kind == 'valu' and {r for r in pw if r[0] != 's'} & set(c.rd) and p.kind in ('mfma',): n = max(n, 2)
    return n

class Prog:
    def __init__(self):
        self.L = []
        self.vm = []
        self.lg = []
        self.track = True
        self.uid = 0
    def __call__(self, s, tag=None):
        for line in s.split('\n'):
            line = line.strip()
            if not line: continue
            self.L.append(line)
            op = line.split()[0]
            if self.track:
                if op.startswith(('buffer_', 'global_')): self.vm.append(tag)
                elif op.startswith('ds_'): self.lg.append(tag)
                elif op.startswith(('s_load', 's_buffer_load', 's_mem')): self.lg.append('SMEM')
    def lab(self, base='L'):
        self.uid += 1
        return f'{base}_{self.uid}'
    def _n(self, q, tags):
        if not isinstance(tags, (list, tuple, set)): tags = [tags]
        last = -1
        for i, t in enumerate(q):
            if t in tags: last = i
        if last < 0: return None
        return len(q) - 1 - last
    def wait(self, vm=None, lg=None):
        parts = []
        if vm is not None:
            n = 0 if vm == 0 else self._n(self.vm, vm)
            if n is not None:
                n = min(n, 63)
                parts.append(f'vmcnt({n})'); self.vm = self.vm[len(self.vm) - n:] if n else []
        if lg is not None:
            n = 0 if lg == 0 else self._n(self.lg, lg)
            if n is not None:
                if 'SMEM' in self.lg: n = 0
                n = min(n, 15)
                parts.append(f'lgkmcnt({n})'); self.lg = self.lg[len(self.lg) - n:] if n else []
        if parts: self.L.append('s_waitcnt ' + ' '.join(parts))
    def finish(self):
        ins = [Ins(t) for t in self.L]
        out = []
        nn = 0
        for c in ins:
            if c.op:
                req = 0; el = 0
                for p in reversed(out):
                    if el >= 20: break
                    if p.op:
                        r = need(p, c) - el
                        req = max(req, r)
                        el += p.states()
                        if p.op in ('s_branch', 's_endpgm'): break
                if req > 0:
                    out.append(Ins(f's_nop {req-1}')); nn += 1
            out.append(c)
        labels = {x.label: i for i, x in enumerate(out) if x.label}
        for i, b in enumerate(out):
            if b.op.startswith(('s_branch', 's_cbranch')):
                tgt = labels[b.ops[0]]
                pre = []; el = 0
                for p in reversed(out[:i + 1]):
                    if el >= 20: break
                    if p.op: pre.append((p, el)); el += p.states()
                d = 0
                for c in out[tgt:]:
                    if d >= 20: break
                    if c.op:
                        for p, e in pre:
                            if need(p, c) > e + d - 0:
                                raise Exception(f'branch-edge hazard: {p.text} -> {c.text} via {b.text}')
                        d += c.states()
                        if c.op in ('s_branch', 's_endpgm'): break
        self.check_waits(out)
        self.nnops = nn
        return '\n'.join(('' if x.label else '  ') + x.text for x in out)
    def check_waits(self, out):
        vm = []; lg = []
        for c in out:
            if not c.op: continue
            if 'nocheck' in c.text: continue
            if c.op == 's_waitcnt':
                m = re.search(r'vmcnt\((\d+)\)', c.text)
                if m:
                    n = int(m.group(1)); vm = vm[len(vm) - n:] if n and len(vm) > n else (vm if n else [])
                m = re.search(r'lgkmcnt\((\d+)\)', c.text)
                if m:
                    n = int(m.group(1))
                    if n and any(k == 'smem' for k, _ in lg): pass
                    else: lg = lg[len(lg) - n:] if n and len(lg) > n else (lg if n else [])
                continue
            touched = set(c.rd) | set(c.wr)
            for q in (vm, lg):
                for k, w in q:
                    if w & touched and not (c.kind == k and c.kind in ('vmem', 'ds') and not (w & set(c.rd))):
                        raise Exception(f'unwaited reg {sorted(w & touched)} at: {c.text}')
            if c.kind == 'vmem': vm.append(('vmem', set(c.wr)))
            elif c.kind == 'ds': lg.append(('ds', set(c.wr)))
            elif c.kind == 'smem': lg.append(('smem', set(c.wr)))
```

```python
import sys, math
from asmlib import Prog
NAME = "sequential_preLN__sliding_local_dilated__dense_activation_squared_relu__prompt"

FL = 0
WO = 0x10000
W1 = WO + 800 * 1024
W2 = W1 + 1920 * 1024
OB = W2 + 1920 * 1024
HB = OB + 128 * 20480
H1B = HB + 128 * 21504
WS_END = H1B + 128 * 49152

SLOT = 15424; HALF = 7712; NSLOT = 6
XB = NSLOT * SLOT
XS = 20480
PS = XB + 2 * XS
LDS_TOTAL = 163840

SX, SWQ, SWS, SP0, SOUT, SDBG, SB1, SB2, SPD = 4, 8, 12, 16, 20, 24, 28, 32, 36
def srd(b): return f's[{b}:{b+3}]'
sW, sM, sRB = 's40', 's41', 's42'
sXT = ['s43', 's44', 's45', 's46', 's47']
sWM0, sXM0 = 's48', 's49'
sT0, sT1, sT2, sT3, sT4, sT5 = 's50', 's51', 's52', 's53', 's54', 's55'
sEXW = 's[56:57]'; sEXT0 = 's[58:59]'; sEXP = 's[60:61]'
sPR = ['s62', 's63']
sPPITCH, sPD0, sPD1, sPTYPE = 's64', 's65', 's66', 's67'
sFAST, sFLOFF, sCNT, sXCC = 's68', 's69', 's70', 's71'
sOFF, sOFF2 = 's72', 's73'
sWOS, sW1S, sW2S = 's74', 's75', 's76'
sM1, sM2, sM3 = 's[78:79]', 's[80:81]', 's[82:83]'
sOBASE, sHBASE, sH1BASE = 's84', 's85', 's86'
sW1K = 's87'
PT = 88

def v(i, n=1): return f'v{i}' if n == 1 else f'v[{i}:{i+n-1}]'
def a(i, n=1): return f'a{i}' if n == 1 else f'a[{i}:{i+n-1}]'
MF = 'v_mfma_f32_16x16x32_bf16'
SPIN = 200000

def pk_bc(reg):
    base = reg & ~1; s = reg & 1
    return v(base, 2), s

def gen(stop=99, cfg=None):
    cfg = cfg or {}
    P = Prog(); A = P
    vL, vL16 = 0, 1
    vWO = [2, 3, 4, 5]; vXO = 6; vAR = [7, 8]; vAX = [9, 10]; vB = [11, 12]
    vT = [13, 14, 15, 16, 17, 18, 19]
    FA = [20, 36]; FB = [52, 72]
    ACC = 92; GR = 172
    acc = lambda F, T: ACC + (T * 4 + F) * 4
    A(f's_load_dwordx2 s[{SX}:{SX+1}], s[0:1], 0')
    A(f's_load_dwordx2 s[{SWQ}:{SWQ+1}], s[0:1], 8')
    A(f's_load_dwordx2 s[{SWS}:{SWS+1}], s[0:1], 80')
    A(f's_load_dwordx2 s[{PT}:{PT+1}], s[0:1], 16')
    A(f's_load_dwordx2 s[{PT+2}:{PT+3}], s[0:1], 32')
    A(f's_load_dwordx2 s[{PT+4}:{PT+5}], s[0:1], 48')
    A(f's_load_dwordx2 s[{SOUT}:{SOUT+1}], s[0:1], 64')
    A(f's_load_dwordx2 s[{SDBG}:{SDBG+1}], s[0:1], 72')
    A(f's_load_dwordx2 s[{SB1}:{SB1+1}], s[0:1], 40')
    A(f's_load_dwordx2 s[{SB2}:{SB2+1}], s[0:1], 56')
    A('s_cmp_ge_u32 s2, 256')
    A('s_cbranch_scc1 L_end')
    A('v_lshrrev_b32 v13, 6, v0')
    A('v_and_b32 v0, 63, v0')
    A(f'v_readfirstlane_b32 {sW}, v13')
    A('v_lshlrev_b32 v1, 4, v0')
    for b, n in ((SX, 2621440), (SWQ, 2457600), (SWS, WS_END), (SOUT, 2621440), (SDBG, 256), (SB1, 3072), (SB2, 1280)):
        A(f's_mov_b32 s{b+2}, {n}'); A(f's_mov_b32 s{b+3}, 0x20000')
    A(f's_mov_b32 s{SP0+3}, 0x20000'); A(f's_mov_b32 s{SPD+3}, 0x20000')
    A(f's_and_b32 {sRB}, s2, 7'); A(f's_lshl_b32 {sRB}, {sRB}, 2'); A(f's_lshr_b32 {sT0}, s2, 6'); A(f's_add_u32 {sRB}, {sRB}, {sT0}')
    A(f's_bfe_u32 {sM}, s2, 0x30003')
    A(f's_mul_i32 {sXT[1]}, {sRB}, {64*1280}')
    A(f's_sub_u32 {sXT[0]}, {sXT[1]}, {16*1280}'); A(f's_cmp_eq_u32 {sRB}, 0'); A(f's_cselect_b32 {sXT[0]}, 0, {sXT[0]}')
    for T in range(2, 5): A(f's_add_u32 {sXT[T]}, {sXT[1]}, {(T-1)*16*1280}')
    A(f's_and_b32 {sT0}, {sW}, 1'); A(f's_lshr_b32 {sT1}, {sW}, 1')
    A(f's_mul_i32 {sT2}, {sT0}, {8*1280}'); A(f's_lshl_b32 {sT3}, {sT1}, 7'); A(f's_add_u32 {sT2}, {sT2}, {sT3}')
    A('v_lshrrev_b32 v13, 3, v0'); A(f'v_mul_u32_u24 v13, 1280, v13')
    A('v_lshrrev_b32 v14, 4, v0')
    A(f's_lshl_b32 {sT3}, {sT0}, 2')
    A(f'v_add_u32 v15, {sT3}, v14'); A('v_and_b32 v16, 7, v0'); A('v_xor_b32 v15, v15, v16')
    A(f'v_lshl_add_u32 v13, v15, 4, v13'); A(f'v_add_u32 {v(vXO)}, {sT2}, v13')
    A(f's_mul_i32 {sXM0}, {sT1}, 10240'); A(f's_lshl_b32 {sT3}, {sT0}, 10'); A(f's_add_u32 {sXM0}, {sXM0}, {sT3}')
    A(f's_mov_b64 {sEXT0}, -1'); A(f's_cmp_eq_u32 {sT0}, 0'); A(f's_cselect_b32 s58, 0xffffff00, -1')
    A('v_cmp_lt_u32 vcc, 29, v0'); A('v_cndmask_b32 v13, 0, 1, vcc')
    A('v_mul_u32_u24 v15, 30, v13'); A('v_sub_u32 v15, v0, v15')
    A('v_mul_u32_u24 v16, 26, v15'); A('v_lshrrev_b32 v16, 8, v16')
    A('v_mul_u32_u24 v13, 3840, v13')
    A('v_mul_u32_u24 v16, 1120, v16')
    A('v_lshl_add_u32 v13, v15, 4, v13'); A('v_add_u32 v13, v13, v16')
    A(f's_lshl_b32 {sT2}, {sT0}, 4'); A(f's_lshl_b32 {sT3}, {sT1}, 2'); A(f's_add_u32 {sT2}, {sT2}, {sT3}')
    A(f's_mul_i32 {sT2}, {sT2}, 3840'); A(f's_mul_i32 {sT3}, {sM}, 160'); A(f's_add_u32 {sT2}, {sT2}, {sT3}')
    A(f'v_add_u32 {v(vWO[0])}, {sT2}, v13')
    for q in range(1, 4): A(f'v_add_u32 {v(vWO[q])}, {(8*(q>>1)+2*(q&1))*3840}, {v(vWO[0])}')
    A(f's_mul_i32 {sWM0}, {sT1}, {HALF}'); A(f's_mul_i32 {sT3}, {sT0}, {8*480}'); A(f's_add_u32 {sWM0}, {sWM0}, {sT3}')
    A(f's_mov_b32 s56, -1'); A(f's_mov_b32 s57, 0x0fffffff')
    P.wait(lg=0)

    def xdma(S):
        ss = S % 3
        for T in range(5):
            A(f's_add_u32 m0, {sXM0}, {XB + ss*XS + T*2048 - S*256}')
            if T == 0: A(f's_mov_b64 exec, {sEXT0}')
            A(f'buffer_load_dwordx4 {v(vXO)}, {srd(SX)}, {sXT[T]} offen offset:{S*256} lds', tag=f'x{S}')
            if T == 0: A('s_mov_b64 exec, -1')
    def wdma_list(ks):
        L = [[f's_mov_b32 {sOFF}, {ks*32*3840}', f's_mov_b64 exec, {sEXW}']]
        for q in range(4):
            L.append([f's_add_u32 m0, {sWM0}, {(ks % NSLOT)*SLOT + 2*q*480}',
                      ('nop',),
                      (f'buffer_load_dwordx4 {v(vWO[q])}, {srd(SWQ)}, {sOFF} offen lds', f'w{ks}')])
        return L
    def wdma(ks):
        A(f's_mov_b32 {sOFF}, {ks*32*3840}'); A(f's_mov_b64 exec, {sEXW}')
        for q in range(4):
            A(f's_add_u32 m0, {sWM0}, {(ks % NSLOT)*SLOT + 2*q*480}')
            A(f'buffer_load_dwordx4 {v(vWO[q])}, {srd(SWQ)}, {sOFF} offen lds', tag=f'w{ks}')
        A('s_mov_b64 exec, -1')
    xdma(0); wdma(0); wdma(1); wdma(2)

    A(f's_mov_b32 {sPTYPE}, 0')
    A(f's_mov_b32 {sT2}, s2')
    A(f's_mov_b64 s[{SP0}:{SP0+1}], s[{PT}:{PT+1}]'); A(f's_mov_b32 s{SP0+2}, 819200')
    A(f's_mov_b64 s[{SPD}:{SPD+1}], s[{SWS}:{SWS+1}]'); A(f's_mov_b32 s{SPD+2}, {WS_END}')
    A(f's_mov_b32 {sPPITCH}, 1280'); A(f's_mov_b32 s60, -1'); A(f's_mov_b32 s61, 0xff')
    A(f's_mov_b32 {sT4}, 20'); A(f's_mov_b32 {sT5}, {WO}')
    A('s_cmp_lt_u32 s2, 40'); A('s_cbranch_scc1 L_p0t')
    A(f's_mov_b32 {sPTYPE}, 1'); A(f's_sub_u32 {sT2}, s2, 40')
    A(f's_mov_b64 s[{SP0}:{SP0+1}], s[{PT+4}:{PT+5}]'); A(f's_mov_b32 s{SP0+2}, 1966080')
    A(f's_mov_b32 {sT4}, 48'); A(f's_mov_b32 {sT5}, {W2}')
    A('s_cmp_lt_u32 s2, 136'); A('s_cbranch_scc1 L_p0t')
    A(f's_mov_b32 {sPTYPE}, 2'); A(f's_sub_u32 {sT2}, s2, 136')
    A(f's_mov_b64 s[{SP0}:{SP0+1}], s[{PT+2}:{PT+3}]')
    A(f's_mov_b32 {sPPITCH}, 3072'); A(f's_mov_b32 s61, 0xffff')
    A('s_cmp_lt_u32 s2, 216'); A('s_cbranch_scc1 L_p0t')
    A(f's_mov_b32 s{SP0+2}, 0'); A(f's_mov_b32 s{SPD+2}, 0')
    A('L_p0t:')
    kap, part = 's94', 's95'
    A(f's_lshr_b32 {kap}, {sT2}, 1'); A(f's_and_b32 {part}, {sT2}, 1')
    A(f's_lshr_b32 {sT3}, {sT2}, 2'); A(f's_and_b32 s96, {sT2}, 3')
    A(f's_cmp_eq_u32 {sPTYPE}, 2'); A(f's_cselect_b32 {kap}, {sT3}, {kap}'); A(f's_cselect_b32 {part}, s96, {part}')
    A(f's_cselect_b32 s96, 6, 5'); A(f's_mul_i32 s96, s96, {part}'); A('s_lshl_b32 s96, s96, 7')
    for e in range(2):
        A(f's_lshl_b32 s97, {kap}, 2'); A(f's_lshl_b32 s98, {sT0}, 1'); A(f's_add_u32 s97, s97, s98')
        if e: A('s_add_u32 s97, s97, 1')
        A(f's_lshl_b32 s98, s97, 3'); A(f's_lshl_b32 s99, {sT1}, 2'); A(f's_add_u32 {sPR[e]}, s98, s99')
        A('s_mul_i32 s98, s97, 205'); A('s_lshr_b32 s98, s98, 11')
        A('s_mul_i32 s99, s98, 10'); A('s_sub_u32 s97, s97, s99')
        A('s_mul_i32 s98, s98, 80')
        A('s_lshr_b32 s99, s97, 1'); A('s_mul_i32 s99, s99, 20'); A('s_and_b32 s100, s97, 1'); A('s_lshl_b32 s101, s100, 3')
        A('s_add_u32 s99, s99, s101'); A(f's_lshl_b32 s101, {sT1}, 2'); A('s_add_u32 s99, s99, s101')
        A('s_lshl_b32 s100, s100, 1'); A(f's_add_u32 s100, s100, {sT1}'); A('s_mul_i32 s100, s100, 20'); A('s_add_u32 s100, s100, 16')
        A('s_cmp_lt_u32 s97, 8'); A('s_cselect_b32 s99, s99, s100'); A('s_add_u32 s98, s98, s99')
        A(f's_cmp_eq_u32 {sPTYPE}, 0'); A(f's_cselect_b32 {sPR[e]}, s98, {sPR[e]}')
        A(f's_mul_i32 {sPR[e]}, {sPR[e]}, {sPPITCH}'); A(f's_add_u32 {sPR[e]}, {sPR[e]}, s96')
    A(f's_mul_i32 s97, {sW}, {8*768}')
    A(f's_mov_b64 exec, {sEXP}')
    for e in range(2):
        for r in range(4):
            A(f's_add_u32 m0, s97, {PS + (4*e + r)*768}')
            if r: A(f's_add_u32 {sPR[e]}, {sPR[e]}, {sPPITCH}')
            A(f'buffer_load_dwordx4 {v(vL16)}, {srd(SP0)}, {sPR[e]} offen lds', tag='p0')
    A('s_mov_b64 exec, -1')
    xdma(1); wdma(3); wdma(4); wdma(5)
    A(f's_lshl_b32 s97, {part}, 2'); A(f's_add_u32 s97, s97, {sW}')
    A(f's_mul_i32 s98, s97, {sT4}'); A(f's_add_u32 s98, s98, {kap}'); A('s_mul_i32 s98, s98, 5120'); A(f's_add_u32 {sPD0}, s98, {sT5}')
    A(f's_add_u32 {sPD1}, {sPD0}, 3072')
    A('s_mul_i32 s98, s97, 40'); A(f's_add_u32 s98, s98, {kap}'); A('s_mul_i32 s98, s98, 3072'); A(f's_add_u32 s98, s98, {W1}')
    A('s_add_u32 s99, s98, 61440')
    A(f's_cmp_eq_u32 {sPTYPE}, 2'); A(f's_cselect_b32 {sPD0}, s98, {sPD0}'); A(f's_cselect_b32 {sPD1}, s99, {sPD1}')
    A('s_cselect_b32 s98, 6, 5'); A(f's_mul_i32 s98, s98, {sW}'); A('s_lshl_b32 s98, s98, 5'); A(f's_add_u32 s98, s98, {PS}')
    A(f's_lshl_b32 {sFLOFF}, {sRB}, 7')
    A(f's_lshl_b32 {sT2}, {sM}, 4'); A(f's_lshl_b32 {sT3}, {sW}, 2'); A(f's_add_u32 {sT2}, {sT2}, {sT3}')
    vFS = 254; vFV = 255
    A(f'v_mov_b32 {v(vFS)}, {sT2}'); A(f'v_mov_b32 {v(vFV)}, 0')
    A('s_mov_b64 exec, 1')
    A(f'buffer_store_dword {v(vFV)}, {v(vFS)}, {srd(SWS)}, {sFLOFF} offen sc1', tag='p0s')
    A('s_mov_b64 exec, -1')
    A('v_lshrrev_b32 v13, 2, v0')
    A('v_and_b32 v15, 3, v0')
    vP, vS = 192, 193
    A(f'v_mul_u32_u24 v16, 768, v13'); A(f'v_add_u32 v16, s98, v16')
    A(f'v_lshl_add_u32 {v(vP)}, v15, 4, v16'); A(f'v_lshl_add_u32 {v(vS)}, v15, 3, v16')
    A(f's_mul_i32 {sT2}, {sW}, 40')
    A(f'v_mul_u32_u24 v16, 480, v13'); A(f'v_add_u32 v16, {sT2}, v16')
    A(f'v_lshl_add_u32 {v(vAR[0])}, v15, 3, v16')
    A(f'v_mul_u32_u24 v17, 160, v15'); A(f'v_add3_u32 v16, v16, v17, 32')
    A('v_cmp_eq_u32 vcc, 3, v15'); A('v_mov_b32 v17, 7680'); A(f'v_cndmask_b32 {v(vAX[0])}, v16, v17, vcc')
    A(f'v_add_u32 {v(vAR[1])}, {4*SLOT}, {v(vAR[0])}'); A(f'v_add_u32 {v(vAX[1])}, {4*SLOT}, {v(vAX[0])}')
    A('v_and_b32 v16, 15, v0')
    A('v_lshrrev_b32 v17, 1, v16'); A('v_xor_b32 v17, v17, v14'); A('v_lshlrev_b32 v17, 4, v17')
    A(f'v_lshl_add_u32 v17, v16, 7, v17'); A(f'v_add_u32 {v(vB[0])}, {XB}, v17')
    A('v_xor_b32 v17, 64, v17'); A(f'v_add_u32 {v(vB[1])}, {XB}, v17')
    A('v_min_u32 v17, 11, v0'); A(f'v_mul_u32_u24 v17, {HALF}, v17')
    A('v_mov_b32 v18, 0x3f80'); A('v_mov_b32 v19, 0')
    A('ds_write_b64 v17, v[18:19] offset:7680')
    ONES = 240
    for i in range(4): A(f'v_mov_b32 {v(ONES+i)}, 0x3f803f80')
    vOT = 194
    A('v_bfe_u32 v17, v0, 3, 2'); A('v_mul_u32_u24 v17, 10240, v17'); A('v_and_b32 v18, 7, v0')
    A(f'v_lshl_add_u32 v17, v18, 4, v17'); A(f'v_add_u32 {v(vOT)}, {XB}, v17')
    A(f'ds_write_b128 {v(vOT)}, {v(ONES,4)}')
    BP, BC, BP1 = 228, 232, 236
    A('v_lshlrev_b32 v17, 2, v14'); A('v_sub_u32 v17, v16, v17')
    A('v_mov_b32 v19, 0xf149f2ca')
    for r in range(4):
        for (dst, add) in ((BC, -r), (BP, 16 - r)):
            A(f'v_add_u32 v18, {add}, v17'); A('v_and_b32 v18, 0xfffffff1, v18')
            A('v_cmp_eq_u32 vcc, 0, v18'); A(f'v_cndmask_b32 {v(dst+r)}, v19, 0, vcc')
    A(f's_cmp_eq_u32 {sRB}, 0'); A('s_cselect_b64 vcc, -1, 0')
    for r in range(4): A(f'v_cndmask_b32 {v(BP1+r)}, {v(BP+r)}, v19, vcc')
    A(f's_mov_b32 s78, 0x22222222'); A(f's_mov_b32 s79, 0x22222222')
    A(f's_mov_b32 s80, 0x44444444'); A(f's_mov_b32 s81, 0x44444444')
    A(f's_mov_b32 s82, 0x88888888'); A(f's_mov_b32 s83, 0x88888888')
    A(f's_mul_i32 {sWOS}, {sM}, 102400'); A(f's_lshl_b32 {sT2}, {sW}, 10'); A(f's_add_u32 {sWOS}, {sWOS}, {sT2}'); A(f's_add_u32 {sWOS}, {sWOS}, {WO}')
    A(f's_lshl_b32 {sT2}, {sM}, 2'); A(f's_add_u32 {sT2}, {sT2}, {sW}')
    A(f's_mul_i32 {sW1S}, {sT2}, 61440'); A(f's_add_u32 {sW2S}, {sW1S}, {W2}'); A(f's_add_u32 {sW1S}, {sW1S}, {W1}')
    A(f's_mul_i32 {sOBASE}, {sRB}, {4*20480}'); A(f's_add_u32 {sOBASE}, {sOBASE}, {OB}')
    A(f's_mul_i32 {sHBASE}, {sRB}, {4*21504}'); A(f's_add_u32 {sHBASE}, {sHBASE}, {HB}')
    A(f's_mul_i32 {sH1BASE}, {sRB}, {4*49152}'); A(f's_add_u32 {sH1BASE}, {sH1BASE}, {H1B}')
    A(f's_getreg_b32 {sXCC}, hwreg(HW_REG_XCC_ID)'); A(f's_and_b32 {sXCC}, {sXCC}, 15'); A(f's_or_b32 {sXCC}, {sXCC}, 0x80')

    def frag_reads(ks):
        b = ks & 1; sl = ks % NSLOT; st = sl // 4; so = (sl % 4) * SLOT
        S = ks // 4; xo = (S % 3) * XS + ((ks >> 1) & 1) * 10240
        L = []
        L.append(f'ds_read_b128 {v(FB[b],4)}, {v(vB[ks&1])} offset:{xo}')
        for F in range(4):
            for jj in range(2):
                if F < 3: L.append(f'ds_read_b64_tr_b16 {v(FA[b]+4*F+2*jj,2)}, {v(vAR[st])} offset:{so + jj*HALF + F*160}')
                else: L.append(f'ds_read_b64_tr_b16 {v(FA[b]+4*F+2*jj,2)}, {v(vAX[st])} offset:{so + jj*HALF}')
        for T in range(1, 5): L.append(f'ds_read_b128 {v(FB[b]+4*T,4)}, {v(vB[ks&1])} offset:{xo + T*2048}')
        return L
    groups = [(PS + i*4096, 12) for i in range(7)]
    g2 = [(2*SLOT + i*4096, 14 + max(0, ((i+1)*4096 - 1)//SLOT)) for i in range(13)]
    g3 = [(XB + i*4096, 15) for i in range(5)]
    groups = groups + sorted(g2 + g3, key=lambda x: x[1])
    wo_loc = lambda f: groups[f // 4][0] + (f % 4) * 1024
    w1_issued = [0]
    def w1_load(n):
        L = []
        for _ in range(n):
            f = w1_issued[0]
            if f >= 60: break
            if f % 4 == 0: L.append((f's_add_u32 {sW1K}, {sW1S}, {f*1024}', None))
            L.append((f'buffer_load_dwordx4 {a(4*f,4)}, {v(vL16)}, {srd(SWS)}, {sW1K} offen offset:{(f%4)*1024} sc1', 'w1'))
            w1_issued[0] += 1
        return L

    P.wait(vm=['x0', 'w0'], lg=0); A('s_barrier')
    for s in frag_reads(0): A(s)
    gi = 0
    vDB = 195
    XR = 244
    for ks in range(20):
        tags = []
        if ks + 1 < 20: tags = [f'w{ks+1}', f'x{(ks+1)//4}']
        if ks == 2: tags.append('p0')
        if ks == 8: tags.append('p0s')
        if ks == 12: tags.append('dbg')
        P.wait(vm=tags, lg=0); A('s_barrier')
        if ks == 2:
            TB = 196
            def p0(lst, track):
                P.track = track
                nc = '' if track else ' ; nocheck'
                for j, (vr, off) in enumerate(lst):
                    for jj in range(2): A(f'ds_read_b64_tr_b16 {v(TB+4*j+2*jj,2)}, {v(vr)} offset:{off + jj*12288}' + nc)
                A('s_waitcnt lgkmcnt(0)')
                for j in range(len(lst)):
                    A(f'buffer_store_dwordx4 {v(TB+4*j,4)}, {v(vL16)}, {srd(SPD)}, {sPD0 if j < 3 else sPD1} offen offset:{(j%3)*1024} sc1' + nc, tag='p0s')
                P.track = True
            A(f's_cmp_eq_u32 {sPTYPE}, 2'); A('s_cbranch_scc1 L_p0b')
            p0([(vP, 0), (vP, 8), (vP, 64), (vP, 72), (vS, 128)], True); P.lg = []
            A('s_branch L_p0j'); A('L_p0b:')
            p0([(vP, 0), (vP, 8), (vS, 64), (vP, 96), (vP, 104), (vS, 160)], False)
            A('L_p0j:')
        if ks == 3:
            A(f'v_add_u32 {v(vOT)}, {2*XS}, {v(vOT)}')
            A('s_mov_b64 exec, 0xffff'); A(f'ds_write_b128 {v(vOT)}, {v(ONES,4)}'); A('s_mov_b64 exec, -1')
            xdma(2)
        if ks == 6: xdma(3)
        if ks == 10: xdma(4)
        if ks + NSLOT < 20: wdma(ks + NSLOT)
        if ks == 8:
            A(f's_cmp_lg_u32 {sW}, 0'); A('s_cbranch_scc1 L_arr')
            A(f's_and_b32 {sT2}, {sM}, 3'); A(f's_lshl_b32 {sT2}, {sT2}, 3'); A(f's_lshl_b32 {sT2}, {sXCC}, {sT2}')
            A(f's_lshl_b32 {sT3}, {sRB}, 3'); A(f's_and_b32 {sT4}, {sM}, 4'); A(f's_add_u32 {sT3}, {sT3}, {sT4}')
            A(f'v_mov_b32 v13, {sT2}'); A(f'v_mov_b32 v14, {sT3}')
            A('s_mov_b64 exec, 1')
            P.track = False
            A(f'buffer_atomic_or v13, v14, {srd(SDBG)}, 0 offen sc1 ; nocheck')
            P.track = True
            A('s_mov_b64 exec, -1')
            A('L_arr:')
        if ks == 10:
            A('v_lshlrev_b32 v13, 2, v0')
            A(f'buffer_load_dword {v(vDB)}, v13, {srd(SDBG)}, 0 offen sc1', tag='dbg')
        if ks == 12:
            A(f's_mov_b32 {sCNT}, 0')
            A('L_dbg:')
            A(f'v_and_b32 v14, 0x80808080, {v(vDB)}'); A('v_cmp_ne_u32 vcc, 0x80808080, v14')
            A('s_cbranch_vccz L_dbgok')
            A(f's_add_u32 {sCNT}, {sCNT}, 1'); A(f's_cmp_gt_u32 {sCNT}, {SPIN}'); A('s_cbranch_scc1 L_end')
            P.track = False
            A(f'buffer_load_dword {v(vDB)}, v13, {srd(SDBG)}, 0 offen sc1 ; nocheck')
            P.track = True
            A('s_waitcnt vmcnt(0) ; nocheck'); A('s_branch L_dbg')
            A('L_dbgok:')
            A(f's_lshl_b32 {sT2}, {sRB}, 1'); A(f's_add_u32 {sT3}, {sT2}, 1')
            A(f'v_readlane_b32 {sT4}, {v(vDB)}, {sT2}'); A(f'v_readlane_b32 {sT5}, {v(vDB)}, {sT3}')
            A(f's_mul_i32 {sT2}, {sXCC}, 0x01010101')
            A(f's_xor_b32 {sT4}, {sT4}, {sT2}'); A(f's_xor_b32 {sT5}, {sT5}, {sT2}'); A(f's_or_b32 {sFAST}, {sT4}, {sT5}')
            if cfg.get('slow'): A(f's_mov_b32 {sFAST}, 1')
        while gi < 25 and groups[gi][1] <= ks:
            A(f's_lshl_b32 {sT2}, {sW}, 10'); A(f's_add_u32 m0, {sT2}, {groups[gi][0]}')
            A(f's_add_u32 {sOFF2}, {sWOS}, {gi*4096}')
            A(f'buffer_load_dwordx4 {v(vL16)}, {srd(SWS)}, {sOFF2} offen sc1 lds', tag='wo')
            gi += 1
        if ks == 18:
            A('v_and_b32 v13, 15, v0'); A('v_mul_u32_u24 v13, 1280, v13'); A('v_lshrrev_b32 v14, 4, v0')
            A('v_lshl_add_u32 v15, v14, 4, v13'); A('v_lshl_add_u32 v16, v14, 3, v13')
            A(f's_mul_i32 {sT2}, {sW}, {16*1280}'); A(f's_add_u32 {sT2}, {sT2}, {sXT[1]}'); A(f's_mul_i32 {sT3}, {sM}, 160'); A(f's_add_u32 {sXT[0]}, {sT2}, {sT3}')
            A(f'buffer_load_dwordx4 {v(XR,4)}, v15, {srd(SX)}, {sXT[0]} offen', tag='xr')
            A(f'buffer_load_dwordx4 {v(XR+4,4)}, v15, {srd(SX)}, {sXT[0]} offen offset:64', tag='xr')
            A(f'buffer_load_dwordx2 {v(XR+8,2)}, v16, {srd(SX)}, {sXT[0]} offen offset:128', tag='xr')
        fill = [(s, None) for s in frag_reads(ks + 1)] if ks + 1 < 20 else []
        if ks >= 18: fill += w1_load(cfg.get('w1a', 6))
        b = ks & 1
        mf = []
        for T in range(5):
            for F in range(4):
                c = '0' if ks == 0 else v(acc(F, T), 4)
                mf.append(f'{MF} {v(acc(F,T),4)}, {v(FA[b]+4*F,4)}, {v(FB[b]+4*T,4)}, {c}')
            c = '0' if ks == 0 else v(GR + 4*T, 4)
            mf.append(f'{MF} {v(GR+4*T,4)}, {v(FB[b]+4*T,4)}, {v(FB[b]+4*T,4)}, {c}')
        for i, m in enumerate(mf):
            A(m)
            if fill: s, t = fill.pop(0); A(s, tag=t)
        for s, t in fill: A(s, tag=t)
    assert gi == 25

    CS = 20; NM = 36; RS = 42; RQ = 48; RX = 86
    KXV = 56; QF = 192; VT0 = 208; VT1 = 218
    for s, t in w1_load(cfg.get('w1b', 12)): A(s, tag=t)
    A('v_and_b32 v16, 15, v0'); A('v_lshrrev_b32 v14, 4, v0')
    A('v_lshrrev_b32 v13, 2, v16'); A('v_lshl_add_u32 v13, v13, 4, v16'); A('v_lshlrev_b32 v13, 2, v13')
    A('v_add_lshl_u32 v15, v16, 48, 2')
    sc = (20 ** -0.5) * math.log2(math.e)
    import struct
    f2u = lambda f: struct.unpack('<I', struct.pack('<f', f))[0]
    A(f'v_mov_b32 v17, 1.0'); A(f'v_mov_b32 v18, {f2u(sc):#x}')
    A('v_mov_b32_dpp v17, v18 quad_perm:[0,1,2,3] row_mask:0x1 bank_mask:0xf')
    A('v_mov_b32 v18, 0')
    A('v_mov_b32_dpp v17, v18 quad_perm:[0,1,2,3] row_mask:0x8 bank_mask:0xf')
    for T in range(5):
        g = GR + 4*T
        A(f'v_cndmask_b32 {v(g)}, {v(g)}, {v(g+1)}, {sM1}')
        A(f'v_cndmask_b32 {v(g+2)}, {v(g+2)}, {v(g+3)}, {sM3}')
    A('s_or_b64 vcc, s[80:81], s[82:83]')
    for T in range(5):
        g = GR + 4*T
        A(f'v_cndmask_b32 {v(g)}, {v(g)}, {v(g+2)}, vcc')
        A(f'ds_bpermute_b32 {v(NM+T)}, v15, {v(acc(3,T))}', tag='st')
    for T in range(5): A(f'ds_bpermute_b32 {v(RS+T)}, v13, {v(GR+4*T)}', tag='st')
    for F in range(4):
        for r in range(4): A(f'v_mov_b32_dpp {v(CS+4*F+r)}, {v(acc(F,0)+r)} row_newbcast:0 row_mask:0xf bank_mask:0xf')
    P.wait(lg='st')
    for T in range(5): A(f'v_mul_f32 {v(NM+T)}, {f2u(-1.0/640):#x}, {v(NM+T)}')
    for T in range(5): A(f'v_mul_f32 {v(RS+T)}, {f2u(1.0/640):#x}, {v(RS+T)}')
    for T in range(5): A(f'v_fma_f32 {v(RS+T)}, -{v(NM+T)}, {v(NM+T)}, {v(RS+T)}')
    for T in range(5): A(f'v_max_f32 {v(RS+T)}, 0, {v(RS+T)}')
    for T in range(5): A(f'v_add_f32 {v(RS+T)}, {f2u(1e-5):#x}, {v(RS+T)}')
    for T in range(5): A(f'v_rsq_f32 {v(RS+T)}, {v(RS+T)}')
    for T in range(5): A(f'v_mul_f32 {v(RQ+T)}, {f2u(sc):#x}, {v(RS+T)}')
    for T in range(5): A(f'v_mul_f32 {v(RX+T)}, v17, {v(RS+T)}')
    A(f's_mul_i32 {sT2}, {sW}, 5120'); A(f's_add_u32 {sT2}, {sT2}, {XB + XS}')
    A('v_lshlrev_b32 v13, 6, v16'); A('v_lshl_add_u32 v13, v14, 4, v13'); A(f'v_add_u32 v13, {sT2}, v13')
    A('v_lshrrev_b32 v15, 2, v0'); A('v_lshlrev_b32 v15, 6, v15'); A(f'v_add_u32 v15, {sT2}, v15')
    A('v_and_b32 v18, 3, v0'); A('v_lshl_add_u32 v18, v18, 4, v15')
    for T in range(5):
        for F in ((1, 3, 2) if T == 0 else (1, 3, 2, 0)):
            nm, s1 = pk_bc(NM + T)
            rs, s2 = pk_bc({0: RQ, 1: RS, 2: RS, 3: RX}[F] + T)
            ac = acc(F, T)
            for h in range(2):
                A(f'v_pk_fma_f32 {v(ac+2*h,2)}, {v(CS+4*F+2*h,2)}, {nm}, {v(ac+2*h,2)} op_sel:[0,{s1},0] op_sel_hi:[1,{s1},1]')
            for h in range(2):
                A(f'v_pk_mul_f32 {v(ac+2*h,2)}, {v(ac+2*h,2)}, {rs} op_sel:[0,{s2}] op_sel_hi:[1,{s2}]')
            dst = {1: KXV + 6*T, 3: KXV + 6*T + 2, 2: KXV + 6*T + 4, 0: QF + 4*(T-1)}[F]
            for h in range(2): A(f'v_cvt_pk_bf16_f32 {v(dst+h)}, {v(ac+2*h)}, {v(ac+2*h+1)}')
        A(f'ds_write_b128 v13, {v(KXV+6*T+2,4)} offset:{T*1024}', tag='vw')
        if T:
            for h in range(2): A(f'v_mov_b32 {v(QF+4*(T-1)+2+h)}, 0')
    for T in range(1, 5):
        for h in range(2): A(f'v_permlane16_swap_b32 {v(QF+4*(T-1)+2+h)}, {v(KXV+6*T+2+h)}')
    for T in range(5):
        A(f'ds_read_b64_tr_b16 {v(VT0+2*T,2)}, v18 offset:{T*1024+8}', tag='vt')
        A(f'ds_read_b64_tr_b16 {v(VT1+2*T,2)}, v15 offset:{T*1024+32}', tag='vt')
    SS = ACC
    MX = ACC + 32
    PF = ACC + 40
    OO = ACC + 56
    for i in range(4):
        A(f'{MF} {v(SS+8*i,4)}, {v(KXV+6*i,4)}, {v(QF+4*i,4)}, {v(BP1 if i == 0 else BP,4)}')
        A(f'{MF} {v(SS+8*i+4,4)}, {v(KXV+6*(i+1),4)}, {v(QF+4*i,4)}, {v(BC,4)}')
    for i in range(4):
        s = SS + 8*i; m = MX + 2*i
        A(f'v_max3_f32 {v(m)}, {v(s)}, {v(s+1)}, {v(s+2)}'); A(f'v_max3_f32 {v(m+1)}, {v(s+3)}, {v(s+4)}, {v(s+5)}')
        A(f'v_max3_f32 {v(m)}, {v(m)}, {v(s+6)}, {v(s+7)}'); A(f'v_max_f32 {v(m)}, {v(m)}, {v(m+1)}')
    for sw in ('v_permlane16_swap_b32', 'v_permlane32_swap_b32'):
        for i in range(4): A(f'v_mov_b32 {v(MX+2*i+1)}, {v(MX+2*i)}')
        for i in range(4): A(f'{sw} {v(MX+2*i)}, {v(MX+2*i+1)}')
        for i in range(4): A(f'v_max_f32 {v(MX+2*i)}, {v(MX+2*i)}, {v(MX+2*i+1)}')
    for i in range(4):
        s = SS + 8*i
        for h in range(4): A(f'v_pk_add_f32 {v(s+2*h,2)}, {v(s+2*h,2)}, {v(MX+2*i,2)} op_sel:[0,0] op_sel_hi:[1,0] neg_lo:[0,1] neg_hi:[0,1]')
        for h in range(8): A(f'v_exp_f32 {v(s+h)}, {v(s+h)}')
        for h in range(4): A(f'v_cvt_pk_bf16_f32 {v(PF+4*i+h)}, {v(s+2*h)}, {v(s+2*h+1)}')
    P.wait(lg='vt')
    O0 = 148; O1 = 164; SM = 20
    for i in range(4):
        A(f'{MF} {v(SM+4*i,4)}, {v(ONES,4)}, {v(PF+4*i,4)}, 0')
        A(f'{MF} {v(O0+4*i,4)}, {v(VT0+2*i,4)}, {v(PF+4*i,4)}, 0')
        A(f'{MF} {v(O1+4*i,4)}, {v(VT1+2*i,4)}, {v(PF+4*i,4)}, 0')
    A('v_and_b32 v13, 1, v14'); A('v_mul_u32_u24 v13, 20480, v13'); A('v_lshrrev_b32 v15, 1, v14'); A('v_lshl_add_u32 v13, v15, 8, v13')
    A('v_lshl_add_u32 v13, v16, 4, v13')
    A('v_mul_u32_u24 v15, 20480, v14'); A('v_lshl_add_u32 v15, v16, 4, v15')
    A(f's_mul_i32 {sT2}, {sM}, 2560'); A(f's_add_u32 {sT2}, {sT2}, {sOBASE}')
    A(f's_lshl_b32 {sT3}, {sW}, 9'); A(f's_add_u32 {sT3}, {sT3}, {sT2}'); A(f's_add_u32 {sT4}, {sT3}, 40960')
    A(f's_lshl_b32 {sT5}, {sT1}, 8'); A(f's_add_u32 {sT2}, {sT2}, {sT5}'); A(f's_lshl_b32 {sT5}, {sT0}, 3'); A(f's_add_u32 {sT2}, {sT2}, {sT5}')
    for i in range(4): A(f'v_rcp_f32 {v(SM+4*i)}, {v(SM+4*i)}')
    OP = 36; OL = 44
    for i in range(4):
        for h in range(2): A(f'v_pk_mul_f32 {v(O0+4*i+2*h,2)}, {v(O0+4*i+2*h,2)}, {v(SM+4*i,2)} op_sel:[0,0] op_sel_hi:[1,0]')
        for h in range(2): A(f'v_pk_mul_f32 {v(O1+4*i+2*h,2)}, {v(O1+4*i+2*h,2)}, {v(SM+4*i,2)} op_sel:[0,0] op_sel_hi:[1,0]')
        for h in range(2): A(f'v_cvt_pk_bf16_f32 {v(OP+2*i+h)}, {v(O0+4*i+2*h)}, {v(O0+4*i+2*h+1)}')
        for h in range(2): A(f'v_cvt_pk_bf16_f32 {v(OL+2*i+h)}, {v(O1+4*i+2*h)}, {v(O1+4*i+2*h+1)}')
    for pr in range(2):
        for h in range(2): A(f'v_permlane16_swap_b32 {v(OP+4*pr+h)}, {v(OP+4*pr+2+h)}')
    for i in range(1, 4):
        for h in range(2): A(f'v_mov_b32_dpp {v(OL+h)}, {v(OL+2*i+h)} quad_perm:[0,1,2,3] row_mask:{1<<i:#x} bank_mask:0xf')

    def publish(stores, val):
        l1, l2 = P.lab('L_sl'), P.lab('L_j')
        A(f'v_mov_b32 {v(vFV)}, {val}')
        A(f's_cmp_lg_u32 {sFAST}, 0'); A(f's_cbranch_scc1 {l1}')
        for s in stores: A(s, tag='pub')
        A(f's_branch {l2}'); A(f'{l1}:')
        P.track = False
        for s in stores: A(s + ' sc1 ; nocheck')
        P.track = True
        A(f'{l2}:')
    def setflag():
        l1, l2 = P.lab('L_sl'), P.lab('L_j')
        P.wait(vm='pub')
        A('s_mov_b64 exec, 1')
        A(f's_cmp_lg_u32 {sFAST}, 0'); A(f's_cbranch_scc1 {l1}')
        A(f'buffer_store_dword {v(vFV)}, {v(vFS)}, {srd(SWS)}, {sFLOFF} offen')
        A(f's_branch {l2}'); A(f'{l1}:')
        P.track = False
        A(f'buffer_store_dword {v(vFV)}, {v(vFS)}, {srd(SWS)}, {sFLOFF} offen sc1 ; nocheck')
        P.track = True
        A(f'{l2}:')
        A('s_mov_b64 exec, -1')
    def poll(vaddr, vtmp, val):
        l1 = P.lab('L_poll')
        A(f's_mov_b32 {sCNT}, 0')
        A(f'{l1}:')
        A(f's_add_u32 {sCNT}, {sCNT}, 1'); A(f's_cmp_gt_u32 {sCNT}, {SPIN}'); A('s_cbranch_scc1 L_end')
        A(f'buffer_load_dword {v(vtmp)}, {v(vaddr)}, {srd(SWS)}, {sFLOFF} offen sc1')
        P.wait(vm=0)
        A(f'v_cmp_gt_u32 vcc, {val}, {v(vtmp)}')
        A(f's_cbranch_vccnz {l1}')

    publish([f'buffer_store_dwordx4 {v(OP,4)}, v13, {srd(SWS)}, {sT3} offen',
             f'buffer_store_dwordx4 {v(OP+4,4)}, v13, {srd(SWS)}, {sT4} offen',
             f'buffer_store_dwordx2 {v(OL,2)}, v15, {srd(SWS)}, {sT2} offen offset:2048'], 1)
    setflag()
    if stop == 1: return finish(P)

    vPA = 2
    vLB = [1, 3, 4]
    A(f'v_and_b32 {v(vPA)}, 31, v0'); A(f'v_lshlrev_b32 {v(vPA)}, 2, {v(vPA)}')
    A(f'v_add_u32 v3, 65536, v1'); A(f'v_add_u32 v4, 131072, v1')
    for s, t in w1_load(cfg.get('w1c', 12)): A(s, tag=t)
    BF = 92; AC2 = 172; AR = 20; NAR = 18
    for j in range(5):
        for r in range(4):
            src = XR + (4*(j >> 1) + 2*(j & 1) + (r >> 1) if j < 4 else 8 + (r >> 1))
            if r & 1: A(f'v_and_b32 {v(AC2+4*j+r)}, 0xffff0000, {v(src)}')
            else: A(f'v_lshlrev_b32 {v(AC2+4*j+r)}, 16, {v(src)}')
    A('s_barrier')
    def wo_read(f):
        loc = wo_loc(f)
        return f'ds_read_b128 {v(AR+4*(f%NAR),4)}, {v(vLB[loc>>16])} offset:{loc & 0xffff}'
    for f in range(15): A(wo_read(f), tag=f'a{f}')
    poll(vPA, 5, 1)
    A(f's_mul_i32 {sT2}, {sW}, 20480'); A(f's_add_u32 {sT2}, {sT2}, {sOBASE}')
    for k in range(20):
        if k % 4 == 0 and k: A(f's_add_u32 {sT2}, {sT2}, 4096')
        A(f'buffer_load_dwordx4 {v(BF+4*k,4)}, {v(vL16)}, {srd(SWS)}, {sT2} offen offset:{(k%4)*1024} sc1', tag=f'o{k}')
    for s, t in w1_load(60): A(s, tag=t)
    for k in range(20):
        for j in range(5):
            f = 5*k + j
            P.wait(vm=f'o{k}' if j == 0 else None, lg=f'a{f}')
            A(f'{MF} {v(AC2+4*j,4)}, {v(AR+4*(f%NAR),4)}, {v(BF+4*k,4)}, {v(AC2+4*j,4)}')
            if f + 15 < 100: A(wo_read(f + 15), tag=f'a{f+15}')
    HP = XR
    for j in range(5):
        for h in range(2): A(f'v_cvt_pk_bf16_f32 {v(HP+2*j+h)}, {v(AC2+4*j+2*h)}, {v(AC2+4*j+2*h+1)}')
    A('v_mov_b32 v20, 0'); A('v_mov_b32 v21, 0')
    for i in range(10):
        A(f'v_dot2_f32_bf16 v20, {v(HP+i)}, {v(ONES)}, v20'); A(f'v_dot2_f32_bf16 v21, {v(HP+i)}, {v(HP+i)}, v21')
    for h in range(2): A(f'v_mov_b32 {v(24+h)}, {v(HP+8+h)}'); A(f'v_mov_b32 {v(26+h)}, {v(HP+8+h)}')
    for h in range(2): A(f'v_permlane16_swap_b32 {v(24+h)}, {v(26+h)}')
    for sw in ('v_permlane16_swap_b32', 'v_permlane32_swap_b32'):
        for h in range(2): A(f'v_mov_b32 {v(22+h)}, {v(20+h)}')
        for h in range(2): A(f'{sw} {v(20+h)}, {v(22+h)}')
        for h in range(2): A(f'v_add_f32 {v(20+h)}, {v(20+h)}, {v(22+h)}')
    vHS, vT8 = 6, 7
    A(f'v_lshrrev_b32 {v(vHS)}, 5, v0'); A(f'v_lshlrev_b32 {v(vHS)}, 8, {v(vHS)}'); A(f'v_lshl_add_u32 {v(vHS)}, v16, 4, {v(vHS)}')
    A(f'v_lshlrev_b32 {v(vT8)}, 3, v16')
    A(f's_mul_i32 {sT2}, {sW}, 21504'); A(f's_add_u32 {sT2}, {sT2}, {sHBASE}')
    A(f's_mul_i32 {sT3}, {sM}, 2560'); A(f's_add_u32 {sT3}, {sT3}, {sT2}')
    A(f's_lshl_b32 {sT4}, {sM}, 7'); A(f's_add_u32 {sT4}, {sT4}, {sT2}'); A(f's_add_u32 {sT4}, {sT4}, 20480')
    publish([f'buffer_store_dwordx4 {v(HP,4)}, {v(vL16)}, {srd(SWS)}, {sT3} offen',
             f'buffer_store_dwordx4 {v(HP+4,4)}, {v(vL16)}, {srd(SWS)}, {sT3} offen offset:1024',
             f'buffer_store_dwordx4 v[24:27], {v(vHS)}, {srd(SWS)}, {sT3} offen offset:2048',
             f'buffer_store_dwordx2 v[20:21], {v(vT8)}, {srd(SWS)}, {sT4} offen'], 2)
    setflag()
    if stop == 2: return finish(P)

    CS1 = 28; B1F = 40; AC3 = [52, 64]; BR = 76; NBR = 6
    W2V = 100; NW2V = 35
    w2reg = lambda f: v(W2V + 4*f, 4) if f < NW2V else a(4*(f - NW2V), 4)
    w2_issued = [0]
    def w2_load(n, lim=60):
        L = []
        for _ in range(n):
            f = w2_issued[0]
            if f >= lim: break
            if f % 4 == 0: L.append((f's_add_u32 {sW1K}, {sW2S}, {f*1024}', None))
            L.append((f'buffer_load_dwordx4 {w2reg(f)}, {v(vL16)}, {srd(SWS)}, {sW1K} offen offset:{(f%4)*1024} sc1', 'w2'))
            w2_issued[0] += 1
        return L
    A('v_lshlrev_b32 v13, 4, v14'); A('v_lshlrev_b32 v15, 3, v14')
    A(f's_mul_i32 {sT2}, {sM}, 384'); A(f's_mul_i32 {sT3}, {sW}, 96'); A(f's_add_u32 {sT2}, {sT2}, {sT3}')
    A(f'buffer_load_dwordx4 v[20:23], v13, {srd(SB1)}, {sT2} offen', tag='b1')
    A(f'buffer_load_dwordx2 v[24:25], v15, {srd(SB1)}, {sT2} offen offset:64', tag='b1')
    for s, t in w2_load(cfg.get('w2a', 12), NW2V): A(s, tag=t)
    for k in range(20):
        for j in range(3):
            A(f'{MF} {v(CS1+4*j,4)}, {a((3*k+j)*4,4)}, {v(ONES,4)}, {"0" if k == 0 else v(CS1+4*j,4)}')
    P.wait(vm='b1')
    for j in range(3):
        for r in range(4):
            src = 20 + 2*j + (r >> 1)
            if r & 1: A(f'v_and_b32 {v(B1F+4*j+r)}, 0xffff0000, {v(src)}')
            else: A(f'v_lshlrev_b32 {v(B1F+4*j+r)}, 16, {v(src)}')
    A('s_barrier')
    poll(vPA, 5, 2)
    A(f's_mul_i32 {sT2}, {sW}, 21504'); A(f's_add_u32 m0, {sT2}, 20480'); A(f's_add_u32 {sT3}, {sT2}, {sHBASE}'); A(f's_add_u32 {sT3}, {sT3}, 20480')
    A(f'buffer_load_dwordx4 {v(vL16)}, {srd(SWS)}, {sT3} offen sc1 lds', tag='h0')
    A(f's_mul_i32 {sT2}, {sW}, 5120'); A(f's_add_u32 {sT3}, {sT2}, {sHBASE}')
    for T in range(4):
        for i in range(5):
            if i in (0, 4):
                A(f's_add_u32 m0, {sT2}, {T*21504 + i*1024}'); A(f's_add_u32 {sT4}, {sT3}, {T*21504 + i*1024}')
            A(f'buffer_load_dwordx4 {v(vL16)}, {srd(SWS)}, {sT4} offen offset:{(i%4)*1024} sc1 lds', tag=f'h{T}')
    A(f's_mul_i32 {sT2}, {sM}, 6144'); A(f's_mul_i32 {sT3}, {sW}, 1536'); A(f's_add_u32 {sT2}, {sT2}, {sT3}'); A(f's_add_u32 {sT5}, {sT2}, {sH1BASE}')
    vST = 8
    A(f'v_lshlrev_b32 {v(vST)}, 8, v14'); A(f'v_add_u32 {v(vST)}, {v(vST)}, {v(vT8)}'); A(f'v_add_u32 {v(vST)}, 20480, {v(vST)}')
    def h_read(T, k):
        loc = T*21504 + k*1024
        return f'ds_read_b128 {v(BR+4*((20*T+k)%NBR),4)}, {v(vLB[loc>>16])} offset:{loc & 0xffff}'
    def epi3(T):
        ac = AC3[T & 1]; L = []
        L.append((f'ds_read_b64 v[20:21], {v(vST)} offset:{T*21504}', 'st'))
        L.append((f'ds_read_b64 v[22:23], {v(vST)} offset:{T*21504+128}', 'st'))
        L.append(lambda: P.wait(lg='st'))
        for h in range(2): L.append(f'v_add_f32 {v(20+h)}, {v(20+h)}, {v(22+h)}')
        for sw in ('v_permlane16_swap_b32', 'v_permlane32_swap_b32'):
            for h in range(2): L.append(f'v_mov_b32 {v(22+h)}, {v(20+h)}')
            for h in range(2): L.append(f'{sw} {v(20+h)}, {v(22+h)}')
            for h in range(2): L.append(f'v_add_f32 {v(20+h)}, {v(20+h)}, {v(22+h)}')
        L += [f'v_mul_f32 v20, {f2u(-1.0/640):#x}, v20', f'v_mul_f32 v21, {f2u(1.0/640):#x}, v21', 'v_fma_f32 v21, -v20, v20, v21',
              'v_max_f32 v21, 0, v21', f'v_add_f32 v21, {f2u(1e-5):#x}, v21', 'v_rsq_f32 v21, v21']
        for i in range(12): L.append(f'v_fma_f32 {v(ac+i)}, v20, {v(CS1+i)}, {v(ac+i)}')
        for i in range(12): L.append(f'v_fma_f32 {v(ac+i)}, {v(ac+i)}, v21, {v(B1F+i)}')
        for i in range(12): L.append(f'v_max_f32 {v(ac+i)}, 0, {v(ac+i)}')
        for i in range(12): L.append(f'v_mul_f32 {v(ac+i)}, {v(ac+i)}, {v(ac+i)}')
        for i in range(4): L.append(f'v_cvt_pk_bf16_f32 {v(20+i)}, {v(ac+2*i)}, {v(ac+2*i+1)}')
        for i in range(2):
            L.append(f'v_cvt_pk_bf16_f32 {v(24+i)}, {v(ac+8+2*i)}, {v(ac+8+2*i+1)}')
            L.append(f'v_cvt_pk_bf16_f32 {v(26+i)}, {v(ac+8+2*i)}, {v(ac+8+2*i+1)}')
        for h in range(2): L.append(f'v_permlane16_swap_b32 {v(24+h)}, {v(26+h)}')
        def pub():
            A(f's_add_u32 {sT4}, {sT5}, {T*49152}')
            publish([f'buffer_store_dwordx4 v[20:23], {v(vL16)}, {srd(SWS)}, {sT4} offen',
                     f'buffer_store_dwordx4 v[24:27], {v(vHS)}, {srd(SWS)}, {sT4} offen offset:1024'], 3 + T)
        L.append(pub)
        return L
    def emit_item(it):
        if callable(it): it()
        elif isinstance(it, tuple): A(it[0], tag=it[1])
        else: A(it)
    pend = []
    PRE = 4
    for T in range(4):
        P.wait(vm=f'h{T}'); A('s_barrier')
        for k in range(PRE): A(h_read(T, k), tag=f'b{T}_{k}')
        ac = AC3[T & 1]
        flagged = False
        for k in range(20):
            for j in range(3):
                if j == 0: P.wait(lg=f'b{T}_{k}')
                A(f'{MF} {v(ac+4*j,4)}, {a((3*k+j)*4,4)}, {v(BR+4*((20*T+k)%NBR),4)}, {"0" if k == 0 else v(ac+4*j,4)}')
                if j == 0 and k + PRE < 20: A(h_read(T, k + PRE), tag=f'b{T}_{k+PRE}')
                n = 2 if j else 1
                if k >= 1:
                    for _ in range(n):
                        if pend: emit_item(pend.pop(0))
            if T == 3 and k >= 2:
                lim = min(60, NW2V + 3*(k - 1))
                if not pend:
                    for s, t in w2_load(3, lim): A(s, tag=t)
        while pend: emit_item(pend.pop(0))
        if T > 0: setflag()
        if T < 3:
            for s, t in w2_load(cfg.get('w2b', 8), NW2V): A(s, tag=t)
        pend = epi3(T)
    while pend: emit_item(pend.pop(0))
    setflag()
    for s, t in w2_load(60): A(s, tag=t)
    if stop == 3: return finish(P)

    BB = [100, 148]
    AC4 = [28, 48]
    vP4 = 9
    A(f'v_and_b32 {v(vP4)}, 7, v0'); A(f'v_lshlrev_b32 {v(vP4)}, 2, {v(vP4)}'); A(f's_lshl_b32 {sT2}, {sW}, 5'); A(f'v_add_u32 {v(vP4)}, {sT2}, {v(vP4)}')
    A(f's_mul_i32 {sT5}, {sW}, 12288'); A(f's_add_u32 {sT5}, {sT5}, {sH1BASE}')
    A(f's_mul_i32 {sT2}, {sM}, 160')
    A(f'buffer_load_dwordx4 v[68:71], v13, {srd(SB2)}, {sT2} offen', tag='b2')
    A(f'buffer_load_dwordx4 v[72:75], v13, {srd(SB2)}, {sT2} offen offset:64', tag='b2')
    A(f'buffer_load_dwordx2 v[76:77], v15, {srd(SB2)}, {sT2} offen offset:128', tag='b2')
    vRW = 10
    A(f's_mul_i32 {sT2}, {sW}, 5120'); A(f'v_add_u32 {v(vRW)}, {sT2}, v1')
    A(f'v_add_u32 v12, 40960, {v(vRW)}')
    A(f's_mul_i32 {sT2}, {sW}, 20480'); A(f'v_add_u32 v11, {sT2}, v1')
    A('s_barrier')
    def h1_loads(T):
        for kk in range(12):
            if kk % 4 == 0: A(f's_add_u32 {sT4}, {sT5}, {T*49152 + kk*1024}')
            A(f'buffer_load_dwordx4 {a(BB[T&1]+4*kk,4)}, {v(vL16)}, {srd(SWS)}, {sT4} offen offset:{(kk%4)*1024} sc1', tag=f'g{T}_{kk}')
    poll(vP4, 5, 4)
    h1_loads(0); h1_loads(1)
    for T in range(4):
        ac = AC4[T & 1]
        for kk in range(12):
            P.wait(vm=f'g{T}_{kk}')
            for j in range(5):
                A(f'{MF} {v(ac+4*j,4)}, {w2reg(5*kk+j)}, {a(BB[T&1]+4*kk,4)}, {"0" if kk == 0 else v(ac+4*j,4)}')
        if T + 2 < 4:
            poll(vP4, 5, 3 + T + 2)
            h1_loads(T + 2)
        for j in range(5):
            A(f'ds_write_b128 {v(vRW if T < 2 else 12)}, {v(ac+4*j,4)} offset:{(T%2)*20480 + j*1024}')
    P.wait(lg=0); A('s_barrier')
    RD = 100
    for w in range(4):
        for j in range(5): A(f'ds_read_b128 {v(RD+20*w+4*j,4)}, v11 offset:{w*5120 + j*1024}', tag=f'r{w}')
    for j in range(5):
        for r in range(4):
            o = (4*(j >> 1) + 2*(j & 1) + (r >> 1) if j < 4 else 8 + (r >> 1))
            if r & 1: A(f'v_and_b32 {v(28+4*j+r)}, 0xffff0000, {v(68+o)}'); A(f'v_and_b32 {v(48+4*j+r)}, 0xffff0000, {v(HP+2*j+(r>>1))}')
            else: A(f'v_lshlrev_b32 {v(28+4*j+r)}, 16, {v(68+o)}'); A(f'v_lshlrev_b32 {v(48+4*j+r)}, 16, {v(HP+2*j+(r>>1))}')
    for i in range(10): A(f'v_pk_add_f32 {v(28+2*i,2)}, {v(28+2*i,2)}, {v(48+2*i,2)}')
    for w in range(4):
        P.wait(lg=f'r{w}')
        for i in range(10): A(f'v_pk_add_f32 {v(28+2*i,2)}, {v(28+2*i,2)}, {v(RD+20*w+2*i,2)}')
    for i in range(10): A(f'v_cvt_pk_bf16_f32 {v(48+i)}, {v(28+2*i)}, {v(28+2*i+1)}')
    A('v_mul_u32_u24 v17, 1280, v16'); A('v_add_u32 v13, v13, v17'); A('v_add_u32 v15, v15, v17')
    A(f'buffer_store_dwordx4 v[48:51], v13, {srd(SOUT)}, {sXT[0]} offen')
    A(f'buffer_store_dwordx4 v[52:55], v13, {srd(SOUT)}, {sXT[0]} offen offset:64')
    A(f'buffer_store_dwordx2 v[56:57], v15, {srd(SOUT)}, {sXT[0]} offen offset:128')
    return finish(P)

def finish(P):
    P('L_end:')
    body = P.finish()
    hdr = f"""; generated by gen/gen.py
; @launch grid=(256,1,1) block=(256,1,1) lds={LDS_TOTAL}
.amdgcn_target "amdgcn-amd-amdhsa--gfx950"
.text
.globl {NAME}_kernel
.p2align 8
.type {NAME}_kernel,@function
{NAME}_kernel:
"""
    ftr = f"""
s_endpgm
.section .rodata,"a"
.p2align 6
.amdhsa_kernel {NAME}_kernel
  .amdhsa_next_free_vgpr 512
  .amdhsa_next_free_sgpr 102
  .amdhsa_accum_offset 256
  .amdhsa_group_segment_fixed_size 0
  .amdhsa_kernarg_size 88
  .amdhsa_user_sgpr_count 2
  .amdhsa_user_sgpr_kernarg_segment_ptr 1
  .amdhsa_system_sgpr_workgroup_id_x 1
.end_amdhsa_kernel
"""
    return hdr + body + ftr

if __name__ == '__main__':
    out = sys.argv[1]
    stop = int(sys.argv[2]) if len(sys.argv) > 2 else 99
    cfg = eval(sys.argv[3]) if len(sys.argv) > 3 else {}
    s = gen(stop, cfg)
    open(out, 'w').write(s)
    print('lines', s.count('\n'))
```

```python
import re

def regs_of(tok):
    tok = tok.strip()
    neg = tok.lstrip('-|').rstrip('|')
    m = re.fullmatch(r'([vas])(\d+)', neg)
    if m: return [(m.group(1), int(m.group(2)))]
    m = re.fullmatch(r'([vas])\[(\d+):(\d+)\]', neg)
    if m: return [(m.group(1), i) for i in range(int(m.group(2)), int(m.group(3)) + 1)]
    if neg == 'vcc': return [('s', 106), ('s', 107)]
    if neg == 'vcc_lo': return [('s', 106)]
    if neg == 'vcc_hi': return [('s', 107)]
    if neg == 'exec': return [('s', 126), ('s', 127)]
    if neg == 'exec_lo': return [('s', 126)]
    if neg == 'exec_hi': return [('s', 127)]
    if neg == 'm0': return [('s', 124)]
    return []

TRANS = ('v_exp_', 'v_log_', 'v_rcp_', 'v_rsq_', 'v_sqrt_', 'v_sin_', 'v_cos_')

class Ins:
    def __init__(self, text):
        self.text = text
        t = text.split(';')[0].strip()
        self.label = None
        self.op = ''
        self.rd = []; self.wr = []
        self.kind = 'none'
        self.srcc = []; self.srcab = []
        self.data = []
        if not t or t.startswith('.'):
            return
        if t.endswith(':'):
            self.label = t[:-1]; return
        parts = t.split(None, 1)
        op = parts[0]; self.op = op
        rest = parts[1] if len(parts) > 1 else ''
        ops = []; cur = ''; d = 0
        for ch in rest:
            if ch == '[' or ch == '(': d += 1
            if ch == ']' or ch == ')': d -= 1
            if ch == ',' and d == 0: ops.append(cur.strip()); cur = ''
            else: cur += ch
        if cur.strip(): ops.append(cur.strip())
        mods = ''
        if ops:
            sp = ops[-1].split(None, 1)
            ops[-1] = sp[0]
            mods = sp[1] if len(sp) > 1 else ''
        self.ops = ops; self.mods = mods
        R = [regs_of(o) for o in ops]
        flat = lambda L: [x for l in L for x in l]
        if op.startswith('v_mfma'):
            self.kind = 'mfma'; self.wr = R[0]; self.srcab = R[1] + R[2]; self.srcc = R[3]; self.rd = self.srcab + self.srcc
            self.passes = 8 if '32x32' in op else 4
        elif op.startswith('v_permlane') and 'swap' in op:
            self.kind = 'valu'; self.wr = R[0] + R[1]; self.rd = R[0] + R[1]
        elif op.startswith('v_'):
            self.kind = 'valu'
            self.wr = R[0]; self.rd = flat(R[1:])
            if op.startswith('v_cmpx'): self.wr = self.wr + regs_of('exec')
            if 'dpp' in op or 'fmac' in op or 'dot2c' in op or op.startswith('v_writelane') or 'row_' in mods or 'quad_perm' in mods:
                self.rd = self.rd + R[0]
            if op.startswith('v_cndmask') and len(ops) == 3: self.rd = self.rd + regs_of('vcc')
            if '_co_' in op: self.wr = R[0] + R[1]; self.rd = flat(R[2:])
            self.dpp = ('dpp' in op) or ('row_' in mods) or ('quad_perm' in mods)
        elif op.startswith('ds_'):
            self.kind = 'ds'
            if op.startswith('ds_write'): self.rd = flat(R); self.data = flat(R[1:])
            else: self.wr = R[0]; self.rd = flat(R[1:])
        elif op.startswith('buffer_') or op.startswith('global_'):
            self.kind = 'vmem'
            islds = (' lds' in (' ' + mods)) or ('_lds_' in op)
            self.lds = islds
            if 'load' in op and not islds: self.wr = R[0]; self.rd = flat(R[1:])
            elif 'load' in op: self.rd = flat(R) + regs_of('m0')
            elif op.startswith('buffer_'):
                self.rd = flat(R); self.data = R[0]
                if 'atomic' in op and 'sc0' in mods: self.wr = R[0]
            else:
                self.rd = flat(R); self.data = R[1]
        elif op.startswith('s_load') or op.startswith('s_buffer_load') or op.startswith('s_mem'):
            self.kind = 'smem'; self.wr = R[0]; self.rd = flat(R[1:])
        elif op.startswith('s_'):
            self.kind = 'salu'
            if op.startswith(('s_cmp', 's_waitcnt', 's_barrier', 's_branch', 's_cbranch', 's_nop', 's_endpgm', 's_sleep', 's_setprio', 's_bitcmp')):
                self.rd = flat(R)
            else:
                self.wr = R[0]; self.rd = flat(R[1:])
                if 'saveexec' in op: self.wr = self.wr + regs_of('exec')
        else:
            raise ValueError('unknown op ' + op)
    def states(self):
        if self.op == 's_nop': return int(self.ops[0], 0) + 1
        return 1 if self.op else 0

def need(p, c):
    n = 0
    pw = set(p.wr);
    if p.kind == 'valu':
        vw = {r for r in pw if r[0] != 's'}; sw = {r for r in pw if r[0] == 's'}
        if c.kind == 'mfma' and vw & set(c.rd): n = max(n, 3 if p.op.startswith('v_dot') else 2)
        if c.kind == 'valu':
            if c.op.startswith('v_permlane') and vw & set(c.rd): n = max(n, 2)
            if getattr(c, 'dpp', False) and vw & set(c.rd): n = max(n, 2)
            if c.op.startswith(('v_readlane', 'v_readfirstlane')) and vw & set(c.rd): n = max(n, 1)
            if p.op.startswith(TRANS) and vw & set(c.rd): n = max(n, 1)
            if sw & set(c.rd): n = max(n, 4 if c.op.startswith(('v_readlane', 'v_writelane', 'v_div_fmas')) else 2)
            if ('op_sel' in p.mods or 'sdwa' in p.op or 'dst_sel' in p.mods) and not p.op.startswith('v_pk_') and vw & (set(c.rd) | set(c.wr)): n = max(n, 1)
            if ('s', 126) in sw:
                if getattr(c, 'dpp', False): n = max(n, 5)
                if c.op.startswith(('v_readlane', 'v_readfirstlane', 'v_writelane', 'v_permlane')): n = max(n, 4)
        if p.op.startswith('v_dot') and c.kind in ('valu', 'vmem', 'ds') and vw & (set(c.rd) | set(c.wr)):
            same_c = (c.op == p.op and c.kind == 'valu' and not (vw & set(x for o in c.ops[1:3] for x in regs_of(o))))
            if not same_c: n = max(n, 3)
        if c.kind == 'mfma' and ('s', 126) in sw: n = max(n, 4)
        if c.kind == 'vmem' and sw & set(c.rd): n = max(n, 5)
        if c.kind == 'salu' and sw & set(c.rd): n = max(n, 2)
        if c.op.startswith('s_cbranch_vcc') and ('s', 106) in sw: n = max(n, 0)
    elif p.kind == 'mfma':
        big = 8 if p.passes == 4 else 12
        if c.kind == 'mfma':
            if pw & set(c.srcab): n = max(n, big)
            if pw & set(c.srcc) and not (c.srcc == p.wr and c.passes == p.passes): n = max(n, 6 if p.passes == 4 else 10)
            if pw & set(c.wr) and not (pw & set(c.srcc)): n = max(n, 0)
        elif c.kind in ('valu', 'vmem', 'ds'):
            if pw & (set(c.rd) | set(c.wr)): n = max(n, big)
        if c.kind == 'valu' and set(p.srcc) & set(c.wr): n = max(n, 3 if p.passes == 4 else 7)
    elif p.kind == 'salu':
        if ('s', 124) in pw and c.kind == 'vmem' and getattr(c, 'lds', False): n = max(n, 1)
        if ('s', 124) in pw and c.kind == 'ds' and 'addtid' in c.op: n = max(n, 1)
    if p.kind == 'vmem' and len(p.data) >= 3 and set(p.data) & set(c.wr): n = max(n, 2 if c.kind in ('valu', 'mfma') else 1)
    if p.kind != 'valu' and getattr(c, 'dpp', False) and c.kind == 'valu' and {r for r in pw if r[0] != 's'} & set(c.rd) and p.kind in ('mfma',): n = max(n, 2)
    return n

class Prog:
    def __init__(self):
        self.L = []
        self.vm = []
        self.lg = []
        self.vt = []; self.warn = []; self.scale = 1.0
        self.track = True
        self.uid = 0
        self.t = 0; self.mf = 0
        self.bg = []; self.lastbg = -10**9; self.gap = 72; self.step = 0
    def __call__(self, s, tag=None):
        for line in s.split('\n'):
            line = line.strip()
            if not line: continue
            self.L.append(line)
            op = line.split()[0]
            if op.startswith('v_mfma'):
                st = max(self.t, self.mf); self.mf = st + 16; self.t = st + 8
            elif op.startswith(TRANS): self.t += 8
            elif op.startswith('ds_write_b128'): self.t += 12
            elif op.endswith(':') or op.startswith(';'): pass
            elif self.track: self.t += 4
            if self.track:
                if op.startswith(('buffer_', 'global_')): self.vm.append(tag); self.vt.append(self.t)
                elif op.startswith('ds_'): self.lg.append(tag)
                elif op.startswith(('s_load', 's_buffer_load', 's_mem')): self.lg.append('SMEM')
    def tick(self, force=False):
        if not self.bg: return False
        it = self.bg[0]
        if it.get('avail', -1) > self.step: return False
        if not force and (self.t - self.lastbg) * self.scale < self.gap: return False
        self.bg.pop(0)
        self.lastbg = self.t; self.gap = it.get('gap', 72)
        for x in it['ins']:
            if callable(x): x()
            elif isinstance(x, tuple): self(x[0], tag=x[1])
            else: self(x)
        return True
    def lab(self, base='L'):
        self.uid += 1
        return f'{base}_{self.uid}'
    def _n(self, q, tags):
        if not isinstance(tags, (list, tuple, set)): tags = [tags]
        last = -1
        for i, t in enumerate(q):
            if t in tags: last = i
        if last < 0: return None
        return len(q) - 1 - last
    def wait(self, vm=None, lg=None):
        parts = []
        if vm is not None:
            n = 0 if vm == 0 else self._n(self.vm, vm)
            if n is not None:
                n = min(n, 63)
                if len(self.vm) > n:
                    ti = self.vt[len(self.vm) - n - 1]
                    if self.t - ti < 600: self.warn.append((self.vm[len(self.vm) - n - 1], self.t - ti, len(self.L)))
                parts.append(f'vmcnt({n})'); self.vm = self.vm[len(self.vm) - n:] if n else []; self.vt = self.vt[len(self.vt) - n:] if n else []
        if lg is not None:
            n = 0 if lg == 0 else self._n(self.lg, lg)
            if n is not None:
                if 'SMEM' in self.lg: n = 0
                n = min(n, 15)
                parts.append(f'lgkmcnt({n})'); self.lg = self.lg[len(self.lg) - n:] if n else []
        if parts: self.L.append('s_waitcnt ' + ' '.join(parts))
    def finish(self):
        ins = [Ins(t) for t in self.L]
        out = []
        nn = 0
        for c in ins:
            if c.op:
                req = 0; el = 0
                for p in reversed(out):
                    if el >= 20: break
                    if p.op:
                        r = need(p, c) - el
                        req = max(req, r)
                        el += p.states()
                        if p.op in ('s_branch', 's_endpgm'): break
                if req > 0:
                    out.append(Ins(f's_nop {req-1}')); nn += 1
            out.append(c)
        labels = {x.label: i for i, x in enumerate(out) if x.label}
        for i, b in enumerate(out):
            if b.op.startswith(('s_branch', 's_cbranch')):
                tgt = labels[b.ops[0]]
                pre = []; el = 0
                for p in reversed(out[:i + 1]):
                    if el >= 20: break
                    if p.op: pre.append((p, el)); el += p.states()
                d = 0
                for c in out[tgt:]:
                    if d >= 20: break
                    if c.op:
                        for p, e in pre:
                            if need(p, c) > e + d - 0:
                                raise Exception(f'branch-edge hazard: {p.text} -> {c.text} via {b.text}')
                        d += c.states()
                        if c.op in ('s_branch', 's_endpgm'): break
        self.check_waits(out)
        self.nnops = nn
        return '\n'.join(('' if x.label else '  ') + x.text for x in out)
    def check_waits(self, out):
        vm = []; lg = []
        for c in out:
            if not c.op: continue
            if 'nocheck' in c.text: continue
            if c.op == 's_waitcnt':
                m = re.search(r'vmcnt\((\d+)\)', c.text)
                if m:
                    n = int(m.group(1)); vm = vm[len(vm) - n:] if n and len(vm) > n else (vm if n else [])
                m = re.search(r'lgkmcnt\((\d+)\)', c.text)
                if m:
                    n = int(m.group(1))
                    if n and any(k == 'smem' for k, _ in lg): pass
                    else: lg = lg[len(lg) - n:] if n and len(lg) > n else (lg if n else [])
                continue
            touched = set(c.rd) | set(c.wr)
            for q in (vm, lg):
                for k, w in q:
                    if w & touched and not (c.kind == k and c.kind in ('vmem', 'ds') and not (w & set(c.rd))):
                        raise Exception(f'unwaited reg {sorted(w & touched)} at: {c.text}')
            if c.kind == 'vmem': vm.append(('vmem', set(c.wr)))
            elif c.kind == 'ds': lg.append(('ds', set(c.wr)))
            elif c.kind == 'smem': lg.append(('smem', set(c.wr)))
```

```python
import sys, math, struct
from asmlib import Prog
NAME = "sequential_preLN__sliding_local_dilated__dense_activation_squared_relu__prompt"

FL = 0
WO = 0x10000
W1 = WO + 800 * 1024
W2 = W1 + 1920 * 1024
OB = W2 + 1920 * 1024
HB = OB + 128 * 20480
H1B = HB + 128 * 21504
PROFB = H1B + 128 * 49152
WS_END = PROFB + 1024 * 256

SLOT = 15424; HALF = 7712; NSLOT = 6
XB = NSLOT * SLOT
XS = 20480
PS = XB + 2 * XS
LDS_TOTAL = 163840

SX, SWQ, SWS, SP0, SOUT, SDBG, SB1, SB2, SPD = 4, 8, 12, 16, 20, 24, 28, 32, 36
def srd(b): return f's[{b}:{b+3}]'
sW, sM, sRB = 's40', 's41', 's42'
sXT = ['s43', 's44', 's45', 's46', 's47']
sWM0, sXM0 = 's48', 's49'
sW0, sW1h = 's50', 's51'
sT2, sT3, sT4, sT5 = 's52', 's53', 's54', 's55'
sEXW = 's[56:57]'; sEXT0 = 's[58:59]'
sFAST, sFLOFF, sCNT, sXCC = 's60', 's61', 's62', 's63'
sOFF, sBG, sWOS, sW1S = 's96', 's97', 's98', 's99'
sW10 = 's3'
sOBASE, sHBASE, sH1BASE, sW2S = 's64', 's65', 's66', 's67'
sM1, sM3, sM23 = 's[68:69]', 's[70:71]', 's[72:73]'
sA, sB, sC, sD = 's74', 's75', 's76', 's77'

def v(i, n=1): return f'v{i}' if n == 1 else f'v[{i}:{i+n-1}]'
def a(i, n=1): return f'a{i}' if n == 1 else f'a[{i}:{i+n-1}]'
MF = 'v_mfma_f32_16x16x32_bf16'
SPIN = 200000
f2u = lambda f: struct.unpack('<I', struct.pack('<f', f))[0]

def pk_bc(reg):
    return v(reg & ~1, 2), reg & 1

def gen(stop=99, cfg=None):
    cfg = cfg or {}
    P = Prog(); A = P
    tick = P.tick
    GAP = cfg.get('gap', 72)
    vL16 = 1
    vWO = [2, 3, 4, 5]; vXO = 6; vAR = [7, 8]; vAX = [9, 10]; vB = [11, 12]
    FA = [20, 36]; FB = [52, 72]
    ACC = 92; GR = 172
    acc = lambda F, T: ACC + (T * 4 + F) * 4
    vFS = 254; vFV = 255; ONES = 240; XR = 244
    prof = cfg.get('prof'); P.stamps = ['entry', 'rt0']; P.prof = prof
    def stamp(name, lvl=1):
        if not prof or prof < lvl: return
        A('s_memtime s[100:101]'); P.wait(lg=0)
        A(f'v_writelane_b32 v19, s100, {len(P.stamps)}'); P.stamps.append(name)
    def AT(*ins):
        for x in ins: A(x); tick()
    if prof: A('s_memtime s[92:93]'); A('s_memrealtime s[94:95]')
    A(f's_load_dwordx2 s[{SX}:{SX+1}], s[0:1], 0')
    A(f's_load_dwordx2 s[{SWQ}:{SWQ+1}], s[0:1], 8')
    A('s_cmp_ge_u32 s2, 256')
    A('s_cbranch_scc1 L_end')
    if not cfg.get('nopf'):
        A('s_getpc_b64 s[64:65]'); A('L_pc:')
        A('v_lshlrev_b32 v13, 7, v0'); A('v_min_u32 v13, L_end-L_pc, v13')
        A('global_load_dword v253, v13, s[64:65]', tag='pf')
    A('v_lshrrev_b32 v13, 6, v0')
    A('v_and_b32 v0, 63, v0')
    A(f'v_readfirstlane_b32 {sW}, v13')
    A('v_lshlrev_b32 v1, 4, v0')
    for b, n in ((SX, 2621440), (SWQ, 2457600)):
        A(f's_mov_b32 s{b+2}, {n}'); A(f's_mov_b32 s{b+3}, 0x20000')
    A(f's_and_b32 {sRB}, s2, 7'); A(f's_lshl_b32 {sRB}, {sRB}, 2'); A(f's_lshr_b32 {sT2}, s2, 6'); A(f's_add_u32 {sRB}, {sRB}, {sT2}')
    A(f's_bfe_u32 {sM}, s2, 0x30003')
    A(f's_mul_i32 {sXT[1]}, {sRB}, {64*1280}')
    A(f's_sub_u32 {sXT[0]}, {sXT[1]}, {16*1280}'); A(f's_cselect_b32 {sXT[0]}, 0, {sXT[0]}')
    for T in range(2, 5): A(f's_add_u32 {sXT[T]}, {sXT[1]}, {(T-1)*16*1280}')
    A(f's_and_b32 {sW0}, {sW}, 1'); A(f's_lshr_b32 {sW1h}, {sW}, 1')
    A(f's_mul_i32 {sT2}, {sW0}, {8*1280}'); A(f's_lshl_b32 {sT3}, {sW1h}, 7'); A(f's_add_u32 {sT2}, {sT2}, {sT3}')
    A('v_lshrrev_b32 v13, 3, v0'); A(f'v_mul_u32_u24 v13, 1280, v13')
    A('v_lshrrev_b32 v14, 4, v0')
    A(f's_lshl_b32 {sT3}, {sW0}, 2')
    A(f'v_add_u32 v15, {sT3}, v14'); A('v_and_b32 v16, 7, v0'); A('v_xor_b32 v15, v15, v16')
    A(f'v_lshl_add_u32 v13, v15, 4, v13'); A(f'v_add_u32 {v(vXO)}, {sT2}, v13')
    A(f's_mul_i32 {sXM0}, {sW1h}, 10240'); A(f's_lshl_b32 {sT3}, {sW0}, 10'); A(f's_add_u32 {sXM0}, {sXM0}, {sT3}')
    A(f's_mov_b32 s59, -1'); A(f's_cmp_eq_u32 {sW0}, 0'); A(f's_cselect_b32 s58, 0xffffff00, -1')
    A('v_cmp_lt_u32 vcc, 29, v0'); A('v_cndmask_b32 v13, 0, 1, vcc')
    A('v_mul_u32_u24 v15, 30, v13'); A('v_sub_u32 v15, v0, v15')
    A('v_mul_u32_u24 v16, 26, v15'); A('v_lshrrev_b32 v16, 8, v16')
    A('v_mul_u32_u24 v13, 3840, v13')
    A('v_mul_u32_u24 v16, 1120, v16')
    A('v_lshl_add_u32 v13, v15, 4, v13'); A('v_add_u32 v13, v13, v16')
    A(f's_lshl_b32 {sT2}, {sW0}, 4'); A(f's_lshl_b32 {sT3}, {sW1h}, 2'); A(f's_add_u32 {sT2}, {sT2}, {sT3}')
    A(f's_mul_i32 {sT2}, {sT2}, 3840'); A(f's_mul_i32 {sT3}, {sM}, 160'); A(f's_add_u32 {sT2}, {sT2}, {sT3}')
    A(f'v_add_u32 {v(vWO[0])}, {sT2}, v13')
    for q in range(1, 4): A(f'v_add_u32 {v(vWO[q])}, {(8*(q>>1)+2*(q&1))*3840}, {v(vWO[0])}')
    A(f's_mul_i32 {sWM0}, {sW1h}, {HALF}'); A(f's_mul_i32 {sT3}, {sW0}, {8*480}'); A(f's_add_u32 {sWM0}, {sWM0}, {sT3}')
    A(f's_mov_b32 s56, -1'); A(f's_mov_b32 s57, 0x0fffffff')
    P.wait(lg=0)
    if prof: A('v_writelane_b32 v19, s92, 0'); A('v_writelane_b32 v19, s94, 1')
    PT = 84
    A(f's_load_dwordx2 s[{SWS}:{SWS+1}], s[0:1], 80')
    A(f's_load_dwordx2 s[{PT}:{PT+1}], s[0:1], 16')
    A(f's_load_dwordx2 s[{PT+2}:{PT+3}], s[0:1], 32')
    A(f's_load_dwordx2 s[{PT+4}:{PT+5}], s[0:1], 48')
    A(f's_load_dwordx2 s[{SOUT}:{SOUT+1}], s[0:1], 64')
    A(f's_load_dwordx2 s[{SDBG}:{SDBG+1}], s[0:1], 72')
    A(f's_load_dwordx2 s[{SB1}:{SB1+1}], s[0:1], 40')
    A(f's_load_dwordx2 s[{SB2}:{SB2+1}], s[0:1], 56')
    stamp('karg', 2)

    XG = cfg.get('xgap', 60); WG = cfg.get('wgap', 80)
    def xdma(S, avail=-1):
        L = []
        for T in range(5):
            ins = [f's_add_u32 m0, {sXM0}, {XB + (S % 2)*XS + T*2048 - S*256}']
            if T == 0: ins.append(f's_mov_b64 exec, {sEXT0}')
            ins.append((f'buffer_load_dwordx4 {v(vXO)}, {srd(SX)}, {sXT[T]} offen offset:{S*256} {cfg.get("xfl", "")} lds', f'x{S}'))
            if T == 0: ins.append('s_mov_b64 exec, -1')
            L.append(dict(ins=ins, avail=avail, gap=XG))
        return L
    def wdma(ks, avail=-1):
        L = []
        for q in range(4):
            ins = [f's_mov_b32 {sOFF}, {ks*32*3840}'] if q == 0 else []
            ins += [f's_add_u32 m0, {sWM0}, {(ks % NSLOT)*SLOT + 2*q*480}', f's_mov_b64 exec, {sEXW}',
                    (f'buffer_load_dwordx4 {v(vWO[q])}, {srd(SWQ)}, {sOFF} offen {cfg.get("wfl", "")} lds', f'w{ks}'), 's_mov_b64 exec, -1']
            L.append(dict(ins=ins, avail=avail, gap=WG))
        return L
    def flush(n=10**9):
        while n > 0 and tick(force=True): n -= 1
    P.bg = wdma(0) + xdma(0) + wdma(1); flush()
    if cfg.get('wpf'):
        r0 = cfg['wpf']; nl = (640 - 32*r0) * 30; per = (nl + 1023) // 1024
        A(f's_lshl_b32 {sT2}, s2, 2'); A(f's_add_u32 {sT2}, {sT2}, {sW}'); A(f's_mul_i32 {sT2}, {sT2}, {per*128}'); A(f's_add_u32 {sT2}, {sT2}, {r0*32*3840}')
        A('v_lshlrev_b32 v13, 7, v0'); A(f's_mov_b64 exec, {(1 << per) - 1:#x}')
        A(f'buffer_load_dword v252, v13, {srd(SWQ)}, {sT2} offen', tag='pf'); A('s_mov_b64 exec, -1')
    stamp('iss0', 2)
    for b, n in ((SWS, WS_END), (SOUT, 2621440), (SDBG, 256), (SB1, 3072), (SB2, 1280)):
        A(f's_mov_b32 s{b+2}, {n}'); A(f's_mov_b32 s{b+3}, 0x20000')
    A(f's_mov_b32 s{SP0+3}, 0x20000'); A(f's_mov_b32 s{SPD+3}, 0x20000')
    P.wait(lg=0)
    sPR = ['s64', 's65']; sPP, sPD0, sPD1, sPD2, sPTYPE = 's66', 's67', 's68', 's69', 's70'
    sEXP = 's[72:73]'; kap, part = 's74', 's75'
    A(f's_mov_b32 {sPTYPE}, 0')
    A(f's_mov_b32 {sT2}, s2')
    A(f's_mov_b64 s[{SP0}:{SP0+1}], s[{PT}:{PT+1}]'); A(f's_mov_b32 s{SP0+2}, 819200')
    A(f's_mov_b64 s[{SPD}:{SPD+1}], s[{SWS}:{SWS+1}]'); A(f's_mov_b32 s{SPD+2}, {WS_END}')
    A(f's_mov_b32 {sPP}, 1280'); A(f's_mov_b32 s72, -1'); A(f's_mov_b32 s73, 0xff')
    A(f's_mov_b32 {sT4}, 20'); A(f's_mov_b32 {sT5}, {WO}')
    A('s_cmp_lt_u32 s2, 40'); A('s_cbranch_scc1 L_p0t')
    A(f's_mov_b32 {sPTYPE}, 1'); A(f's_sub_u32 {sT2}, s2, 40')
    A(f's_mov_b64 s[{SP0}:{SP0+1}], s[{PT+4}:{PT+5}]'); A(f's_mov_b32 s{SP0+2}, 1966080')
    A(f's_mov_b32 {sT4}, 48'); A(f's_mov_b32 {sT5}, {W2}')
    A('s_cmp_lt_u32 s2, 136'); A('s_cbranch_scc1 L_p0t')
    A(f's_mov_b32 {sPTYPE}, 2'); A(f's_sub_u32 {sT2}, s2, 136')
    A(f's_mov_b64 s[{SP0}:{SP0+1}], s[{PT+2}:{PT+3}]')
    A(f's_mov_b32 {sPP}, 3072'); A(f's_mov_b32 s73, 0xffff')
    A('s_cmp_lt_u32 s2, 216'); A('s_cbranch_scc1 L_p0t')
    A(f's_mov_b32 s{SP0+2}, 0'); A(f's_mov_b32 s{SPD+2}, 0')
    A('L_p0t:')
    A(f's_lshr_b32 {kap}, {sT2}, 1'); A(f's_and_b32 {part}, {sT2}, 1')
    A(f's_lshr_b32 {sT3}, {sT2}, 2'); A(f's_and_b32 s76, {sT2}, 3')
    A(f's_cmp_eq_u32 {sPTYPE}, 2'); A(f's_cselect_b32 {kap}, {sT3}, {kap}'); A(f's_cselect_b32 {part}, s76, {part}')
    A(f's_cselect_b32 s76, 6, 5'); A(f's_mul_i32 s76, s76, {part}'); A('s_lshl_b32 s76, s76, 7')
    A(f's_lshl_b32 s77, {kap}, 1'); A(f's_add_u32 s77, s77, {sW0}')
    A(f's_lshl_b32 s78, s77, 4'); A(f's_lshl_b32 s79, {sW1h}, 2'); A(f's_add_u32 {sPR[0]}, s78, s79')
    A(f's_mov_b32 {sPR[1]}, 8')
    A(f's_cmp_lg_u32 {sPTYPE}, 0'); A('s_cbranch_scc1 L_p0r')
    A('s_mul_i32 s78, s77, 205'); A('s_lshr_b32 s78, s78, 10')
    A('s_mul_i32 s80, s78, 5'); A('s_sub_u32 s77, s77, s80')
    A('s_mul_i32 s78, s78, 80')
    A('s_mul_i32 s80, s77, 20'); A('s_add_u32 s80, s80, s79')
    A(f's_mul_i32 s81, {sW1h}, 20'); A('s_add_u32 s81, s81, 16')
    A('s_cmp_lt_u32 s77, 4'); A('s_cselect_b32 s80, s80, s81'); A(f's_cselect_b32 {sPR[1]}, 8, 40'); A(f's_add_u32 {sPR[0]}, s78, s80')
    A('L_p0r:')
    A(f's_add_u32 {sPR[1]}, {sPR[1]}, {sPR[0]}')
    for e in range(2): A(f's_mul_i32 {sPR[e]}, {sPR[e]}, {sPP}'); A(f's_add_u32 {sPR[e]}, {sPR[e]}, s76')
    A(f's_mul_i32 s77, {sW}, {8*768}')
    A(f's_mov_b64 exec, {sEXP}')
    for e in range(2):
        for r in range(4):
            A(f's_add_u32 m0, s77, {PS + (4*e + r)*768}')
            if r: A(f's_add_u32 {sPR[e]}, {sPR[e]}, {sPP}')
            A(f'buffer_load_dwordx4 {v(vL16)}, {srd(SP0)}, {sPR[e]} offen {cfg.get("p0fl", "")} lds', tag='p0')
    A('s_mov_b64 exec, -1')
    stamp('issp', 2)
    A(f's_lshl_b32 {sFLOFF}, {sRB}, 7')
    A(f's_lshl_b32 {sT2}, {sM}, 4'); A(f's_lshl_b32 {sT3}, {sW}, 2'); A(f's_add_u32 {sT2}, {sT2}, {sT3}')
    A(f'v_mov_b32 {v(vFS)}, {sT2}'); A(f'v_mov_b32 {v(vFV)}, 0')
    A('s_mov_b64 exec, 1')
    A(f'buffer_store_dword {v(vFV)}, {v(vFS)}, {srd(SWS)}, {sFLOFF} offen sc1', tag='p0s')
    A('s_mov_b64 exec, -1')
    bg = wdma(2) + wdma(3) + xdma(1) + wdma(4) + wdma(5)
    for ks in range(6, 20):
        if ks in (9, 13, 17): bg += xdma((ks - 1) // 4, ks - 6)
        bg += wdma(ks, ks - 6)
    P.bg = bg; P.step = -1
    A(f's_lshl_b32 s77, {part}, 2'); A(f's_add_u32 s77, s77, {sW}')
    A(f's_mul_i32 s78, s77, {sT4}'); A(f's_add_u32 s78, s78, {kap}'); A('s_mul_i32 s78, s78, 5120'); A(f's_add_u32 {sPD0}, s78, {sT5}')
    A(f's_add_u32 {sPD1}, {sPD0}, 3072')
    A('s_mul_i32 s78, s77, 40'); A(f's_add_u32 s78, s78, {kap}'); A('s_mul_i32 s78, s78, 3072'); A(f's_add_u32 s78, s78, {W1}')
    A('s_add_u32 s79, s78, 61440')
    A(f's_cmp_eq_u32 {sPTYPE}, 2'); A(f's_cselect_b32 {sPD0}, s78, {sPD0}'); A(f's_cselect_b32 {sPD1}, s79, {sPD1}')
    A(f's_cselect_b32 {sPD2}, s79, 0x40000000')
    A('s_cselect_b64 vcc, -1, 0'); A('s_cselect_b32 s79, 24, 0')
    A('s_cselect_b32 s78, 6, 5'); A(f's_mul_i32 s78, s78, {sW}'); A('s_lshl_b32 s78, s78, 5'); A(f's_add_u32 s78, s78, {PS}')
    tick()
    vP, vS, vP2, vP3, vP4 = 192, 193, 194, 195, 220
    AT('v_lshrrev_b32 v13, 2, v0', 'v_and_b32 v15, 3, v0',
       f'v_mul_u32_u24 v16, 768, v13', f'v_add_u32 v16, s78, v16',
       f'v_lshl_add_u32 {v(vP)}, v15, 4, v16', f'v_lshl_add_u32 {v(vS)}, v15, 3, v16',
       f'v_cndmask_b32 {v(vP2)}, {v(vP)}, {v(vS)}, vcc', f'v_add_u32 {v(vP3)}, s79, {v(vP)}',
       f'v_add_u32 v16, 24, {v(vS)}', f'v_cndmask_b32 {v(vP4)}, v16, {v(vP)}, vcc',
       f's_mul_i32 {sT2}, {sW}, 40',
       f'v_mul_u32_u24 v16, 480, v13', f'v_add_u32 v16, {sT2}, v16',
       f'v_lshl_add_u32 {v(vAR[0])}, v15, 3, v16',
       f'v_mul_u32_u24 v17, 160, v15', f'v_add3_u32 v16, v16, v17, 32',
       'v_cmp_eq_u32 vcc, 3, v15', 'v_mov_b32 v17, 7680', f'v_cndmask_b32 {v(vAX[0])}, v16, v17, vcc',
       f'v_add_u32 {v(vAR[1])}, {4*SLOT}, {v(vAR[0])}', f'v_add_u32 {v(vAX[1])}, {4*SLOT}, {v(vAX[0])}',
       'v_and_b32 v16, 15, v0',
       'v_lshrrev_b32 v17, 1, v16', 'v_xor_b32 v17, v17, v14', 'v_lshlrev_b32 v17, 4, v17',
       f'v_lshl_add_u32 v17, v16, 7, v17', f'v_add_u32 {v(vB[0])}, {XB}, v17',
       'v_xor_b32 v17, 64, v17', f'v_add_u32 {v(vB[1])}, {XB}, v17',
       'v_min_u32 v17, 11, v0', f'v_mul_u32_u24 v17, {HALF}, v17',
       'v_mov_b32 v222, 0x3f80', 'v_mov_b32 v223, 0',
       'ds_write_b64 v17, v[222:223] offset:7680')
    for i in range(4): AT(f'v_mov_b32 {v(ONES+i)}, 0x3f803f80')
    AT('v_bfe_u32 v17, v0, 3, 2', 'v_mul_u32_u24 v17, 10240, v17', 'v_and_b32 v18, 7, v0',
       f'v_lshl_add_u32 v17, v18, 4, v17', f'v_add_u32 v17, {XB}, v17',
       f'ds_write_b128 v17, {v(ONES,4)}')
    BP, BC, BP1 = 228, 232, 236
    AT('v_lshlrev_b32 v17, 2, v14', 'v_sub_u32 v17, v16, v17', 'v_mov_b32 v222, 0xf149f2ca')
    for r in range(4):
        for (dst, add) in ((BC, -r), (BP, 16 - r)):
            AT(f'v_add_u32 v18, {add}, v17', 'v_and_b32 v18, 0xfffffff1, v18',
               'v_cmp_eq_u32 vcc, 0, v18', f'v_cndmask_b32 {v(dst+r)}, v222, 0, vcc')
    A(f's_cmp_eq_u32 {sRB}, 0'); A('s_cselect_b64 vcc, -1, 0')
    for r in range(4): AT(f'v_cndmask_b32 {v(BP1+r)}, {v(BP+r)}, v222, vcc')
    AT(f's_lshl_b32 {sW10}, {sW}, 10',
       f's_mul_i32 {sWOS}, {sM}, 102400', f's_add_u32 {sWOS}, {sWOS}, {sW10}', f's_add_u32 {sWOS}, {sWOS}, {WO}',
       f's_lshl_b32 {sT2}, {sM}, 2', f's_add_u32 {sT2}, {sT2}, {sW}',
       f's_mul_i32 {sW1S}, {sT2}, 61440', f's_add_u32 {sW1S}, {sW1S}, {W1}',
       f's_getreg_b32 {sXCC}, hwreg(HW_REG_XCC_ID)', f's_and_b32 {sXCC}, {sXCC}, 7', f's_or_b32 {sXCC}, {sXCC}, 0x80')
    flush(cfg.get('pro', 8))
    stamp('issued')

    def frag_reads(ks):
        b = ks & 1; sl = ks % NSLOT; st = sl // 4; so = (sl % 4) * SLOT
        S = ks // 4; xo = (S % 2) * XS + ((ks >> 1) & 1) * 10240
        L = []
        L.append(f'ds_read_b128 {v(FB[b],4)}, {v(vB[ks&1])} offset:{xo}')
        for F in range(4):
            for jj in range(2):
                if F < 3: L.append(f'ds_read_b64_tr_b16 {v(FA[b]+4*F+2*jj,2)}, {v(vAR[st])} offset:{so + jj*HALF + F*160}')
                else: L.append(f'ds_read_b64_tr_b16 {v(FA[b]+4*F+2*jj,2)}, {v(vAX[st])} offset:{so + jj*HALF}')
        for T in range(1, 5): L.append(f'ds_read_b128 {v(FB[b]+4*T,4)}, {v(vB[ks&1])} offset:{xo + T*2048}')
        return L
    SP = cfg.get('sp', 1); SA = cfg.get('sa', 6); SC = cfg.get('sc', 14)
    groups = [(PS + i*4096, SC) for i in range(7)]
    g2 = [(2*SLOT + i*4096, max(SC, 14 + ((i+1)*4096 - 1)//SLOT)) for i in range(13)]
    g3 = [(XB + XS + i*4096, max(SC, 15)) for i in range(5)]
    groups = groups + sorted(g2 + g3, key=lambda x: x[1])
    wo_loc = lambda f: groups[f // 4][0] + (f % 4) * 1024
    def wo_items():
        return [dict(ins=[f's_add_u32 m0, {sW10}, {groups[gi][0]}', f's_add_u32 {sBG}, {sWOS}, {gi*4096}',
                          (f'buffer_load_dwordx4 {v(vL16)}, {srd(SWS)}, {sBG} offen sc1 lds', 'wo')], avail=groups[gi][1], gap=GAP) for gi in range(25)]
    def ld_items(regf, sbase, tagp, lo, hi, avail=-1, gap=GAP):
        L = []
        for f in range(lo, hi):
            ins = [f's_add_u32 {sBG}, {sbase}, {(f//4)*4096}'] if (f % 4 == 0 or f == lo) else []
            ins.append((f'buffer_load_dwordx4 {regf(f)}, {v(vL16)}, {srd(SWS)}, {sBG} offen offset:{(f%4)*1024} sc1', f'{tagp}{f}'))
            L.append(dict(ins=ins, avail=avail, gap=gap, solo=(f % 4 == 0 or f == lo)))
        return L
    w1reg = lambda f: a(4*f, 4)

    P.wait(vm=['x0', 'w0'], lg=0); A('s_barrier')
    stamp('first')
    for s in frag_reads(0): A(s)
    TB = 196
    for ks in range(20):
        tags = []
        if ks + 1 < 20: tags = [f'w{ks+1}', f'x{(ks+1)//4}']
        while any(any(isinstance(x, tuple) and x[1] in tags for x in it['ins']) for it in P.bg):
            assert tick(force=True), ks
        if ks == SP: tags.append('p0')
        if ks == SA: tags.append('p0s')
        P.wait(vm=tags, lg=0); A('s_barrier')
        P.step = ks
        stamp(f'k{ks}', 1 if ks % 4 == 0 or ks == 19 else 2)
        fill = list(frag_reads(ks + 1)) if ks + 1 < 20 else []
        if ks == SP:
            for j, (vr, off) in enumerate([(vP, 0), (vP, 8), (vP2, 64), (vP3, 72), (vP4, 104), (vS, 160)]):
                for jj in range(2): fill.append(f'ds_read_b64_tr_b16 {v(TB+4*j+2*jj,2)}, {v(vr)} offset:{off + jj*12288}')
        if ks == SP + 1:
            st = [dict(ins=[(f'buffer_store_dwordx4 {v(TB+4*j,4)}, {v(vL16)}, {srd(SPD)}, {(sPD0, sPD0, sPD0, sPD1, sPD1, sPD2)[j]} offen offset:{(j%3)*1024} sc1', 'p0s')], gap=GAP) for j in range(6)]
            inter = cfg.get('p0i', 1)
            nb = []
            for j in range(6):
                nb.append(st[j]); nb += P.bg[:inter]; P.bg = P.bg[inter:]
            P.bg = nb + P.bg
        if ks == SA:
            assert not any(any(isinstance(x, tuple) and x[1] == 'p0s' for x in it['ins']) for it in P.bg)
            A(f's_cmp_lg_u32 {sW}, 0'); A('s_cbranch_scc1 L_arr')
            A(f's_and_b32 {sT2}, {sM}, 3'); A(f's_lshl_b32 {sT2}, {sT2}, 3'); A(f's_lshl_b32 {sT2}, {sXCC}, {sT2}')
            A(f's_lshl_b32 {sT3}, {sRB}, 3'); A(f's_and_b32 {sT4}, {sM}, 4'); A(f's_add_u32 {sT3}, {sT3}, {sT4}')
            A(f'v_mov_b32 v13, {sT2}'); A(f'v_mov_b32 v15, {sT3}')
            A('s_mov_b64 exec, 1')
            P.track = False
            A(f'buffer_atomic_or v13, v15, {srd(SDBG)}, 0 offen sc1 ; nocheck')
            P.track = True
            A('s_mov_b64 exec, -1')
            A('L_arr:')
        if ks == SC - 1:
            A('v_lshlrev_b32 v17, 2, v0')
            A(f'buffer_load_dword v18, v17, {srd(SDBG)}, 0 offen sc1', tag='dbg')
        if ks == SC:
            A(f's_mov_b32 {sCNT}, 0'); A(f's_mov_b32 {sT2}, 0x80808080')
            P.wait(vm='dbg')
            A('L_dbg:')
            A(f'v_and_b32 v13, {sT2}, v18'); A(f'v_cmp_ne_u32 vcc, {sT2}, v13')
            A('s_cbranch_vccz L_dbgok')
            P.track = False
            A(f'buffer_load_dword v18, v17, {srd(SDBG)}, 0 offen sc1 ; nocheck')
            A(f's_add_u32 {sCNT}, {sCNT}, 1'); A(f's_cmp_gt_u32 {sCNT}, {SPIN}'); A('s_cbranch_scc1 L_end')
            A('s_waitcnt vmcnt(0) ; nocheck'); A('s_branch L_dbg')
            P.track = True
            A('L_dbgok:')
            A(f's_mul_i32 {sT2}, {sXCC}, 0x01010101'); A(f's_lshl_b32 {sT3}, {sRB}, 1')
            A(f'v_cmp_ne_u32 vcc, {sT2}, v18')
            A(f's_lshr_b64 vcc, vcc, {sT3}'); A(f's_and_b32 {sFAST}, vcc_lo, 3')
            if cfg.get('slow'): A(f's_mov_b32 {sFAST}, 1')
            P.bg += wo_items()
            xr = ['v_and_b32 v13, 15, v0', 'v_mul_u32_u24 v13, 1280, v13',
                  'v_lshl_add_u32 v15, v14, 4, v13', 'v_lshl_add_u32 v13, v14, 3, v13',
                  f's_mul_i32 {sT2}, {sW}, {16*1280}', f's_add_u32 {sT2}, {sT2}, {sXT[1]}', f's_mul_i32 {sT3}, {sM}, 160', f's_add_u32 {sXT[1]}, {sT2}, {sT3}',
                  (f'buffer_load_dwordx4 {v(XR,4)}, v15, {srd(SX)}, {sXT[1]} offen', 'xr'),
                  (f'buffer_load_dwordx4 {v(XR+4,4)}, v15, {srd(SX)}, {sXT[1]} offen offset:64', 'xr'),
                  (f'buffer_load_dwordx2 {v(XR+8,2)}, v13, {srd(SX)}, {sXT[1]} offen offset:128', 'xr')]
            P.bg.insert(len(P.bg) - 18, dict(ins=xr, gap=3*GAP, must=19))
            P.bg += ld_items(w1reg, sW1S, 'w1_', 0, 60)
            fill += [f's_mul_i32 {sOBASE}, {sRB}, {4*20480}', f's_add_u32 {sOBASE}, {sOBASE}, {OB}',
                     f's_mul_i32 {sHBASE}, {sRB}, {4*21504}', f's_add_u32 {sHBASE}, {sHBASE}, {HB}',
                     f's_mul_i32 {sH1BASE}, {sRB}, {4*49152}', f's_add_u32 {sH1BASE}, {sH1BASE}, {H1B}',
                     f's_add_u32 {sW2S}, {sW1S}, {W2 - W1}',
                     's_mov_b32 s68, 0x22222222', 's_mov_b32 s69, 0x22222222', 's_mov_b32 s70, 0x88888888', 's_mov_b32 s71, 0x88888888',
                     's_mov_b32 s72, 0xcccccccc', 's_mov_b32 s73, 0xcccccccc']
        b = ks & 1
        mf = []
        for T in range(5):
            for F in range(4):
                c = '0' if ks == 0 else v(acc(F, T), 4)
                mf.append(f'{MF} {v(acc(F,T),4)}, {v(FA[b]+4*F,4)}, {v(FB[b]+4*T,4)}, {c}')
            c = '0' if ks == 0 else v(GR + 4*T, 4)
            mf.append(f'{MF} {v(GR+4*T,4)}, {v(FB[b]+4*T,4)}, {v(FB[b]+4*T,4)}, {c}')
        for i, m in enumerate(mf):
            A(m)
            if not tick():
                for _ in range(2 if len(fill) > 24 - i else 1):
                    if fill: A(fill.pop(0))
        for s in fill: A(s)
    assert not any('must' in it for it in P.bg)
    P.step = 100

    stamp('gemm_end')
    P.scale = cfg.get('ascale', 1.5)
    CS = 20; NM = 36; RS = 42; RQ = 48; RX = 86
    KXV = 56; QF = 192; VT0 = 208; VT1 = 218
    sc = (20 ** -0.5) * math.log2(math.e)
    AT('v_lshrrev_b32 v13, 2, v16', 'v_lshl_add_u32 v13, v13, 4, v16', 'v_lshlrev_b32 v13, 2, v13',
       'v_add_lshl_u32 v15, v16, 48, 2',
       f'v_mov_b32 v17, 1.0', f'v_mov_b32 v18, {f2u(sc):#x}', 'v_mov_b32 v2, 0',
       'v_mov_b32_dpp v17, v18 quad_perm:[0,1,2,3] row_mask:0x1 bank_mask:0xf',
       'v_mov_b32_dpp v17, v2 quad_perm:[0,1,2,3] row_mask:0x8 bank_mask:0xf')
    for T in range(5):
        g = GR + 4*T
        A(f'ds_bpermute_b32 {v(NM+T)}, v15, {v(acc(3,T))}', tag='st')
        AT(f'v_cndmask_b32 {v(g)}, {v(g)}, {v(g+1)}, {sM1}', f'v_cndmask_b32 {v(g+2)}, {v(g+2)}, {v(g+3)}, {sM3}',
           f'v_cndmask_b32 {v(g)}, {v(g)}, {v(g+2)}, {sM23}')
        A(f'ds_bpermute_b32 {v(RS+T)}, v13, {v(g)}', tag='st')
    for F in range(4):
        for r in range(4): AT(f'v_mov_b32_dpp {v(CS+4*F+r)}, {v(acc(F,0)+r)} row_newbcast:0 row_mask:0xf bank_mask:0xf')
    AT(f's_mul_i32 {sT2}, {sW}, 5120', f's_add_u32 {sT2}, {sT2}, {XB}',
       'v_lshlrev_b32 v2, 6, v16', 'v_lshl_add_u32 v2, v14, 4, v2', f'v_add_u32 v2, {sT2}, v2',
       'v_lshrrev_b32 v3, 2, v0', 'v_lshlrev_b32 v3, 6, v3', f'v_add_u32 v3, {sT2}, v3',
       'v_and_b32 v4, 3, v0', 'v_lshl_add_u32 v4, v4, 4, v3')
    P.wait(lg='st')
    for T in range(5): AT(f'v_mul_f32 {v(NM+T)}, {f2u(-1.0/640):#x}, {v(NM+T)}')
    for T in range(5): AT(f'v_mul_f32 {v(RS+T)}, {f2u(1.0/640):#x}, {v(RS+T)}')
    for T in range(5): AT(f'v_fma_f32 {v(RS+T)}, -{v(NM+T)}, {v(NM+T)}, {v(RS+T)}')
    for T in range(5): AT(f'v_max_f32 {v(RS+T)}, 0, {v(RS+T)}')
    for T in range(5): AT(f'v_add_f32 {v(RS+T)}, {f2u(1e-5):#x}, {v(RS+T)}')
    for T in range(5): AT(f'v_rsq_f32 {v(RS+T)}, {v(RS+T)}')
    for T in range(1, 5): AT(f'v_mul_f32 {v(RQ+T)}, {f2u(sc):#x}, {v(RS+T)}')
    for T in range(5): AT(f'v_mul_f32 {v(RX+T)}, v17, {v(RS+T)}')
    for T in range(5):
        for F in ((1, 3, 2) if T == 0 else (1, 3, 2, 0)):
            nm, s1 = pk_bc(NM + T)
            rs, s2 = pk_bc({0: RQ, 1: RS, 2: RS, 3: RX}[F] + T)
            ac = acc(F, T)
            for h in range(2):
                AT(f'v_pk_fma_f32 {v(ac+2*h,2)}, {v(CS+4*F+2*h,2)}, {nm}, {v(ac+2*h,2)} op_sel:[0,{s1},0] op_sel_hi:[1,{s1},1]')
            for h in range(2):
                AT(f'v_pk_mul_f32 {v(ac+2*h,2)}, {v(ac+2*h,2)}, {rs} op_sel:[0,{s2}] op_sel_hi:[1,{s2}]')
            dst = {1: KXV + 6*T, 3: KXV + 6*T + 2, 2: KXV + 6*T + 4, 0: QF + 4*(T-1)}[F]
            for h in range(2): AT(f'v_cvt_pk_bf16_f32 {v(dst+h)}, {v(ac+2*h)}, {v(ac+2*h+1)}')
        A(f'ds_write_b128 v2, {v(KXV+6*T+2,4)} offset:{T*1024}', tag='vw')
        if T:
            for h in range(2): AT(f'v_mov_b32 {v(QF+4*(T-1)+2+h)}, 0')
    for T in range(1, 5):
        for h in range(2): AT(f'v_permlane16_swap_b32 {v(QF+4*(T-1)+2+h)}, {v(KXV+6*T+2+h)}')
    SS = ACC; MX = ACC + 32; PF = ACC + 40
    for i in range(4):
        AT(f'{MF} {v(SS+8*i,4)}, {v(KXV+6*i,4)}, {v(QF+4*i,4)}, {v(BP1 if i == 0 else BP,4)}',
           f'{MF} {v(SS+8*i+4,4)}, {v(KXV+6*(i+1),4)}, {v(QF+4*i,4)}, {v(BC,4)}')
    for T in range(5):
        A(f'ds_read_b64_tr_b16 {v(VT0+2*T,2)}, v4 offset:{T*1024+8}', tag='vt')
        A(f'ds_read_b64_tr_b16 {v(VT1+2*T,2)}, v3 offset:{T*1024+32}', tag='vt')
    for i in range(4):
        s = SS + 8*i; m = MX + 2*i
        AT(f'v_max3_f32 {v(m)}, {v(s)}, {v(s+1)}, {v(s+2)}', f'v_max3_f32 {v(m+1)}, {v(s+3)}, {v(s+4)}, {v(s+5)}',
           f'v_max3_f32 {v(m)}, {v(m)}, {v(s+6)}, {v(s+7)}', f'v_max_f32 {v(m)}, {v(m)}, {v(m+1)}')
    for sw in ('v_permlane16_swap_b32', 'v_permlane32_swap_b32'):
        for i in range(4): AT(f'v_mov_b32 {v(MX+2*i+1)}, {v(MX+2*i)}')
        for i in range(4): AT(f'{sw} {v(MX+2*i)}, {v(MX+2*i+1)}')
        for i in range(4): AT(f'v_max_f32 {v(MX+2*i)}, {v(MX+2*i)}, {v(MX+2*i+1)}')
    O0 = 148; O1 = 164; SM = 20
    P.wait(lg='vt')
    for i in range(4):
        s = SS + 8*i
        for h in range(4): AT(f'v_pk_add_f32 {v(s+2*h,2)}, {v(s+2*h,2)}, {v(MX+2*i,2)} op_sel:[0,0] op_sel_hi:[1,0] neg_lo:[0,1] neg_hi:[0,1]')
        for h in range(8): AT(f'v_exp_f32 {v(s+h)}, {v(s+h)}')
        for h in range(4): AT(f'v_cvt_pk_bf16_f32 {v(PF+4*i+h)}, {v(s+2*h)}, {v(s+2*h+1)}')
        if i == 3:
            AT('v_and_b32 v13, 1, v14', 'v_mul_u32_u24 v13, 20480, v13')
        if i > 0:
            pass
    nobg = cfg.get('quiet1', 0)
    for i in range(4):
        A(f'{MF} {v(SM+4*i,4)}, {v(ONES,4)}, {v(PF+4*i,4)}, 0')
        A(f'{MF} {v(O0+4*i,4)}, {v(VT0+2*i,4)}, {v(PF+4*i,4)}, 0')
        A(f'{MF} {v(O1+4*i,4)}, {v(VT1+2*i,4)}, {v(PF+4*i,4)}, 0')
    AQ = (lambda *x: [A(y) for y in x]) if nobg else AT
    AQ('v_lshrrev_b32 v15, 1, v14', 'v_lshl_add_u32 v13, v15, 8, v13', 'v_lshl_add_u32 v13, v16, 4, v13',
       'v_mul_u32_u24 v15, 20480, v14', 'v_lshl_add_u32 v15, v16, 4, v15',
       f's_mul_i32 {sT2}, {sM}, 2560', f's_add_u32 {sT2}, {sT2}, {sOBASE}',
       f's_lshl_b32 {sT3}, {sW}, 9', f's_add_u32 {sT3}, {sT3}, {sT2}', f's_add_u32 {sT4}, {sT3}, 40960',
       f's_lshl_b32 {sT5}, {sW1h}, 8', f's_add_u32 {sT2}, {sT2}, {sT5}', f's_lshl_b32 {sT5}, {sW0}, 3', f's_add_u32 {sT2}, {sT2}, {sT5}')
    for i in range(4): AQ(f'v_rcp_f32 {v(SM+4*i)}, {v(SM+4*i)}')
    OP = 36; OL = 44
    for i in range(4):
        for h in range(2): AQ(f'v_pk_mul_f32 {v(O0+4*i+2*h,2)}, {v(O0+4*i+2*h,2)}, {v(SM+4*i,2)} op_sel:[0,0] op_sel_hi:[1,0]')
        for h in range(2): AQ(f'v_pk_mul_f32 {v(O1+4*i+2*h,2)}, {v(O1+4*i+2*h,2)}, {v(SM+4*i,2)} op_sel:[0,0] op_sel_hi:[1,0]')
        for h in range(2): AQ(f'v_cvt_pk_bf16_f32 {v(OP+2*i+h)}, {v(O0+4*i+2*h)}, {v(O0+4*i+2*h+1)}')
        for h in range(2): AQ(f'v_cvt_pk_bf16_f32 {v(OL+2*i+h)}, {v(O1+4*i+2*h)}, {v(O1+4*i+2*h+1)}')
    for pr in range(2):
        for h in range(2): A(f'v_permlane16_swap_b32 {v(OP+4*pr+h)}, {v(OP+4*pr+2+h)}')
    for i in range(1, 4):
        for h in range(2): A(f'v_mov_b32_dpp {v(OL+h)}, {v(OL+2*i+h)} quad_perm:[0,1,2,3] row_mask:{1<<i:#x} bank_mask:0xf')

    def publish(stores, tag='pub'):
        l1, l2 = P.lab('L_sl'), P.lab('L_j')
        A(f's_cmp_lg_u32 {sFAST}, 0'); A(f's_cbranch_scc1 {l1}')
        for s in stores: A(s, tag=tag)
        A(f's_branch {l2}'); A(f'{l1}:')
        P.track = False
        for s in stores: A(s + ' sc1 ; nocheck')
        P.track = True
        A(f'{l2}:')
        P.lastbg = P.t; P.gap = GAP * len(stores) // 2
    def setflag(val, tag='pub'):
        l1, l2 = P.lab('L_sl'), P.lab('L_j')
        A(f'v_mov_b32 {v(vFV)}, {val}')
        P.wait(vm=tag)
        A('s_mov_b64 exec, 1')
        A(f's_cmp_lg_u32 {sFAST}, 0'); A(f's_cbranch_scc1 {l1}')
        A(f'buffer_store_dword {v(vFV)}, {v(vFS)}, {srd(SWS)}, {sFLOFF} offen')
        A(f's_branch {l2}'); A(f'{l1}:')
        P.track = False
        A(f'buffer_store_dword {v(vFV)}, {v(vFS)}, {srd(SWS)}, {sFLOFF} offen sc1 ; nocheck')
        P.track = True
        A(f'{l2}:')
        A('s_mov_b64 exec, -1')
    vPT = 5
    def poll_issue(vaddr):
        A(f'buffer_load_dword {v(vPT)}, {v(vaddr)}, {srd(SWS)}, {sFLOFF} offen sc1', tag='poll')
    def poll_check(vaddr, val):
        l1, l2 = P.lab('L_poll'), P.lab('L_ok')
        P.wait(vm='poll')
        A(f's_mov_b32 {sCNT}, 0')
        A(f'{l1}:')
        A(f'v_cmp_gt_u32 vcc, {val}, {v(vPT)}')
        A(f's_cbranch_vccz {l2}')
        P.track = False
        A(f'buffer_load_dword {v(vPT)}, {v(vaddr)}, {srd(SWS)}, {sFLOFF} offen sc1 ; nocheck')
        A(f's_add_u32 {sCNT}, {sCNT}, 1'); A(f's_cmp_gt_u32 {sCNT}, {SPIN}'); A('s_cbranch_scc1 L_end')
        A('s_waitcnt vmcnt(0) ; nocheck'); A(f's_branch {l1}')
        P.track = True
        A(f'{l2}:')

    stamp('attn_end')
    P.scale = 1.0
    assert not any(any(isinstance(x, tuple) and x[1] in ('wo', 'xr') for x in it['ins']) for it in P.bg)
    publish([f'buffer_store_dwordx4 {v(OP,4)}, v13, {srd(SWS)}, {sT3} offen',
             f'buffer_store_dwordx4 {v(OP+4,4)}, v13, {srd(SWS)}, {sT4} offen',
             f'buffer_store_dwordx2 {v(OL,2)}, v15, {srd(SWS)}, {sT2} offen offset:2048'])
    vPA = 2; vLB = [1, 3, 4]
    BF = 92; AC2 = 172; AR = 20; NAR = 18
    flush(cfg.get('f1', 10))
    A(f'v_and_b32 {v(vPA)}, 31, v0'); A(f'v_lshlrev_b32 {v(vPA)}, 2, {v(vPA)}')
    A(f'v_add_u32 v3, 65536, v1'); A(f'v_add_u32 v4, 131072, v1')
    P.wait(vm='xr')
    for j in range(5):
        for r in range(4):
            src = XR + (4*(j >> 1) + 2*(j & 1) + (r >> 1) if j < 4 else 8 + (r >> 1))
            if r & 1: A(f'v_and_b32 {v(AC2+4*j+r)}, 0xffff0000, {v(src)}')
            else: A(f'v_lshlrev_b32 {v(AC2+4*j+r)}, 16, {v(src)}')
    setflag(1)
    stamp('flag1')
    if stop == 1: return finish(P)
    flush(cfg.get('f2', 10))
    poll_issue(vPA)
    A('s_barrier')
    def wo_read(f):
        loc = wo_loc(f)
        return f'ds_read_b128 {v(AR+4*(f%NAR),4)}, {v(vLB[loc>>16])} offset:{loc & 0xffff}'
    for f in range(15): A(wo_read(f), tag=f'a{f}')
    A(f's_mul_i32 {sA}, {sW}, 20480'); A(f's_add_u32 {sA}, {sA}, {sOBASE}')
    poll_check(vPA, 1)
    stamp('poll1')
    def fix_solo():
        pass
    rest = P.bg
    if rest and not rest[0].get('solo'):
        f0 = int(rest[0]['ins'][-1][1].split('_')[1])
        rest[0]['ins'].insert(0, f's_add_u32 {sBG}, {sW1S}, {(f0//4)*4096}')
    P.bg = ld_items(lambda k: v(BF + 4*k, 4), sA, 'o', 0, 20) + rest
    flush(cfg.get('f3', 9))
    for k in range(20):
        while any(it['ins'][-1][1] == f'o{k}' for it in P.bg): tick(force=True)
        for j in range(5):
            f = 5*k + j
            P.wait(vm=f'o{k}' if j == 0 else None, lg=f'a{f}')
            A(f'{MF} {v(AC2+4*j,4)}, {v(AR+4*(f%NAR),4)}, {v(BF+4*k,4)}, {v(AC2+4*j,4)}')
            if f + 15 < 100: A(wo_read(f + 15), tag=f'a{f+15}')
            if k < cfg.get('quiet2', 20): tick()
    stamp('p2_mfma')
    HP = XR
    vHS, vT8 = 6, 7
    A(f'v_lshrrev_b32 {v(vHS)}, 5, v0'); A(f'v_lshlrev_b32 {v(vHS)}, 8, {v(vHS)}'); A(f'v_lshl_add_u32 {v(vHS)}, v16, 4, {v(vHS)}')
    A(f'v_lshlrev_b32 {v(vT8)}, 3, v16')
    A(f's_mul_i32 {sT2}, {sW}, 21504'); A(f's_add_u32 {sT2}, {sT2}, {sHBASE}')
    A(f's_mul_i32 {sT3}, {sM}, 2560'); A(f's_add_u32 {sT3}, {sT3}, {sT2}')
    A(f's_lshl_b32 {sT4}, {sM}, 7'); A(f's_add_u32 {sT4}, {sT4}, {sT2}'); A(f's_add_u32 {sT4}, {sT4}, 20480')
    for j in range(5):
        for h in range(2): A(f'v_cvt_pk_bf16_f32 {v(HP+2*j+h)}, {v(AC2+4*j+2*h)}, {v(AC2+4*j+2*h+1)}')
    for h in range(2): A(f'v_mov_b32 {v(24+h)}, {v(HP+8+h)}'); A(f'v_mov_b32 {v(26+h)}, {v(HP+8+h)}')
    for h in range(2): A(f'v_permlane16_swap_b32 {v(24+h)}, {v(26+h)}')
    publish([f'buffer_store_dwordx4 {v(HP,4)}, {v(vL16)}, {srd(SWS)}, {sT3} offen',
             f'buffer_store_dwordx4 {v(HP+4,4)}, {v(vL16)}, {srd(SWS)}, {sT3} offen offset:1024',
             f'buffer_store_dwordx4 v[24:27], {v(vHS)}, {srd(SWS)}, {sT3} offen offset:2048'])
    for i in range(10):
        A(f'v_dot2_f32_bf16 v20, {v(HP+i)}, {v(ONES)}, {"v20" if i else 0}'); A(f'v_dot2_f32_bf16 v21, {v(HP+i)}, {v(HP+i)}, {"v21" if i else 0}')
    for sw in ('v_permlane16_swap_b32', 'v_permlane32_swap_b32'):
        for h in range(2): A(f'v_mov_b32 {v(22+h)}, {v(20+h)}')
        for h in range(2): A(f'{sw} {v(20+h)}, {v(22+h)}')
        for h in range(2): A(f'v_add_f32 {v(20+h)}, {v(20+h)}, {v(22+h)}')
    publish([f'buffer_store_dwordx2 v[20:21], {v(vT8)}, {srd(SWS)}, {sT4} offen'])

    CS1 = 28; B1F = 40; AC3 = [52, 64]; BR = 76; NBR = 6
    W2V = 100; NW2V = 35
    NA0 = 4
    def w2reg(f):
        if f < NW2V: return v(W2V + 4*f, 4)
        if f < NW2V + NA0: return a(240 + 4*(f - NW2V), 4)
        return a(4*(f - NW2V - NA0), 4)
    NPRE = NW2V + NA0
    P.bg += [dict(ins=['v_lshlrev_b32 v13, 4, v14', 'v_lshlrev_b32 v15, 3, v14',
                       f's_mul_i32 {sB}, {sM}, 384', f's_mul_i32 {sC}, {sW}, 96', f's_add_u32 {sB}, {sB}, {sC}',
                       (f'buffer_load_dwordx4 {v(AC3[1],4)}, v13, {srd(SB1)}, {sB} offen', 'b1'),
                       (f'buffer_load_dwordx2 {v(AC3[1]+4,2)}, v15, {srd(SB1)}, {sB} offen offset:64', 'b1')], gap=GAP, solo=True)]
    P.bg += ld_items(w2reg, sW2S, 'w2_', 0, NPRE)
    cs_next = [0]
    def colsum(n):
        for _ in range(n):
            f = cs_next[0]
            if f >= 60: return
            while any(it['ins'][-1][1] == f'w1_{f}' for it in P.bg): tick(force=True)
            P.wait(vm=f'w1_{f}')
            j = f % 3
            A(f'{MF} {v(CS1+4*j,4)}, {w1reg(f)}, {v(ONES,4)}, {"0" if f < 3 else v(CS1+4*j,4)}'); tick()
            cs_next[0] += 1
    flush(cfg.get('f6', 6))
    colsum(cfg.get('c1', 24))
    setflag(2)
    stamp('flag2')
    if stop == 2: return finish(P)
    flush(cfg.get('f7', 6))
    colsum(cfg.get('c2', 16))
    poll_issue(vPA)
    A('s_barrier')
    A(f's_mul_i32 {sT2}, {sW}, 21504'); A(f's_add_u32 {sT3}, {sT2}, {sHBASE}'); A(f's_add_u32 {sT3}, {sT3}, 20480')
    A(f's_mul_i32 {sA}, {sW}, 5120'); A(f's_add_u32 {sD}, {sA}, {sHBASE}')
    vST = 8
    A(f'v_lshlrev_b32 {v(vST)}, 8, v14'); A(f'v_add_u32 {v(vST)}, {v(vST)}, {v(vT8)}'); A(f'v_add_u32 {v(vST)}, 20480, {v(vST)}')
    A(f's_add_u32 m0, {sT2}, 20480')
    poll_check(vPA, 2)
    stamp('poll2')
    A(f'buffer_load_dwordx4 {v(vL16)}, {srd(SWS)}, {sT3} offen sc1 lds', tag='h0')
    hit = []
    for T in range(4):
        for i in range(5):
            ins = []
            if i in (0, 4): ins = [f's_add_u32 m0, {sA}, {T*21504 + i*1024}', f's_add_u32 {sT3}, {sD}, {T*21504 + i*1024}']
            ins.append((f'buffer_load_dwordx4 {v(vL16)}, {srd(SWS)}, {sT3} offen offset:{(i%4)*1024} sc1 lds', f'h{T}'))
            hit.append(dict(ins=ins, gap=GAP))
    P.bg = hit + P.bg
    flush(cfg.get('f4', 10))
    colsum(60)
    A(f's_mul_i32 {sT2}, {sM}, 6144'); A(f's_mul_i32 {sT5}, {sW}, 1536'); A(f's_add_u32 {sT2}, {sT2}, {sT5}'); A(f's_add_u32 {sT5}, {sT2}, {sH1BASE}')
    def h_read(n):
        loc = (n // 20)*21504 + (n % 20)*1024
        return f'ds_read_b128 {v(BR+4*(n%NBR),4)}, {v(vLB[loc>>16])} offset:{loc & 0xffff}'
    def epi3(T):
        ac = AC3[T & 1]; L = []
        L.append((f'ds_read_b64 v[20:21], {v(vST)} offset:{T*21504}', 'st'))
        L.append((f'ds_read_b64 v[22:23], {v(vST)} offset:{T*21504+128}', 'st'))
        L.append(None); L.append(None); L.append(None); L.append(None)
        L.append(lambda: P.wait(lg='st'))
        for h in range(2): L.append(f'v_add_f32 {v(20+h)}, {v(20+h)}, {v(22+h)}')
        for sw in ('v_permlane16_swap_b32', 'v_permlane32_swap_b32'):
            for h in range(2): L.append(f'v_mov_b32 {v(22+h)}, {v(20+h)}')
            for h in range(2): L.append(f'{sw} {v(20+h)}, {v(22+h)}')
            for h in range(2): L.append(f'v_add_f32 {v(20+h)}, {v(20+h)}, {v(22+h)}')
        L += [f'v_mul_f32 v20, {f2u(-1.0/640):#x}, v20', f'v_mul_f32 v21, {f2u(1.0/640):#x}, v21', 'v_fma_f32 v21, -v20, v20, v21',
              'v_max_f32 v21, 0, v21', f'v_add_f32 v21, {f2u(1e-5):#x}, v21', 'v_rsq_f32 v21, v21']
        split = len(L)
        for i in range(12): L.append(f'v_fma_f32 {v(ac+i)}, v20, {v(CS1+i)}, {v(ac+i)}')
        for i in range(12): L.append(f'v_fma_f32 {v(ac+i)}, {v(ac+i)}, v21, {v(B1F+i)}')
        for i in range(12): L.append(f'v_max_f32 {v(ac+i)}, 0, {v(ac+i)}')
        for i in range(12): L.append(f'v_mul_f32 {v(ac+i)}, {v(ac+i)}, {v(ac+i)}')
        for i in range(4): L.append(f'v_cvt_pk_bf16_f32 {v(20+i)}, {v(ac+2*i)}, {v(ac+2*i+1)}')
        for i in range(2):
            L.append(f'v_cvt_pk_bf16_f32 {v(24+i)}, {v(ac+8+2*i)}, {v(ac+8+2*i+1)}')
            L.append(f'v_cvt_pk_bf16_f32 {v(26+i)}, {v(ac+8+2*i)}, {v(ac+8+2*i+1)}')
        for h in range(2): L.append(f'v_permlane16_swap_b32 {v(24+h)}, {v(26+h)}')
        def pub():
            A(f's_add_u32 {sT4}, {sT5}, {T*49152}')
            publish([f'buffer_store_dwordx4 v[20:23], {v(vL16)}, {srd(SWS)}, {sT4} offen',
                     f'buffer_store_dwordx4 v[24:27], {v(vHS)}, {srd(SWS)}, {sT4} offen offset:1024'], tag=f'pub{T}')
        L.append(pub)
        return L[:split], L[split:]
    def emit_item(it):
        if it is None: return
        if callable(it): it()
        elif isinstance(it, tuple): A(it[0], tag=it[1])
        else: A(it)
    def drain_tag(tag):
        while any(it['ins'][-1][1] == tag for it in P.bg): tick(force=True)
    PRE = 4
    drain_tag('h0'); P.wait(vm='h0'); A('s_barrier')
    stamp('p3_t0')
    for n in range(PRE): A(h_read(n), tag=f'b{n}')
    BB = [84, 132, 180]
    vP4a = 9; vRW = 10
    b1u = [lambda: (drain_tag('b1'), P.wait(vm='b1'))]
    for j in range(3):
        for r in range(4):
            src = AC3[1] + 2*j + (r >> 1)
            b1u.append(f'v_and_b32 {v(B1F+4*j+r)}, 0xffff0000, {v(src)}' if r & 1 else f'v_lshlrev_b32 {v(B1F+4*j+r)}, 16, {v(src)}')
    p4c = [f'v_and_b32 {v(vP4a)}, 7, v0', f'v_lshlrev_b32 {v(vP4a)}, 2, {v(vP4a)}', f's_lshl_b32 {sT2}, {sW}, 5', f'v_add_u32 {v(vP4a)}, {sT2}, {v(vP4a)}',
           f's_mul_i32 {sB}, {sW}, 12288', f's_add_u32 {sB}, {sB}, {sH1BASE}',
           f's_mul_i32 {sT2}, {sW}, 5120', f'v_add_u32 {v(vRW)}, {sT2}, v1', f'v_add_u32 v12, 40960, {v(vRW)}',
           f's_mul_i32 {sT2}, {sW}, 20480', f'v_add_u32 v11, {sT2}, v1']
    pend = [None]*40 + b1u + p4c + epi3(0)[0]
    FD = cfg.get('fd', 12)
    for T in range(4):
        ac = AC3[T & 1]
        for k in range(20):
            n = 20*T + k
            if k == 20 - PRE and T < 3:
                drain_tag(f'h{T+1}'); P.wait(vm=f'h{T+1}'); A('s_barrier')
            if k == cfg.get('fk', 4) and T >= 2: setflag(3 + T - 2, f'pub{T-2}')
            if T == 3 and k >= 2:
                lo = NPRE + 3*(k - 2); hi = min(60, lo + 3)
                if lo < 60: P.bg += ld_items(w2reg, sW2S, 'w2_', lo, hi, gap=cfg.get('g3', 32))
            for j in range(3):
                if j == 0: P.wait(lg=f'b{n}')
                A(f'{MF} {v(ac+4*j,4)}, {w1reg(3*k+j)}, {v(BR+4*(n%NBR),4)}, {"0" if k == 0 else v(ac+4*j,4)}')
                slots = 2
                if j == 0 and n + PRE < 80: A(h_read(n + PRE), tag=f'b{n+PRE}'); slots = 1
                if tick(): slots = 0
                if k >= 1 or j == 2:
                    for _ in range(slots):
                        if pend: emit_item(pend.pop(0))
        while pend: emit_item(pend.pop(0))
        pend = epi3(T)[1] + (epi3(T + 1)[0] if T < 3 else [])
        stamp(f'p3_e{T}', 1 if T == 3 else 2)
    setflag(5, 'pub2')
    poll_issue(vP4a)
    while pend: emit_item(pend.pop(0)); tick()
    if stop == 3:
        setflag(6, 'pub3'); return finish(P)

    AC4 = [28, 52]
    def h1_items(T):
        L = []
        for kk in range(12):
            ins = [f's_add_u32 {sC}, {sB}, {T*49152 + kk*1024}'] if kk % 4 == 0 else []
            ins.append((f'buffer_load_dwordx4 {a(BB[T%3]+4*kk,4)}, {v(vL16)}, {srd(SWS)}, {sC} offen offset:{(kk%4)*1024} sc1', f'g{T}_{kk}'))
            L.append(dict(ins=ins, gap=cfg.get('g4', 32)))
        return L
    poll_check(vP4a, 4)
    stamp('poll4')
    P.bg = h1_items(0) + P.bg + h1_items(1)
    flush(cfg.get('f5', 8))
    A('s_barrier')
    setflag(6, 'pub3')
    stamp('flag6')
    P.bg += [dict(ins=[f's_mul_i32 {sT2}, {sM}, 160',
                       (f'buffer_load_dwordx4 v[76:79], v13, {srd(SB2)}, {sT2} offen', 'b2'),
                       (f'buffer_load_dwordx4 v[80:83], v13, {srd(SB2)}, {sT2} offen offset:64', 'b2'),
                       (f'buffer_load_dwordx2 v[84:85], v15, {srd(SB2)}, {sT2} offen offset:128', 'b2')], gap=GAP)]
    pend = []
    for T in range(4):
        ac = AC4[T & 1]
        for kk in range(12):
            if T < 2 and kk == cfg.get('pi', 4): poll_issue(vP4a)
            if T < 2 and kk == cfg.get('pc', 10):
                poll_check(vP4a, 5 + T); P.bg += h1_items(T + 2)
            drain_tag(f'g{T}_{kk}')
            for j in range(5):
                f = 5*kk + j
                if T == 0: drain_tag(f'w2_{f}')
                P.wait(vm=[f'g{T}_{kk}', f'w2_{f}'])
                A(f'{MF} {v(ac+4*j,4)}, {w2reg(f)}, {a(BB[T%3]+4*kk,4)}, {"0" if kk == 0 else v(ac+4*j,4)}')
                if not tick() and pend and kk >= 2: emit_item(pend.pop(0))
        stamp(f'p4_t{T}')
        assert T == 3 or not pend
        pend = [f'ds_write_b128 {v(vRW if T < 2 else 12)}, {v(ac+4*j,4)} offset:{(T%2)*20480 + j*1024}' for j in range(5)]
        if T == 2:
            pend.append(lambda: P.wait(vm='b2'))
            for j in range(5):
                for r in range(4):
                    o = (4*(j >> 1) + 2*(j & 1) + (r >> 1) if j < 4 else 8 + (r >> 1))
                    if r & 1: pend += [f'v_and_b32 {v(28+4*j+r)}, 0xffff0000, {v(76+o)}', f'v_and_b32 v20, 0xffff0000, {v(HP+2*j+(r>>1))}']
                    else: pend += [f'v_lshlrev_b32 {v(28+4*j+r)}, 16, {v(76+o)}', f'v_lshlrev_b32 v20, 16, {v(HP+2*j+(r>>1))}']
                    pend.append(f'v_add_f32 {v(28+4*j+r)}, {v(28+4*j+r)}, v20')
            pend += ['v_mul_u32_u24 v17, 1280, v16', 'v_add_u32 v13, v13, v17', 'v_add_u32 v15, v15, v17']
            keep = pend
        if T == 3:
            pend = keep + pend
    while pend: emit_item(pend.pop(0))
    P.wait(lg=0); A('s_barrier')
    RD = 100
    for w in range(4):
        for j in range(5): A(f'ds_read_b128 {v(RD+20*w+4*j,4)}, v11 offset:{w*5120 + j*1024}', tag=f'r{w}')
    for w in range(4):
        P.wait(lg=f'r{w}')
        for i in range(10): A(f'v_pk_add_f32 {v(28+2*i,2)}, {v(28+2*i,2)}, {v(RD+20*w+2*i,2)}')
    for i in range(10): A(f'v_cvt_pk_bf16_f32 {v(48+i)}, {v(28+2*i)}, {v(28+2*i+1)}')
    A(f'buffer_store_dwordx4 v[48:51], v13, {srd(SOUT)}, {sXT[1]} offen')
    A(f'buffer_store_dwordx4 v[52:55], v13, {srd(SOUT)}, {sXT[1]} offen offset:64')
    A(f'buffer_store_dwordx2 v[56:57], v15, {srd(SOUT)}, {sXT[1]} offen offset:128')
    stamp('stored')
    if prof: P.wait(vm=0)
    stamp('end')
    assert not P.bg
    return finish(P)

def finish(P):
    if P.prof:
        P('s_memrealtime s[100:101]'); P.wait(lg=0); P(f'v_writelane_b32 v19, s100, {len(P.stamps)}'); P.stamps.append('rt1')
        P(f's_lshl_b32 s100, s2, 2'); P(f's_add_u32 s100, s100, {sW}'); P('s_lshl_b32 s100, s100, 8'); P(f's_add_u32 s100, s100, {PROFB}')
        P('v_lshlrev_b32 v18, 2, v0'); P(f'buffer_store_dword v19, v18, {srd(SWS)}, s100 offen')
        P.L.insert(0, '; stamps: ' + ' '.join(P.stamps))
    P('L_end:')
    body = P.finish()
    hdr = f"""; generated by gen/gen2.py
; @launch grid=(256,1,1) block=(256,1,1) lds={LDS_TOTAL}
.amdgcn_target "amdgcn-amd-amdhsa--gfx950"
.text
.globl {NAME}_kernel
.p2align 8
.type {NAME}_kernel,@function
{NAME}_kernel:
"""
    ftr = f"""
s_endpgm
.section .rodata,"a"
.p2align 6
.amdhsa_kernel {NAME}_kernel
  .amdhsa_next_free_vgpr 512
  .amdhsa_next_free_sgpr 102
  .amdhsa_accum_offset 256
  .amdhsa_group_segment_fixed_size 0
  .amdhsa_kernarg_size 88
  .amdhsa_user_sgpr_count 2
  .amdhsa_user_sgpr_kernarg_segment_ptr 1
  .amdhsa_system_sgpr_workgroup_id_x 1
.end_amdhsa_kernel
"""
    print('model time', P.t, 'nops', P.nnops, 'short waits', P.warn, file=sys.stderr)
    return hdr + body + ftr

if __name__ == '__main__':
    out = sys.argv[1]
    stop = int(sys.argv[2]) if len(sys.argv) > 2 else 99
    cfg = eval(sys.argv[3]) if len(sys.argv) > 3 else {}
    s = gen(stop, cfg)
    open(out, 'w').write(s)
    print('lines', s.count('\n'))
```

```python
import re

def regs_of(tok):
    tok = tok.strip()
    neg = tok.lstrip('-|').rstrip('|')
    m = re.fullmatch(r'([vas])(\d+)', neg)
    if m: return [(m.group(1), int(m.group(2)))]
    m = re.fullmatch(r'([vas])\[(\d+):(\d+)\]', neg)
    if m: return [(m.group(1), i) for i in range(int(m.group(2)), int(m.group(3)) + 1)]
    if neg == 'vcc': return [('s', 106), ('s', 107)]
    if neg == 'vcc_lo': return [('s', 106)]
    if neg == 'vcc_hi': return [('s', 107)]
    if neg == 'exec': return [('s', 126), ('s', 127)]
    if neg == 'exec_lo': return [('s', 126)]
    if neg == 'exec_hi': return [('s', 127)]
    if neg == 'm0': return [('s', 124)]
    return []

TRANS = ('v_exp_', 'v_log_', 'v_rcp_', 'v_rsq_', 'v_sqrt_', 'v_sin_', 'v_cos_')

class Ins:
    def __init__(self, text):
        self.text = text
        t = text.split(';')[0].strip()
        self.label = None
        self.op = ''
        self.rd = []; self.wr = []
        self.kind = 'none'
        self.srcc = []; self.srcab = []
        self.data = []
        if not t or t.startswith('.'):
            return
        if t.endswith(':'):
            self.label = t[:-1]; return
        parts = t.split(None, 1)
        op = parts[0]; self.op = op
        rest = parts[1] if len(parts) > 1 else ''
        ops = []; cur = ''; d = 0
        for ch in rest:
            if ch == '[' or ch == '(': d += 1
            if ch == ']' or ch == ')': d -= 1
            if ch == ',' and d == 0: ops.append(cur.strip()); cur = ''
            else: cur += ch
        if cur.strip(): ops.append(cur.strip())
        mods = ''
        if ops:
            sp = ops[-1].split(None, 1)
            ops[-1] = sp[0]
            mods = sp[1] if len(sp) > 1 else ''
        self.ops = ops; self.mods = mods
        R = [regs_of(o) for o in ops]
        flat = lambda L: [x for l in L for x in l]
        if op.startswith('v_mfma'):
            self.kind = 'mfma'; self.wr = R[0]; self.srcab = R[1] + R[2]; self.srcc = R[3]; self.rd = self.srcab + self.srcc
            self.passes = 8 if '32x32' in op else 4
        elif op.startswith('v_permlane') and 'swap' in op:
            self.kind = 'valu'; self.wr = R[0] + R[1]; self.rd = R[0] + R[1]
        elif op.startswith('v_'):
            self.kind = 'valu'
            self.wr = R[0]; self.rd = flat(R[1:])
            if op.startswith('v_cmpx'): self.wr = self.wr + regs_of('exec')
            if 'dpp' in op or 'fmac' in op or 'dot2c' in op or op.startswith('v_writelane') or 'row_' in mods or 'quad_perm' in mods:
                self.rd = self.rd + R[0]
            if op.startswith('v_cndmask') and len(ops) == 3: self.rd = self.rd + regs_of('vcc')
            if '_co_' in op: self.wr = R[0] + R[1]; self.rd = flat(R[2:])
            self.dpp = ('dpp' in op) or ('row_' in mods) or ('quad_perm' in mods)
        elif op.startswith('ds_'):
            self.kind = 'ds'
            if op.startswith('ds_write'): self.rd = flat(R); self.data = flat(R[1:])
            else: self.wr = R[0]; self.rd = flat(R[1:])
        elif op.startswith('buffer_') or op.startswith('global_'):
            self.kind = 'vmem'
            islds = (' lds' in (' ' + mods)) or ('_lds_' in op)
            self.lds = islds
            if 'load' in op and not islds: self.wr = R[0]; self.rd = flat(R[1:])
            elif 'load' in op: self.rd = flat(R) + regs_of('m0')
            elif op.startswith('buffer_'):
                self.rd = flat(R); self.data = R[0]
                if 'atomic' in op and 'sc0' in mods: self.wr = R[0]
            else:
                self.rd = flat(R); self.data = R[1]
        elif op.startswith('s_load') or op.startswith('s_buffer_load') or op.startswith('s_mem'):
            self.kind = 'smem'; self.wr = R[0]; self.rd = flat(R[1:])
        elif op.startswith('s_'):
            self.kind = 'salu'
            if op.startswith(('s_cmp', 's_waitcnt', 's_barrier', 's_branch', 's_cbranch', 's_nop', 's_endpgm', 's_sleep', 's_setprio', 's_bitcmp')):
                self.rd = flat(R)
            else:
                self.wr = R[0]; self.rd = flat(R[1:])
                if 'saveexec' in op: self.wr = self.wr + regs_of('exec')
        else:
            raise ValueError('unknown op ' + op)
    def states(self):
        if self.op == 's_nop': return int(self.ops[0], 0) + 1
        return 1 if self.op else 0

def need(p, c):
    n = 0
    pw = set(p.wr);
    if p.kind == 'valu':
        vw = {r for r in pw if r[0] != 's'}; sw = {r for r in pw if r[0] == 's'}
        if c.kind == 'mfma' and vw & set(c.rd): n = max(n, 3 if p.op.startswith('v_dot') else 2)
        if c.kind == 'valu':
            if c.op.startswith('v_permlane') and vw & set(c.rd): n = max(n, 2)
            if getattr(c, 'dpp', False) and vw & set(c.rd): n = max(n, 2)
            if c.op.startswith(('v_readlane', 'v_readfirstlane')) and vw & set(c.rd): n = max(n, 1)
            if p.op.startswith(TRANS) and vw & set(c.rd): n = max(n, 1)
            if sw & set(c.rd): n = max(n, 4 if c.op.startswith(('v_readlane', 'v_writelane', 'v_div_fmas')) else 2)
            if ('op_sel' in p.mods or 'sdwa' in p.op or 'dst_sel' in p.mods) and not p.op.startswith('v_pk_') and vw & (set(c.rd) | set(c.wr)): n = max(n, 1)
            if ('s', 126) in sw:
                if getattr(c, 'dpp', False): n = max(n, 5)
                if c.op.startswith(('v_readlane', 'v_readfirstlane', 'v_writelane', 'v_permlane')): n = max(n, 4)
        if p.op.startswith('v_dot') and c.kind in ('valu', 'vmem', 'ds') and vw & (set(c.rd) | set(c.wr)):
            same_c = (c.op == p.op and c.kind == 'valu' and not (vw & set(x for o in c.ops[1:3] for x in regs_of(o))))
            if not same_c: n = max(n, 3)
        if c.kind == 'mfma' and ('s', 126) in sw: n = max(n, 4)
        if c.kind == 'vmem' and sw & set(c.rd): n = max(n, 5)
        if c.kind == 'salu' and sw & set(c.rd): n = max(n, 2)
        if c.op.startswith('s_cbranch_vcc') and ('s', 106) in sw: n = max(n, 0)
    elif p.kind == 'mfma':
        big = 8 if p.passes == 4 else 12
        if c.kind == 'mfma':
            if pw & set(c.srcab): n = max(n, big)
            if pw & set(c.srcc) and not (c.srcc == p.wr and c.passes == p.passes): n = max(n, 6 if p.passes == 4 else 10)
            if pw & set(c.wr) and not (pw & set(c.srcc)): n = max(n, 0)
        elif c.kind in ('valu', 'vmem', 'ds'):
            if pw & (set(c.rd) | set(c.wr)): n = max(n, big)
        if c.kind == 'valu' and set(p.srcc) & set(c.wr): n = max(n, 3 if p.passes == 4 else 7)
    elif p.kind == 'salu':
        if ('s', 124) in pw and c.kind == 'vmem' and getattr(c, 'lds', False): n = max(n, 1)
        if ('s', 124) in pw and c.kind == 'ds' and 'addtid' in c.op: n = max(n, 1)
    if p.kind == 'vmem' and len(p.data) >= 3 and set(p.data) & set(c.wr): n = max(n, 2 if c.kind in ('valu', 'mfma') else 1)
    if p.kind != 'valu' and getattr(c, 'dpp', False) and c.kind == 'valu' and {r for r in pw if r[0] != 's'} & set(c.rd) and p.kind in ('mfma',): n = max(n, 2)
    return n

class Prog:
    def __init__(self):
        self.L = []
        self.vm = []
        self.lg = []
        self.vt = []; self.warn = []; self.scale = 1.0
        self.cur = {'exec': 's_mov_b64 exec, -1'}; self.xlock = True; self.early = 32
        self.rt = 0; self.tl = 0; self.nxt = 0; self.slack = 0
        self.track = True
        self.uid = 0
        self.t = 0; self.mf = 0
        self.bg = []; self.lastbg = -10**9; self.gap = 72; self.step = 0
    def __call__(self, s, tag=None):
        for line in s.split('\n'):
            line = line.strip()
            if not line: continue
            self.L.append(line)
            op = line.split()[0]
            if op.startswith('s_') and len(line.split()) > 1:
                d = line.split()[1].rstrip(',')
                if d in self.cur and d != 'exec' and not op.startswith(('s_cmp', 's_cbranch', 's_waitcnt')): del self.cur[d]
            if op.startswith('v_mfma'):
                st = max(self.t, self.mf); self.mf = st + 16; self.t = st + 8
            elif op.startswith(TRANS): self.t += 8
            elif op.startswith('ds_write_b128'): self.t += 12
            elif op.startswith(('buffer_', 'global_')) and self.track: self.t += 8
            elif op.endswith(':') or op.startswith(';'): pass
            elif self.track: self.t += 4
            if self.track:
                if op.startswith(('buffer_', 'global_')): self.vm.append(tag); self.vt.append(self.t)
                elif op.startswith('ds_'): self.lg.append(tag)
                elif op.startswith(('s_load', 's_buffer_load', 's_mem')): self.lg.append('SMEM')
    def tick(self, force=False):
        if not self.bg: return 0
        it = self.bg[0]
        if it.get('avail', -1) > self.step: return 0
        st = list(it.get('st', []))
        ex = it.get('ex', '-1')
        if not self.xlock: st.append(('exec', f's_mov_b64 exec, {ex}'))
        pre = [(r, x) for r, x in st if self.cur.get(r) != x]
        now = self.now()
        if not force:
            if pre and now >= self.nxt - self.early:
                for r, x in pre[:2]: self(x); self.cur[r] = x
                return len(pre[:2])
            if now < self.nxt: return 0
        for r, x in pre: self(x); self.cur[r] = x
        self.bg.pop(0)
        self.busy(it.get('gap', 72), force)
        if self.xlock and ex != '-1': self(f's_mov_b64 exec, {ex}')
        for x in it['ins']:
            if callable(x): x()
            elif isinstance(x, tuple): self(x[0], tag=x[1])
            else: self(x)
        if self.xlock and ex != '-1': self('s_mov_b64 exec, -1')
        return 2
    def now(self):
        self.rt += (self.t - self.tl) * self.scale; self.tl = self.t
        return self.rt
    def busy(self, cost, reset=False):
        now = self.now()
        self.nxt = (now if reset else max(self.nxt, now - self.slack)) + cost
    def unlock(self): self.xlock = False
    def lock(self):
        if self.cur.get('exec') != 's_mov_b64 exec, -1': self('s_mov_b64 exec, -1'); self.cur['exec'] = 's_mov_b64 exec, -1'
        self.xlock = True
    def pending(self, tags):
        if not isinstance(tags, (list, tuple, set)): tags = [tags]
        return any(isinstance(x, tuple) and x[1] in tags for it in self.bg for x in it['ins'])
    def drain(self, tags):
        while self.pending(tags):
            assert self.tick(force=True), tags
    def lab(self, base='L'):
        self.uid += 1
        return f'{base}_{self.uid}'
    def _n(self, q, tags):
        if not isinstance(tags, (list, tuple, set)): tags = [tags]
        last = -1
        for i, t in enumerate(q):
            if t in tags: last = i
        if last < 0: return None
        return len(q) - 1 - last
    def wait(self, vm=None, lg=None):
        parts = []
        if vm is not None:
            n = 0 if vm == 0 else self._n(self.vm, vm)
            if n is not None:
                n = min(n, 63)
                if len(self.vm) > n:
                    ti = self.vt[len(self.vm) - n - 1]
                    if self.t - ti < 600: self.warn.append((self.vm[len(self.vm) - n - 1], self.t - ti, len(self.L)))
                parts.append(f'vmcnt({n})'); self.vm = self.vm[len(self.vm) - n:] if n else []; self.vt = self.vt[len(self.vt) - n:] if n else []
        if lg is not None:
            n = 0 if lg == 0 else self._n(self.lg, lg)
            if n is not None:
                if 'SMEM' in self.lg: n = 0
                n = min(n, 15)
                parts.append(f'lgkmcnt({n})'); self.lg = self.lg[len(self.lg) - n:] if n else []
        if parts: self.L.append('s_waitcnt ' + ' '.join(parts)); self.t += 4
    def finish(self):
        ins = [Ins(t) for t in self.L]
        out = []
        nn = 0
        for c in ins:
            if c.op:
                req = 0; el = 0
                for p in reversed(out):
                    if el >= 20: break
                    if p.op:
                        r = need(p, c) - el
                        req = max(req, r)
                        el += p.states()
                        if p.op in ('s_branch', 's_endpgm'): break
                if req > 0:
                    out.append(Ins(f's_nop {req-1}')); nn += 1
            out.append(c)
        labels = {x.label: i for i, x in enumerate(out) if x.label}
        for i, b in enumerate(out):
            if b.op.startswith(('s_branch', 's_cbranch')):
                tgt = labels[b.ops[0]]
                pre = []; el = 0
                for p in reversed(out[:i + 1]):
                    if el >= 20: break
                    if p.op: pre.append((p, el)); el += p.states()
                d = 0
                for c in out[tgt:]:
                    if d >= 20: break
                    if c.op:
                        for p, e in pre:
                            if need(p, c) > e + d - 0:
                                raise Exception(f'branch-edge hazard: {p.text} -> {c.text} via {b.text}')
                        d += c.states()
                        if c.op in ('s_branch', 's_endpgm'): break
        self.check_waits(out)
        self.nnops = nn
        return '\n'.join(('' if x.label else '  ') + x.text for x in out)
    def check_waits(self, out):
        vm = []; lg = []
        for c in out:
            if not c.op: continue
            if 'nocheck' in c.text: continue
            if c.op == 's_waitcnt':
                m = re.search(r'vmcnt\((\d+)\)', c.text)
                if m:
                    n = int(m.group(1)); vm = vm[len(vm) - n:] if n and len(vm) > n else (vm if n else [])
                m = re.search(r'lgkmcnt\((\d+)\)', c.text)
                if m:
                    n = int(m.group(1))
                    if n and any(k == 'smem' for k, _ in lg): pass
                    else: lg = lg[len(lg) - n:] if n and len(lg) > n else (lg if n else [])
                continue
            touched = set(c.rd) | set(c.wr)
            for q in (vm, lg):
                for k, w in q:
                    if w & touched and not (c.kind == k and c.kind in ('vmem', 'ds') and not (w & set(c.rd))):
                        raise Exception(f'unwaited reg {sorted(w & touched)} at: {c.text}')
            if c.kind == 'vmem': vm.append(('vmem', set(c.wr)))
            elif c.kind == 'ds': lg.append(('ds', set(c.wr)))
            elif c.kind == 'smem': lg.append(('smem', set(c.wr)))
```

```python
import sys, math, struct
from asmlib import Prog
NAME = "sequential_preLN__sliding_local_dilated__dense_activation_squared_relu__prompt"

FL = 0
WO = 0x10000
W1 = WO + 800 * 1024
W2 = W1 + 1920 * 1024
OB = W2 + 1920 * 1024
HB = OB + 128 * 20480
H1B = HB + 128 * 21504
PROFB = H1B + 128 * 49152
WS_END = PROFB + 1024 * 256

SLOT = 15424; HALF = 7712; NSLOT = 6
XB = NSLOT * SLOT
XS = 20480
PS = XB + 2 * XS
LDS_TOTAL = 163840
PP = 832

SX, SWQ, SWS, SP0, SOUT, SDBG, SB1, SB2, SPD = 4, 8, 12, 16, 20, 24, 28, 32, 36
def srd(b): return f's[{b}:{b+3}]'
sW, sM, sRB = 's40', 's41', 's42'
sXT = ['s43', 's44', 's45', 's46', 's47']
sWM0, sXM0 = 's48', 's49'
sW0, sW1h = 's50', 's51'
sT2, sT3, sT4, sT5 = 's52', 's53', 's54', 's55'
sEXW = 's[56:57]'; sEXT0 = 's[58:59]'
sFAST, sFLOFF, sCNT, sXCC = 's60', 's61', 's62', 's63'
sOFF, sBG, sWOS, sW1S = 's96', 's97', 's98', 's99'
sW10 = 's3'
sJ = 's60'; sROT = ['s88', 's89', 's90', 's91']
CPF = 13
sOBASE, sHBASE, sH1BASE, sW2S = 's64', 's65', 's66', 's67'
sM1, sM3, sM23 = 's[68:69]', 's[70:71]', 's[72:73]'
sA, sB, sC, sD = 's74', 's75', 's76', 's77'

def v(i, n=1): return f'v{i}' if n == 1 else f'v[{i}:{i+n-1}]'
def a(i, n=1): return f'a{i}' if n == 1 else f'a[{i}:{i+n-1}]'
MF = 'v_mfma_f32_16x16x32_bf16'
SPIN = 200000
f2u = lambda f: struct.unpack('<I', struct.pack('<f', f))[0]

def pk_bc(reg):
    return v(reg & ~1, 2), reg & 1

def WOROWS(A, L):
    u1, u2, u3, u4, u5, sPR = L['u1'], L['u2'], L['u3'], L['u4'], L['u5'], L['sPR']
    A(f's_mul_i32 {u2}, {u1}, 205'); A(f's_lshr_b32 {u2}, {u2}, 10')
    A(f's_mul_i32 {u4}, {u2}, 5'); A(f's_sub_u32 {u1}, {u1}, {u4}')
    A(f's_mul_i32 {u2}, {u2}, 80')
    A(f's_mul_i32 {u4}, {u1}, 20'); A(f's_add_u32 {u4}, {u4}, {u3}')
    A(f's_mul_i32 {u5}, {sW1h}, 20'); A(f's_add_u32 {u5}, {u5}, 16')
    A(f's_cmp_lt_u32 {u1}, 4'); A(f's_cselect_b32 {u4}, {u4}, {u5}'); A(f's_cselect_b32 {sPR[1]}, 8, 40'); A(f's_add_u32 {sPR[0]}, {u2}, {u4}')

def gen(stop=99, cfg=None):
    cfg = cfg or {}
    P = Prog(); A = P
    tick = P.tick
    GAP = cfg.get('gap', 72)
    vL16 = 1
    vWO = [2, 3, 4, 5]; vXO = 6; vAR = [7, 8]; vAX = [9, 10]; vB = [11, 12, 224, 225]
    FA = [20, 36]; FB = [52, 72]
    ACC = 92; GR = 172
    acc = lambda F, T: ACC + (T * 4 + F) * 4
    vFS = 254; vFV = 255; ONES = 240; XR = 244
    prof = cfg.get('prof'); P.stamps = ['entry', 'rt0']; P.prof = prof
    def stamp(name, lvl=1):
        if not prof or prof < lvl: return
        A('s_memtime s[100:101]'); P.wait(lg=0)
        A(f'v_writelane_b32 v19, s100, {len(P.stamps)}'); P.stamps.append(name)
    def AT(*ins):
        for x in ins: A(x); tick()
    if prof: A('s_memtime s[92:93]'); A('s_memrealtime s[94:95]')
    KA = 76
    A(f's_load_dwordx16 s[{KA}:{KA+15}], s[0:1], 0')
    A(f's_load_dwordx2 s[{SWS}:{SWS+1}], s[0:1], 80')
    A(f's_load_dwordx2 s[{SOUT}:{SOUT+1}], s[0:1], 64')
    A(f's_load_dwordx2 s[{SDBG}:{SDBG+1}], s[0:1], 72')
    A('s_cmp_ge_u32 s2, 256')
    A('s_cbranch_scc1 L_end')
    if cfg.get('empty'): A('s_branch L_end')
    A('v_lshrrev_b32 v13, 6, v0')
    A('v_and_b32 v0, 63, v0')
    A(f'v_readfirstlane_b32 {sW}, v13')
    A('v_lshlrev_b32 v1, 4, v0')
    A('v_lshlrev_b32 v17, 7, v0')
    A(f's_bfe_u32 {sM}, s2, 0x30003')
    if not cfg.get('nopf'):
        A('s_getpc_b64 s[64:65]'); A('L_pc:')
        A(f's_lshl_b32 {sT2}, {sM}, 2'); A(f's_add_u32 {sT2}, {sT2}, {sW}'); A(f's_mul_i32 {sT2}, {sT2}, {CPF*128}')
        A(f'v_add_u32 v13, {sT2}, v17'); A('v_min_u32 v13, L_end-L_pc, v13')
        A(f's_mov_b64 exec, {(1 << CPF) - 1:#x}')
        A('global_load_dword v253, v13, s[64:65]', tag='pf')
        A('s_mov_b64 exec, -1')
    for b, n in ((SX, 2621440), (SWQ, 2457600), (SWS, WS_END), (SOUT, 2621440), (SDBG, 256), (SB1, 3072), (SB2, 1280)):
        A(f's_mov_b32 s{b+2}, {n}'); A(f's_mov_b32 s{b+3}, 0x20000')
    A(f's_mov_b32 s{SP0+3}, 0x20000'); A(f's_mov_b32 s{SPD+3}, 0x20000')
    A(f's_and_b32 {sRB}, s2, 7'); A(f's_lshl_b32 {sRB}, {sRB}, 2'); A(f's_lshr_b32 {sJ}, s2, 6'); A(f's_add_u32 {sRB}, {sRB}, {sJ}')
    A(f's_mul_i32 {sXT[1]}, {sRB}, {64*1280}')
    A(f's_and_b32 {sW0}, {sW}, 1'); A(f's_lshr_b32 {sW1h}, {sW}, 1')
    sPR = ['s64', 's65']; sPP, sPD0, sPD1, sPD2, sPTYPE = 's66', 's67', 's68', 's69', 's70'
    sEXP = 's[72:73]'; kap, part = 's74', 's75'
    u0, u1, u2, u3, u4, u5 = 's96', 's97', 's98', 's99', 's71', 's62'
    A(f's_mov_b32 {sPTYPE}, 0')
    A(f's_mov_b32 {sT2}, s2')
    A(f's_mov_b32 s{SP0+2}, 819200'); A(f's_mov_b32 s{SPD+2}, {WS_END}')
    A(f's_mov_b32 {sPP}, 1280'); A(f's_mov_b32 s72, -1'); A(f's_mov_b32 s73, 0xff')
    A(f's_mov_b32 {sT4}, 20'); A(f's_mov_b32 {sT5}, {WO}')
    A('s_cmp_lt_u32 s2, 40'); A('s_cbranch_scc1 L_p0t')
    A(f's_mov_b32 {sPTYPE}, 1'); A(f's_sub_u32 {sT2}, s2, 40')
    A(f's_mov_b32 s{SP0+2}, 1966080')
    A(f's_mov_b32 {sT4}, 48'); A(f's_mov_b32 {sT5}, {W2}')
    A('s_cmp_lt_u32 s2, 136'); A('s_cbranch_scc1 L_p0t')
    A(f's_mov_b32 {sPTYPE}, 2'); A(f's_sub_u32 {sT2}, s2, 136')
    A(f's_mov_b32 {sPP}, 3072'); A(f's_mov_b32 s73, 0xffff')
    A('s_cmp_lt_u32 s2, 216'); A('s_cbranch_scc1 L_p0t')
    A(f's_mov_b32 s{SP0+2}, 0'); A(f's_mov_b32 s{SPD+2}, 0')
    A('L_p0t:')
    A(f's_lshr_b32 {kap}, {sT2}, 1'); A(f's_and_b32 {part}, {sT2}, 1')
    A(f's_lshr_b32 {sT3}, {sT2}, 2'); A(f's_and_b32 {u0}, {sT2}, 3')
    A(f's_cmp_eq_u32 {sPTYPE}, 2'); A(f's_cselect_b32 {kap}, {sT3}, {kap}'); A(f's_cselect_b32 {part}, {u0}, {part}')
    A(f's_cselect_b32 {u0}, 6, 5'); A(f's_mul_i32 {u0}, {u0}, {part}'); A(f's_lshl_b32 {u0}, {u0}, 7')
    A(f's_lshl_b32 {u1}, {kap}, 1'); A(f's_add_u32 {u1}, {u1}, {sW0}')
    A(f's_lshl_b32 {u2}, {u1}, 4'); A(f's_lshl_b32 {u3}, {sW1h}, 2'); A(f's_add_u32 {sPR[0]}, {u2}, {u3}')
    A(f's_mov_b32 {sPR[1]}, 8')
    A(f's_cmp_lg_u32 {sPTYPE}, 0'); A('s_cbranch_scc1 L_p0r')
    WOROWS(A, locals())
    A('L_p0r:')
    A(f's_add_u32 {sPR[1]}, {sPR[1]}, {sPR[0]}')
    for e in range(2): A(f's_mul_i32 {sPR[e]}, {sPR[e]}, {sPP}'); A(f's_add_u32 {sPR[e]}, {sPR[e]}, {u0}')
    A(f's_mul_i32 {u1}, {sW}, {8*PP}')
    A(f's_lshl_b32 {sT2}, s2, 2'); A(f's_add_u32 {sT2}, {sT2}, {sW}'); A(f's_mul_i32 {sT2}, {sT2}, {19*128}')
    A(f's_lshl_b32 {sT3}, {sM}, 2'); A(f's_add_u32 {sT3}, {sT3}, {sW}'); A(f's_mul_i32 {sT3}, {sT3}, 2560'); A(f's_add_u32 {sT3}, {sT3}, {sXT[1]}')
    P.wait(lg=0)
    if prof: A('v_writelane_b32 v19, s92, 0'); A('v_writelane_b32 v19, s94, 1')
    A(f's_mov_b64 s[{SWQ}:{SWQ+1}], s[{KA+2}:{KA+3}]'); A(f's_mov_b64 s[{SX}:{SX+1}], s[{KA}:{KA+1}]')
    A(f's_mov_b64 exec, 0x7ffff')
    A(f'buffer_load_dword v252, v17, {srd(SWQ)}, {sT2} offen', tag='pf')
    A(f's_mov_b64 exec, 0xfffff')
    if not cfg.get('noxpf'): A(f'buffer_load_dword v251, v17, {srd(SX)}, {sT3} offen {cfg.get("xpfl", "")}', tag='pf')
    A(f's_cmp_eq_u32 {sPTYPE}, 0'); A(f's_cselect_b64 s[{SP0}:{SP0+1}], s[{KA+4}:{KA+5}], s[{KA+12}:{KA+13}]')
    A(f's_cmp_eq_u32 {sPTYPE}, 2'); A(f's_cselect_b64 s[{SP0}:{SP0+1}], s[{KA+8}:{KA+9}], s[{SP0}:{SP0+1}]')
    A(f's_mov_b64 exec, {sEXP}')
    for e in range(2):
        for r in range(4):
            A(f's_add_u32 m0, {u1}, {PS + (4*e + r)*PP}')
            if r: A(f's_add_u32 {sPR[e]}, {sPR[e]}, {sPP}')
            A(f'buffer_load_dwordx4 {v(vL16)}, {srd(SP0)}, {sPR[e]} offen {cfg.get("p0fl", "nt")} lds', tag='p0')
    A('s_mov_b64 exec, -1')
    stamp('issp', 2)
    A(f's_mov_b64 s[{SPD}:{SPD+1}], s[{SWS}:{SWS+1}]')
    A(f's_mov_b64 s[{SB1}:{SB1+1}], s[{KA+10}:{KA+11}]'); A(f's_mov_b64 s[{SB2}:{SB2+1}], s[{KA+14}:{KA+15}]')
    A(f's_sub_u32 {sXT[0]}, {sXT[1]}, {16*1280}'); A(f's_cselect_b32 {sXT[0]}, 0, {sXT[0]}')
    for T in range(2, 5): A(f's_add_u32 {sXT[T]}, {sXT[1]}, {(T-1)*16*1280}')
    A(f's_mul_i32 {sT2}, {sW0}, {8*1280}'); A(f's_lshl_b32 {sT3}, {sW1h}, 7'); A(f's_add_u32 {sT2}, {sT2}, {sT3}')
    A('v_lshrrev_b32 v13, 3, v0'); A(f'v_mul_u32_u24 v13, 1280, v13')
    A('v_lshrrev_b32 v14, 4, v0')
    A(f's_lshl_b32 {sT3}, {sW0}, 2')
    A(f'v_add_u32 v15, {sT3}, v14'); A('v_and_b32 v16, 7, v0'); A('v_xor_b32 v15, v15, v16')
    A(f'v_lshl_add_u32 v13, v15, 4, v13'); A(f'v_add_u32 {v(vXO)}, {sT2}, v13')
    A(f's_mul_i32 {sXM0}, {sW1h}, 10240'); A(f's_lshl_b32 {sT3}, {sW0}, 10'); A(f's_add_u32 {sXM0}, {sXM0}, {sT3}')
    A(f's_mov_b32 s59, -1'); A(f's_cmp_eq_u32 {sW0}, 0'); A(f's_cselect_b32 s58, 0xffffff00, -1')
    A('v_cmp_lt_u32 vcc, 29, v0'); A('v_cndmask_b32 v13, 0, 1, vcc')
    A('v_mul_u32_u24 v15, 30, v13'); A('v_sub_u32 v15, v0, v15')
    A('v_mul_u32_u24 v16, 26, v15'); A('v_lshrrev_b32 v16, 8, v16')
    A('v_mul_u32_u24 v13, 3840, v13')
    A('v_mul_u32_u24 v16, 1120, v16')
    A('v_lshl_add_u32 v13, v15, 4, v13'); A('v_add_u32 v13, v13, v16')
    A(f's_lshl_b32 {sT2}, {sW0}, 4'); A(f's_lshl_b32 {sT3}, {sW1h}, 2'); A(f's_add_u32 {sT2}, {sT2}, {sT3}')
    A(f's_mul_i32 {sT2}, {sT2}, 3840'); A(f's_mul_i32 {sT3}, {sM}, 160'); A(f's_add_u32 {sT2}, {sT2}, {sT3}')
    A(f'v_add_u32 {v(vWO[0])}, {sT2}, v13')
    for q in range(1, 4): A(f'v_add_u32 {v(vWO[q])}, {(8*(q>>1)+2*(q&1))*3840}, {v(vWO[0])}')
    A(f's_mul_i32 {sWM0}, {sW1h}, {HALF}'); A(f's_mul_i32 {sT3}, {sW0}, {8*480}'); A(f's_add_u32 {sWM0}, {sWM0}, {sT3}')
    A(f's_mov_b32 s56, -1'); A(f's_mov_b32 s57, 0x0fffffff')
    if cfg.get('norot'): A(f's_mov_b32 {sJ}, 0')
    for p in range(4):
        A(f's_add_u32 {sROT[p]}, {sJ}, {p}'); A(f's_and_b32 {sROT[p]}, {sROT[p]}, 3'); A(f's_mul_i32 {sROT[p]}, {sROT[p]}, {32*3840}')

    XG = cfg.get('xgap', 60); WG = cfg.get('wgap', 80)
    def xdma(S, avail=-1):
        L = []
        for T in range(5):
            ins = [f's_add_u32 m0, {sXM0}, {XB + (S % 2)*XS + T*2048 - S*256}']
            if T == 0: ins.append(f's_mov_b64 exec, {sEXT0}')
            ins.append((f'buffer_load_dwordx4 {v(vXO)}, {srd(SX)}, {sXT[T]} offen offset:{S*256} {cfg.get("xfl", "")} lds', f'x{S}'))
            if T == 0: ins.append('s_mov_b64 exec, -1')
            L.append(dict(ins=ins, avail=avail, gap=XG))
        return L
    def wdma(ks, avail=-1):
        L = []
        for q in range(4):
            ins = [f's_add_u32 {sOFF}, {sROT[ks % 4]}, {(ks//4)*4*32*3840}'] if q == 0 else []
            ins += [f's_add_u32 m0, {sWM0}, {(ks % NSLOT)*SLOT + 2*q*480}', f's_mov_b64 exec, {sEXW}',
                    (f'buffer_load_dwordx4 {v(vWO[q])}, {srd(SWQ)}, {sOFF} offen {cfg.get("wfl", "")} lds', f'w{ks}'), 's_mov_b64 exec, -1']
            L.append(dict(ins=ins, avail=avail, gap=WG))
        return L
    def flush(n=10**9):
        while n > 0 and tick(force=True): n -= 1
    P.bg = wdma(0) + xdma(0) + wdma(1); flush()
    stamp('iss0', 2)
    A(f's_lshl_b32 {sFLOFF}, {sRB}, 7')
    A(f's_lshl_b32 {sT2}, {sM}, 4'); A(f's_lshl_b32 {sT3}, {sW}, 2'); A(f's_add_u32 {sT2}, {sT2}, {sT3}')
    A(f'v_mov_b32 {v(vFS)}, {sT2}'); A(f'v_mov_b32 {v(vFV)}, 0')
    A('s_mov_b64 exec, 1')
    A(f'buffer_store_dword {v(vFV)}, {v(vFS)}, {srd(SWS)}, {sFLOFF} offen sc1', tag='p0s')
    A('s_mov_b64 exec, -1')
    bg = wdma(2) + wdma(3) + xdma(1) + wdma(4) + wdma(5)
    for ks in range(6, 20):
        if ks in (9, 13, 17): bg += xdma((ks - 1) // 4, ks - 6)
        bg += wdma(ks, ks - 6)
    P.bg = bg; P.step = -1
    A(f's_lshl_b32 s77, {part}, 2'); A(f's_add_u32 s77, s77, {sW}')
    A(f's_mul_i32 s78, s77, {sT4}'); A(f's_add_u32 s78, s78, {kap}'); A('s_mul_i32 s78, s78, 5120'); A(f's_add_u32 {sPD0}, s78, {sT5}')
    A(f's_add_u32 {sPD1}, {sPD0}, 3072')
    A('s_mul_i32 s78, s77, 40'); A(f's_add_u32 s78, s78, {kap}'); A('s_mul_i32 s78, s78, 3072'); A(f's_add_u32 s78, s78, {W1}')
    A('s_add_u32 s79, s78, 61440')
    A(f's_cmp_eq_u32 {sPTYPE}, 2'); A(f's_cselect_b32 {sPD0}, s78, {sPD0}'); A(f's_cselect_b32 {sPD1}, s79, {sPD1}')
    A(f's_cselect_b32 {sPD2}, s79, 0x40000000')
    A('s_cselect_b64 vcc, -1, 0'); A('s_cselect_b32 s79, 24, 0')
    A('s_cselect_b32 s78, 6, 5'); A(f's_mul_i32 s78, s78, {sW}'); A('s_lshl_b32 s78, s78, 5'); A(f's_add_u32 s78, s78, {PS}')
    tick()
    vP, vS, vP2, vP3, vP4 = 192, 193, 194, 195, 220
    AT('v_lshrrev_b32 v13, 2, v0', 'v_and_b32 v15, 3, v0',
       f'v_mul_u32_u24 v16, {PP}, v13', f'v_add_u32 v16, s78, v16',
       f'v_lshl_add_u32 {v(vP)}, v15, 4, v16', f'v_lshl_add_u32 {v(vS)}, v15, 3, v16',
       f'v_cndmask_b32 {v(vP2)}, {v(vP)}, {v(vS)}, vcc', f'v_add_u32 {v(vP3)}, s79, {v(vP)}',
       f'v_add_u32 v16, 24, {v(vS)}', f'v_cndmask_b32 {v(vP4)}, v16, {v(vP)}, vcc',
       f's_mul_i32 {sT2}, {sW}, 40',
       f'v_mul_u32_u24 v16, 480, v13', f'v_add_u32 v16, {sT2}, v16',
       f'v_lshl_add_u32 {v(vAR[0])}, v15, 3, v16',
       f'v_mul_u32_u24 v17, 160, v15', f'v_add3_u32 v16, v16, v17, 32',
       'v_cmp_eq_u32 vcc, 3, v15', 'v_mov_b32 v17, 7680', f'v_cndmask_b32 {v(vAX[0])}, v16, v17, vcc',
       f'v_add_u32 {v(vAR[1])}, {4*SLOT}, {v(vAR[0])}', f'v_add_u32 {v(vAX[1])}, {4*SLOT}, {v(vAX[0])}',
       'v_and_b32 v16, 15, v0',
       'v_lshrrev_b32 v17, 1, v16', 'v_xor_b32 v17, v17, v14', 'v_lshlrev_b32 v17, 4, v17',
       f'v_lshl_add_u32 v17, v16, 7, v17',
       *[y for p in range(4) for y in (f's_add_u32 {sT2}, {sJ}, {p}', f's_bfe_u32 {sT3}, {sT2}, 0x10001', f's_mul_i32 {sT3}, {sT3}, 10240', f's_add_u32 {sT3}, {sT3}, {XB}',
                                       f's_and_b32 {sT2}, {sT2}, 1', f's_lshl_b32 {sT2}, {sT2}, 6', f'v_xor_b32 v18, {sT2}, v17', f'v_add_u32 {v(vB[p])}, {sT3}, v18')],
       'v_min_u32 v17, 11, v0', f'v_mul_u32_u24 v17, {HALF}, v17',
       'v_mov_b32 v222, 0x3f80', 'v_mov_b32 v223, 0',
       'ds_write_b64 v17, v[222:223] offset:7680')
    for i in range(4): AT(f'v_mov_b32 {v(ONES+i)}, 0x3f803f80')
    AT('v_bfe_u32 v17, v0, 3, 2', 'v_mul_u32_u24 v17, 10240, v17', 'v_and_b32 v18, 7, v0',
       f'v_lshl_add_u32 v17, v18, 4, v17', f'v_add_u32 v17, {XB}, v17',
       f'ds_write_b128 v17, {v(ONES,4)}')
    BP, BC, BP1 = 228, 232, 236
    AT('v_lshlrev_b32 v17, 2, v14', 'v_sub_u32 v17, v16, v17', 'v_mov_b32 v222, 0xf149f2ca')
    for r in range(4):
        for (dst, add) in ((BC, -r), (BP, 16 - r)):
            AT(f'v_add_u32 v18, {add}, v17', 'v_and_b32 v18, 0xfffffff1, v18',
               'v_cmp_eq_u32 vcc, 0, v18', f'v_cndmask_b32 {v(dst+r)}, v222, 0, vcc')
    A(f's_cmp_eq_u32 {sRB}, 0'); A('s_cselect_b64 vcc, -1, 0')
    for r in range(4): AT(f'v_cndmask_b32 {v(BP1+r)}, {v(BP+r)}, v222, vcc')
    AT(f's_lshl_b32 {sW10}, {sW}, 10',
       f's_mul_i32 {sWOS}, {sM}, 102400', f's_add_u32 {sWOS}, {sWOS}, {sW10}', f's_add_u32 {sWOS}, {sWOS}, {WO}',
       f's_lshl_b32 {sT2}, {sM}, 2', f's_add_u32 {sT2}, {sT2}, {sW}',
       f's_mul_i32 {sW1S}, {sT2}, 61440', f's_add_u32 {sW1S}, {sW1S}, {W1}',
       f's_getreg_b32 {sXCC}, hwreg(HW_REG_XCC_ID)', f's_and_b32 {sXCC}, {sXCC}, 7', f's_or_b32 {sXCC}, {sXCC}, 0x80')
    flush(cfg.get('pro', 8))
    stamp('issued')

    def frag_reads(ks):
        b = ks & 1; sl = ks % NSLOT; st = sl // 4; so = (sl % 4) * SLOT
        S = ks // 4; xo = (S % 2) * XS
        L = []
        L.append(f'ds_read_b128 {v(FB[b],4)}, {v(vB[ks&3])} offset:{xo}')
        for F in range(4):
            for jj in range(2):
                if F < 3: L.append(f'ds_read_b64_tr_b16 {v(FA[b]+4*F+2*jj,2)}, {v(vAR[st])} offset:{so + jj*HALF + F*160}')
                else: L.append(f'ds_read_b64_tr_b16 {v(FA[b]+4*F+2*jj,2)}, {v(vAX[st])} offset:{so + jj*HALF}')
        for T in range(1, 5): L.append(f'ds_read_b128 {v(FB[b]+4*T,4)}, {v(vB[ks&3])} offset:{xo + T*2048}')
        return L
    SP = cfg.get('sp', 1); SA = cfg.get('sa', 6); SC = cfg.get('sc', 14)
    groups = [(PS + i*4096, SC) for i in range(7)]
    g2 = [(2*SLOT + i*4096, max(SC, 14 + ((i+1)*4096 - 1)//SLOT)) for i in range(13)]
    g3 = [(XB + XS + i*4096, max(SC, 15)) for i in range(5)]
    groups = groups + sorted(g2 + g3, key=lambda x: x[1])
    wo_loc = lambda f: groups[f // 4][0] + (f % 4) * 1024
    def wo_items():
        return [dict(ins=[f's_add_u32 m0, {sW10}, {groups[gi][0]}', f's_add_u32 {sBG}, {sWOS}, {gi*4096}',
                          (f'buffer_load_dwordx4 {v(vL16)}, {srd(SWS)}, {sBG} offen sc1 lds', 'wo')], avail=groups[gi][1], gap=GAP) for gi in range(25)]
    def ld_items(regf, sbase, tagp, lo, hi, avail=-1, gap=GAP):
        L = []
        for f in range(lo, hi):
            ins = [f's_add_u32 {sBG}, {sbase}, {(f//4)*4096}'] if (f % 4 == 0 or f == lo) else []
            ins.append((f'buffer_load_dwordx4 {regf(f)}, {v(vL16)}, {srd(SWS)}, {sBG} offen offset:{(f%4)*1024} sc1', f'{tagp}{f}'))
            L.append(dict(ins=ins, avail=avail, gap=gap, solo=(f % 4 == 0 or f == lo)))
        return L
    w1reg = lambda f: a(4*f, 4)

    TB = 196
    def p0_reads():
        return [f'ds_read_b64_tr_b16 {v(TB+4*j+2*jj,2)}, {v(vr)} offset:{off + jj*16*PP}'
                for j, (vr, off) in enumerate([(vP, 0), (vP, 8), (vP2, 64), (vP3, 72), (vP4, 104), (vS, 160)]) for jj in range(2)]
    def p0_stores():
        st = [dict(ins=[(f'buffer_store_dwordx4 {v(TB+4*j,4)}, {v(vL16)}, {srd(SPD)}, {(sPD0, sPD0, sPD0, sPD1, sPD1, sPD2)[j]} offen offset:{(j%3)*1024} sc1', 'p0s')], gap=cfg.get('sgap', GAP)) for j in range(6)]
        inter = cfg.get('p0i', 1)
        nb = []
        for j in range(6):
            nb.append(st[j]); nb += P.bg[:inter]; P.bg = P.bg[inter:]
        P.bg = nb + P.bg
    if SP < 0:
        P.wait(vm='p0', lg=0); A('s_barrier')
        stamp('p0in', 2)
        for s in p0_reads(): A(s)
        flush(cfg.get('pro2', 0))
        P.wait(lg=0)
        p0_stores(); flush(cfg.get('pro3', 6))
    P.wait(vm=['x0', 'w0'], lg=0); A('s_barrier')
    stamp('first')
    for s in frag_reads(0): A(s)
    for ks in range(20):
        tags = []
        if ks + 1 < 20: tags = [f'w{ks+1}', f'x{(ks+1)//4}']
        while any(any(isinstance(x, tuple) and x[1] in tags for x in it['ins']) for it in P.bg):
            assert tick(force=True), ks
        if ks == SP: tags.append('p0')
        if ks == SA: tags.append('p0s')
        P.wait(vm=tags, lg=0); A('s_barrier')
        P.step = ks
        stamp(f'k{ks}', 1 if ks % 4 == 0 or ks == 19 else 2)
        fill = list(frag_reads(ks + 1)) if ks + 1 < 20 else []
        if ks == SP: fill += p0_reads()
        if ks == SP + 1 and SP >= 0: p0_stores()
        if ks == SA:
            assert not any(any(isinstance(x, tuple) and x[1] == 'p0s' for x in it['ins']) for it in P.bg)
            A(f's_cmp_lg_u32 {sW}, 0'); A('s_cbranch_scc1 L_arr')
            A(f's_and_b32 {sT2}, {sM}, 3'); A(f's_lshl_b32 {sT2}, {sT2}, 3'); A(f's_lshl_b32 {sT2}, {sXCC}, {sT2}')
            A(f's_lshl_b32 {sT3}, {sRB}, 3'); A(f's_and_b32 {sT4}, {sM}, 4'); A(f's_add_u32 {sT3}, {sT3}, {sT4}')
            A(f'v_mov_b32 v13, {sT2}'); A(f'v_mov_b32 v15, {sT3}')
            A('s_mov_b64 exec, 1')
            P.track = False
            A(f'buffer_atomic_or v13, v15, {srd(SDBG)}, 0 offen sc1 ; nocheck')
            P.track = True
            A('s_mov_b64 exec, -1')
            A('L_arr:')
        if ks == SC - cfg.get('sd', 2):
            A('v_lshlrev_b32 v17, 2, v0')
            A(f'buffer_load_dword v18, v17, {srd(SDBG)}, 0 offen sc1', tag='dbg')
        if ks == SC:
            A(f's_mov_b32 {sCNT}, 0'); A(f's_mov_b32 {sT2}, 0x80808080')
            P.wait(vm='dbg')
            A('L_dbg:')
            A(f'v_and_b32 v13, {sT2}, v18'); A(f'v_cmp_ne_u32 vcc, {sT2}, v13')
            A('s_cbranch_vccz L_dbgok')
            P.track = False
            A(f'buffer_load_dword v18, v17, {srd(SDBG)}, 0 offen sc1 ; nocheck')
            A(f's_add_u32 {sCNT}, {sCNT}, 1'); A(f's_cmp_gt_u32 {sCNT}, {SPIN}'); A('s_cbranch_scc1 L_end')
            A('s_waitcnt vmcnt(0) ; nocheck'); A('s_branch L_dbg')
            P.track = True
            A('L_dbgok:')
            A(f's_mul_i32 {sT2}, {sXCC}, 0x01010101'); A(f's_lshl_b32 {sT3}, {sRB}, 1')
            A(f'v_cmp_ne_u32 vcc, {sT2}, v18')
            A(f's_lshr_b64 vcc, vcc, {sT3}'); A(f's_and_b32 {sFAST}, vcc_lo, 3')
            if cfg.get('slow'): A(f's_mov_b32 {sFAST}, 1')
            P.bg += wo_items()
            xr = ['v_and_b32 v13, 15, v0', 'v_mul_u32_u24 v13, 1280, v13',
                  'v_lshl_add_u32 v15, v14, 4, v13', 'v_lshl_add_u32 v13, v14, 3, v13',
                  f's_mul_i32 {sT2}, {sW}, {16*1280}', f's_add_u32 {sT2}, {sT2}, {sXT[1]}', f's_mul_i32 {sT3}, {sM}, 160', f's_add_u32 {sXT[1]}, {sT2}, {sT3}',
                  (f'buffer_load_dwordx4 {v(XR,4)}, v15, {srd(SX)}, {sXT[1]} offen', 'xr'),
                  (f'buffer_load_dwordx4 {v(XR+4,4)}, v15, {srd(SX)}, {sXT[1]} offen offset:64', 'xr'),
                  (f'buffer_load_dwordx2 {v(XR+8,2)}, v13, {srd(SX)}, {sXT[1]} offen offset:128', 'xr')]
            P.bg.insert(len(P.bg) - 18, dict(ins=xr, gap=3*GAP, must=19))
            P.bg += ld_items(w1reg, sW1S, 'w1_', 0, 60)
            if cfg.get('touch'):
                TOP = cfg.get('top', 'load_dword'); TFL = cfg.get('tfl', 'sc1')
                t1 = ['v_lshlrev_b32 v17, 7, v0',
                      f's_lshl_b32 {sT2}, {sRB}, 2', f's_add_u32 {sT2}, {sT2}, {sW}',
                      f's_mul_i32 {sT3}, {sT2}, 1024', f's_add_u32 {sT3}, {sT3}, {HB - OB - 2560}',
                      f's_mul_i32 {sT4}, {sM}, {128 - 2560}', f's_add_u32 {sT4}, {sT4}, {20480 - 2560}', f's_add_u32 {sT4}, {sT4}, {sT3}',
                      f'v_mov_b32 v18, {sT3}', 'v_cmp_gt_u32 vcc, 20, v0', 'v_cndmask_b32 v18, v18, 0, vcc',
                      f'v_mov_b32 v252, {sT4}', 'v_cmp_gt_u32 vcc, 40, v0', 'v_cndmask_b32 v18, v252, v18, vcc', 'v_add_u32 v18, v17, v18',
                      f's_mul_i32 {sT3}, {sT2}, 20480', f's_mul_i32 {sT4}, {sM}, 2560', f's_add_u32 {sT3}, {sT3}, {sT4}', f's_add_u32 {sT3}, {sT3}, {OB}',
                      's_mov_b32 exec_hi, 0x1ff',
                      (f'buffer_{TOP} v253, v18, {srd(SWS)}, {sT3} offen {TFL}', 'tch'),
                      f's_mul_i32 {sT3}, {sT2}, 49152', f's_mul_i32 {sT4}, {sM}, 6144', f's_add_u32 {sT3}, {sT3}, {sT4}', f's_add_u32 {sT3}, {sT3}, {H1B}',
                      's_mov_b32 exec_hi, 0xffff',
                      (f'buffer_{TOP} v253, v17, {srd(SWS)}, {sT3} offen {TFL}', 'tch'),
                      's_mov_b32 exec_hi, -1']
                P.bg.insert(len(P.bg) - 86 + cfg['touch'] - 1, dict(ins=t1, gap=cfg.get('tgap', 11*GAP), must=19))
            fill += [f's_mul_i32 {sOBASE}, {sRB}, {4*20480}', f's_add_u32 {sOBASE}, {sOBASE}, {OB}',
                     f's_mul_i32 {sHBASE}, {sRB}, {4*21504}', f's_add_u32 {sHBASE}, {sHBASE}, {HB}',
                     f's_mul_i32 {sH1BASE}, {sRB}, {4*49152}', f's_add_u32 {sH1BASE}, {sH1BASE}, {H1B}',
                     f's_add_u32 {sW2S}, {sW1S}, {W2 - W1}',
                     's_mov_b32 s68, 0x22222222', 's_mov_b32 s69, 0x22222222', 's_mov_b32 s70, 0x88888888', 's_mov_b32 s71, 0x88888888',
                     's_mov_b32 s72, 0xcccccccc', 's_mov_b32 s73, 0xcccccccc']
        b = ks & 1
        mf = []
        for T in range(5):
            for F in range(4):
                c = '0' if ks == 0 else v(acc(F, T), 4)
                mf.append(f'{MF} {v(acc(F,T),4)}, {v(FA[b]+4*F,4)}, {v(FB[b]+4*T,4)}, {c}')
            c = '0' if ks == 0 else v(GR + 4*T, 4)
            mf.append(f'{MF} {v(GR+4*T,4)}, {v(FB[b]+4*T,4)}, {v(FB[b]+4*T,4)}, {c}')
        for i, m in enumerate(mf):
            A(m)
            if not tick():
                for _ in range(2 if len(fill) > 24 - i else 1):
                    if fill: A(fill.pop(0))
        for s in fill: A(s)
    assert not any('must' in it for it in P.bg)
    P.step = 100

    stamp('gemm_end')
    P.scale = cfg.get('ascale', 1.5)
    CS = 20; NM = 36; RS = 42; RQ = 48; RX = 86
    KXV = 56; QF = 192; VT0 = 208; VT1 = 218
    sc = (20 ** -0.5) * math.log2(math.e)
    AT('v_lshrrev_b32 v13, 2, v16', 'v_lshl_add_u32 v13, v13, 4, v16', 'v_lshlrev_b32 v13, 2, v13',
       'v_add_lshl_u32 v15, v16, 48, 2',
       f'v_mov_b32 v17, 1.0', f'v_mov_b32 v18, {f2u(sc):#x}', 'v_mov_b32 v2, 0',
       'v_mov_b32_dpp v17, v18 quad_perm:[0,1,2,3] row_mask:0x1 bank_mask:0xf',
       'v_mov_b32_dpp v17, v2 quad_perm:[0,1,2,3] row_mask:0x8 bank_mask:0xf')
    for T in range(5):
        g = GR + 4*T
        A(f'ds_bpermute_b32 {v(NM+T)}, v15, {v(acc(3,T))}', tag='st')
        AT(f'v_cndmask_b32 {v(g)}, {v(g)}, {v(g+1)}, {sM1}', f'v_cndmask_b32 {v(g+2)}, {v(g+2)}, {v(g+3)}, {sM3}',
           f'v_cndmask_b32 {v(g)}, {v(g)}, {v(g+2)}, {sM23}')
        A(f'ds_bpermute_b32 {v(RS+T)}, v13, {v(g)}', tag='st')
    for F in range(4):
        for r in range(4): AT(f'v_mov_b32_dpp {v(CS+4*F+r)}, {v(acc(F,0)+r)} row_newbcast:0 row_mask:0xf bank_mask:0xf')
    AT(f's_mul_i32 {sT2}, {sW}, 5120', f's_add_u32 {sT2}, {sT2}, {XB}',
       'v_lshlrev_b32 v2, 6, v16', 'v_lshl_add_u32 v2, v14, 4, v2', f'v_add_u32 v2, {sT2}, v2',
       'v_lshrrev_b32 v3, 2, v0', 'v_lshlrev_b32 v3, 6, v3', f'v_add_u32 v3, {sT2}, v3',
       'v_and_b32 v4, 3, v0', 'v_lshl_add_u32 v4, v4, 4, v3')
    P.wait(lg='st')
    for T in range(5): AT(f'v_mul_f32 {v(NM+T)}, {f2u(-1.0/640):#x}, {v(NM+T)}')
    for T in range(5): AT(f'v_mul_f32 {v(RS+T)}, {f2u(1.0/640):#x}, {v(RS+T)}')
    for T in range(5): AT(f'v_fma_f32 {v(RS+T)}, -{v(NM+T)}, {v(NM+T)}, {v(RS+T)}')
    for T in range(5): AT(f'v_max_f32 {v(RS+T)}, 0, {v(RS+T)}')
    for T in range(5): AT(f'v_add_f32 {v(RS+T)}, {f2u(1e-5):#x}, {v(RS+T)}')
    for T in range(5): AT(f'v_rsq_f32 {v(RS+T)}, {v(RS+T)}')
    for T in range(1, 5): AT(f'v_mul_f32 {v(RQ+T)}, {f2u(sc):#x}, {v(RS+T)}')
    for T in range(5): AT(f'v_mul_f32 {v(RX+T)}, v17, {v(RS+T)}')
    for T in range(5):
        for F in ((1, 3, 2) if T == 0 else (1, 3, 2, 0)):
            nm, s1 = pk_bc(NM + T)
            rs, s2 = pk_bc({0: RQ, 1: RS, 2: RS, 3: RX}[F] + T)
            ac = acc(F, T)
            for h in range(2):
                AT(f'v_pk_fma_f32 {v(ac+2*h,2)}, {v(CS+4*F+2*h,2)}, {nm}, {v(ac+2*h,2)} op_sel:[0,{s1},0] op_sel_hi:[1,{s1},1]')
            for h in range(2):
                AT(f'v_pk_mul_f32 {v(ac+2*h,2)}, {v(ac+2*h,2)}, {rs} op_sel:[0,{s2}] op_sel_hi:[1,{s2}]')
            dst = {1: KXV + 6*T, 3: KXV + 6*T + 2, 2: KXV + 6*T + 4, 0: QF + 4*(T-1)}[F]
            for h in range(2): AT(f'v_cvt_pk_bf16_f32 {v(dst+h)}, {v(ac+2*h)}, {v(ac+2*h+1)}')
        A(f'ds_write_b128 v2, {v(KXV+6*T+2,4)} offset:{T*1024}', tag='vw')
        if T:
            for h in range(2): AT(f'v_mov_b32 {v(QF+4*(T-1)+2+h)}, 0')
    for T in range(1, 5):
        for h in range(2): AT(f'v_permlane16_swap_b32 {v(QF+4*(T-1)+2+h)}, {v(KXV+6*T+2+h)}')
    SS = ACC; MX = ACC + 32; PF = ACC + 40
    for i in range(4):
        AT(f'{MF} {v(SS+8*i,4)}, {v(KXV+6*i,4)}, {v(QF+4*i,4)}, {v(BP1 if i == 0 else BP,4)}',
           f'{MF} {v(SS+8*i+4,4)}, {v(KXV+6*(i+1),4)}, {v(QF+4*i,4)}, {v(BC,4)}')
    for T in range(5):
        A(f'ds_read_b64_tr_b16 {v(VT0+2*T,2)}, v4 offset:{T*1024+8}', tag='vt')
        A(f'ds_read_b64_tr_b16 {v(VT1+2*T,2)}, v3 offset:{T*1024+32}', tag='vt')
    for i in range(4):
        s = SS + 8*i; m = MX + 2*i
        AT(f'v_max3_f32 {v(m)}, {v(s)}, {v(s+1)}, {v(s+2)}', f'v_max3_f32 {v(m+1)}, {v(s+3)}, {v(s+4)}, {v(s+5)}',
           f'v_max3_f32 {v(m)}, {v(m)}, {v(s+6)}, {v(s+7)}', f'v_max_f32 {v(m)}, {v(m)}, {v(m+1)}')
    for sw in ('v_permlane16_swap_b32', 'v_permlane32_swap_b32'):
        for i in range(4): AT(f'v_mov_b32 {v(MX+2*i+1)}, {v(MX+2*i)}')
        for i in range(4): AT(f'{sw} {v(MX+2*i)}, {v(MX+2*i+1)}')
        for i in range(4): AT(f'v_max_f32 {v(MX+2*i)}, {v(MX+2*i)}, {v(MX+2*i+1)}')
    O0 = 148; O1 = 164; SM = 20
    P.wait(lg='vt')
    for i in range(4):
        s = SS + 8*i
        for h in range(4): AT(f'v_pk_add_f32 {v(s+2*h,2)}, {v(s+2*h,2)}, {v(MX+2*i,2)} op_sel:[0,0] op_sel_hi:[1,0] neg_lo:[0,1] neg_hi:[0,1]')
        for h in range(8): AT(f'v_exp_f32 {v(s+h)}, {v(s+h)}')
        for h in range(4): AT(f'v_cvt_pk_bf16_f32 {v(PF+4*i+h)}, {v(s+2*h)}, {v(s+2*h+1)}')
        if i == 3:
            AT('v_and_b32 v13, 1, v14', 'v_mul_u32_u24 v13, 20480, v13')
        if i > 0:
            pass
    nobg = cfg.get('quiet1', 0)
    for i in range(4):
        A(f'{MF} {v(SM+4*i,4)}, {v(ONES,4)}, {v(PF+4*i,4)}, 0')
        A(f'{MF} {v(O0+4*i,4)}, {v(VT0+2*i,4)}, {v(PF+4*i,4)}, 0')
        A(f'{MF} {v(O1+4*i,4)}, {v(VT1+2*i,4)}, {v(PF+4*i,4)}, 0')
    AQ = (lambda *x: [A(y) for y in x]) if nobg else AT
    AQ('v_lshrrev_b32 v15, 1, v14', 'v_lshl_add_u32 v13, v15, 8, v13', 'v_lshl_add_u32 v13, v16, 4, v13',
       'v_mul_u32_u24 v15, 20480, v14', 'v_lshl_add_u32 v15, v16, 4, v15',
       f's_mul_i32 {sT2}, {sM}, 2560', f's_add_u32 {sT2}, {sT2}, {sOBASE}',
       f's_lshl_b32 {sT3}, {sW}, 9', f's_add_u32 {sT3}, {sT3}, {sT2}', f's_add_u32 {sT4}, {sT3}, 40960',
       f's_lshl_b32 {sT5}, {sW1h}, 8', f's_add_u32 {sT2}, {sT2}, {sT5}', f's_lshl_b32 {sT5}, {sW0}, 3', f's_add_u32 {sT2}, {sT2}, {sT5}')
    for i in range(4): AQ(f'v_rcp_f32 {v(SM+4*i)}, {v(SM+4*i)}')
    OP = 36; OL = 44
    for i in range(4):
        for h in range(2): AQ(f'v_pk_mul_f32 {v(O0+4*i+2*h,2)}, {v(O0+4*i+2*h,2)}, {v(SM+4*i,2)} op_sel:[0,0] op_sel_hi:[1,0]')
        for h in range(2): AQ(f'v_pk_mul_f32 {v(O1+4*i+2*h,2)}, {v(O1+4*i+2*h,2)}, {v(SM+4*i,2)} op_sel:[0,0] op_sel_hi:[1,0]')
        for h in range(2): AQ(f'v_cvt_pk_bf16_f32 {v(OP+2*i+h)}, {v(O0+4*i+2*h)}, {v(O0+4*i+2*h+1)}')
        for h in range(2): AQ(f'v_cvt_pk_bf16_f32 {v(OL+2*i+h)}, {v(O1+4*i+2*h)}, {v(O1+4*i+2*h+1)}')
    for pr in range(2):
        for h in range(2): A(f'v_permlane16_swap_b32 {v(OP+4*pr+h)}, {v(OP+4*pr+2+h)}')
    for i in range(1, 4):
        for h in range(2): A(f'v_mov_b32_dpp {v(OL+h)}, {v(OL+2*i+h)} quad_perm:[0,1,2,3] row_mask:{1<<i:#x} bank_mask:0xf')

    def publish(stores, tag='pub', wt=False):
        if wt:
            for s in stores: A(s + ' sc1', tag=tag)
            P.busy(GAP * len(stores) // 2, True)
            return
        l1, l2 = P.lab('L_sl'), P.lab('L_j')
        A(f's_cmp_lg_u32 {sFAST}, 0'); A(f's_cbranch_scc1 {l1}')
        for s in stores: A(s, tag=tag)
        A(f's_branch {l2}'); A(f'{l1}:')
        P.track = False
        for s in stores: A(s + ' sc1 ; nocheck')
        P.track = True
        A(f'{l2}:')
        P.busy(GAP * len(stores) // 2, True)
    def setflag(val, tag='pub'):
        l1, l2 = P.lab('L_sl'), P.lab('L_j')
        A(f'v_mov_b32 {v(vFV)}, {val}')
        P.wait(vm=tag)
        A('s_mov_b64 exec, 1')
        A(f's_cmp_lg_u32 {sFAST}, 0'); A(f's_cbranch_scc1 {l1}')
        A(f'buffer_store_dword {v(vFV)}, {v(vFS)}, {srd(SWS)}, {sFLOFF} offen')
        A(f's_branch {l2}'); A(f'{l1}:')
        P.track = False
        A(f'buffer_store_dword {v(vFV)}, {v(vFS)}, {srd(SWS)}, {sFLOFF} offen sc1 ; nocheck')
        P.track = True
        A(f'{l2}:')
        A('s_mov_b64 exec, -1')
    vPT = 5
    def poll_issue(vaddr):
        A(f'buffer_load_dword {v(vPT)}, {v(vaddr)}, {srd(SWS)}, {sFLOFF} offen sc1', tag='poll')
    def poll_check(vaddr, val):
        l1, l2 = P.lab('L_poll'), P.lab('L_ok')
        P.wait(vm='poll')
        A(f's_mov_b32 {sCNT}, 0')
        A(f'{l1}:')
        A(f'v_cmp_gt_u32 vcc, {val}, {v(vPT)}')
        A(f's_cbranch_vccz {l2}')
        P.track = False
        A(f'buffer_load_dword {v(vPT)}, {v(vaddr)}, {srd(SWS)}, {sFLOFF} offen sc1 ; nocheck')
        A(f's_add_u32 {sCNT}, {sCNT}, 1'); A(f's_cmp_gt_u32 {sCNT}, {SPIN}'); A('s_cbranch_scc1 L_end')
        A('s_waitcnt vmcnt(0) ; nocheck'); A(f's_branch {l1}')
        P.track = True
        A(f'{l2}:')

    stamp('attn_end')
    P.scale = 1.0
    assert not any(any(isinstance(x, tuple) and x[1] in ('wo', 'xr') for x in it['ins']) for it in P.bg)
    publish([f'buffer_store_dwordx4 {v(OP,4)}, v13, {srd(SWS)}, {sT3} offen',
             f'buffer_store_dwordx4 {v(OP+4,4)}, v13, {srd(SWS)}, {sT4} offen',
             f'buffer_store_dwordx2 {v(OL,2)}, v15, {srd(SWS)}, {sT2} offen offset:2048'], wt=cfg.get('wt', 6) & 1)
    vPA = 2; vLB = [1, 3, 4]
    BF = 92; AC2 = 172; AR = 20; NAR = 18
    flush(cfg.get('f1', 10))
    A(f'v_and_b32 {v(vPA)}, 31, v0'); A(f'v_lshlrev_b32 {v(vPA)}, 2, {v(vPA)}')
    A(f'v_add_u32 v3, 65536, v1'); A(f'v_add_u32 v4, 131072, v1')
    P.wait(vm='xr')
    for j in range(5):
        for r in range(4):
            src = XR + (4*(j >> 1) + 2*(j & 1) + (r >> 1) if j < 4 else 8 + (r >> 1))
            if r & 1: A(f'v_and_b32 {v(AC2+4*j+r)}, 0xffff0000, {v(src)}')
            else: A(f'v_lshlrev_b32 {v(AC2+4*j+r)}, 16, {v(src)}')
    setflag(1)
    stamp('flag1')
    if stop == 1: return finish(P)
    flush(cfg.get('f2', 10))
    poll_issue(vPA)
    A('s_barrier')
    def wo_read(f):
        loc = wo_loc(f)
        return f'ds_read_b128 {v(AR+4*(f%NAR),4)}, {v(vLB[loc>>16])} offset:{loc & 0xffff}'
    for f in range(15): A(wo_read(f), tag=f'a{f}')
    A(f's_mul_i32 {sA}, {sW}, 20480'); A(f's_add_u32 {sA}, {sA}, {sOBASE}')
    poll_check(vPA, 1)
    stamp('poll1')
    def fix_solo():
        pass
    rest = P.bg
    if rest and not rest[0].get('solo'):
        f0 = int(rest[0]['ins'][-1][1].split('_')[1])
        rest[0]['ins'].insert(0, f's_add_u32 {sBG}, {sW1S}, {(f0//4)*4096}')
    P.bg = ld_items(lambda k: v(BF + 4*k, 4), sA, 'o', 0, 20) + rest
    flush(cfg.get('f3', 9))
    for k in range(20):
        while any(it['ins'][-1][1] == f'o{k}' for it in P.bg): tick(force=True)
        for j in range(5):
            f = 5*k + j
            P.wait(vm=f'o{k}' if j == 0 else None, lg=f'a{f}')
            A(f'{MF} {v(AC2+4*j,4)}, {v(AR+4*(f%NAR),4)}, {v(BF+4*k,4)}, {v(AC2+4*j,4)}')
            if f + 15 < 100: A(wo_read(f + 15), tag=f'a{f+15}')
            if k < cfg.get('quiet2', 20): tick()
    stamp('p2_mfma')
    HP = XR
    vHS, vT8 = 6, 7
    A(f'v_lshrrev_b32 {v(vHS)}, 5, v0'); A(f'v_lshlrev_b32 {v(vHS)}, 8, {v(vHS)}'); A(f'v_lshl_add_u32 {v(vHS)}, v16, 4, {v(vHS)}')
    A(f'v_lshlrev_b32 {v(vT8)}, 3, v16')
    A(f's_mul_i32 {sT2}, {sW}, 21504'); A(f's_add_u32 {sT2}, {sT2}, {sHBASE}')
    A(f's_mul_i32 {sT3}, {sM}, 2560'); A(f's_add_u32 {sT3}, {sT3}, {sT2}')
    A(f's_lshl_b32 {sT4}, {sM}, 7'); A(f's_add_u32 {sT4}, {sT4}, {sT2}'); A(f's_add_u32 {sT4}, {sT4}, 20480')
    for j in range(5):
        for h in range(2): A(f'v_cvt_pk_bf16_f32 {v(HP+2*j+h)}, {v(AC2+4*j+2*h)}, {v(AC2+4*j+2*h+1)}')
    for h in range(2): A(f'v_mov_b32 {v(24+h)}, {v(HP+8+h)}'); A(f'v_mov_b32 {v(26+h)}, {v(HP+8+h)}')
    for h in range(2): A(f'v_permlane16_swap_b32 {v(24+h)}, {v(26+h)}')
    publish([f'buffer_store_dwordx4 {v(HP,4)}, {v(vL16)}, {srd(SWS)}, {sT3} offen',
             f'buffer_store_dwordx4 {v(HP+4,4)}, {v(vL16)}, {srd(SWS)}, {sT3} offen offset:1024',
             f'buffer_store_dwordx4 v[24:27], {v(vHS)}, {srd(SWS)}, {sT3} offen offset:2048'], wt=cfg.get('wt', 6) & 2)
    for i in range(10):
        A(f'v_dot2_f32_bf16 v20, {v(HP+i)}, {v(ONES)}, {"v20" if i else 0}'); A(f'v_dot2_f32_bf16 v21, {v(HP+i)}, {v(HP+i)}, {"v21" if i else 0}')
    for sw in ('v_permlane16_swap_b32', 'v_permlane32_swap_b32'):
        for h in range(2): A(f'v_mov_b32 {v(22+h)}, {v(20+h)}')
        for h in range(2): A(f'{sw} {v(20+h)}, {v(22+h)}')
        for h in range(2): A(f'v_add_f32 {v(20+h)}, {v(20+h)}, {v(22+h)}')
    publish([f'buffer_store_dwordx2 v[20:21], {v(vT8)}, {srd(SWS)}, {sT4} offen'], wt=cfg.get('wt', 6) & 2)

    CS1 = 28; B1F = 40; AC3 = [52, 64]; BR = 76; NBR = 6
    W2V = 100; NW2V = 35
    NA0 = 4
    def w2reg(f):
        if f < NW2V: return v(W2V + 4*f, 4)
        if f < NW2V + NA0: return a(240 + 4*(f - NW2V), 4)
        return a(4*(f - NW2V - NA0), 4)
    NPRE = NW2V + NA0
    P.bg += [dict(ins=['v_lshlrev_b32 v13, 4, v14', 'v_lshlrev_b32 v15, 3, v14',
                       f's_mul_i32 {sB}, {sM}, 384', f's_mul_i32 {sC}, {sW}, 96', f's_add_u32 {sB}, {sB}, {sC}',
                       (f'buffer_load_dwordx4 {v(AC3[1],4)}, v13, {srd(SB1)}, {sB} offen', 'b1'),
                       (f'buffer_load_dwordx2 {v(AC3[1]+4,2)}, v15, {srd(SB1)}, {sB} offen offset:64', 'b1')], gap=GAP, solo=True)]
    P.bg += ld_items(w2reg, sW2S, 'w2_', 0, NPRE)
    cs_next = [0]
    def colsum(n):
        for _ in range(n):
            f = cs_next[0]
            if f >= 60: return
            while any(it['ins'][-1][1] == f'w1_{f}' for it in P.bg): tick(force=True)
            P.wait(vm=f'w1_{f}')
            j = f % 3
            A(f'{MF} {v(CS1+4*j,4)}, {w1reg(f)}, {v(ONES,4)}, {"0" if f < 3 else v(CS1+4*j,4)}'); tick()
            cs_next[0] += 1
    flush(cfg.get('f6', 6))
    colsum(cfg.get('c1', 24))
    setflag(2)
    stamp('flag2')
    if stop == 2: return finish(P)
    flush(cfg.get('f7', 6))
    colsum(cfg.get('c2', 16))
    poll_issue(vPA)
    A('s_barrier')
    A(f's_mul_i32 {sT2}, {sW}, 21504'); A(f's_add_u32 {sT3}, {sT2}, {sHBASE}'); A(f's_add_u32 {sT3}, {sT3}, 20480')
    A(f's_mul_i32 {sA}, {sW}, 5120'); A(f's_add_u32 {sD}, {sA}, {sHBASE}')
    vST = 8
    A(f'v_lshlrev_b32 {v(vST)}, 8, v14'); A(f'v_add_u32 {v(vST)}, {v(vST)}, {v(vT8)}'); A(f'v_add_u32 {v(vST)}, 20480, {v(vST)}')
    A(f's_add_u32 m0, {sT2}, 20480')
    poll_check(vPA, 2)
    stamp('poll2')
    A(f'buffer_load_dwordx4 {v(vL16)}, {srd(SWS)}, {sT3} offen sc1 lds', tag='h0')
    hit = []
    for T in range(4):
        for i in range(5):
            ins = []
            if i in (0, 4): ins = [f's_add_u32 m0, {sA}, {T*21504 + i*1024}', f's_add_u32 {sT3}, {sD}, {T*21504 + i*1024}']
            ins.append((f'buffer_load_dwordx4 {v(vL16)}, {srd(SWS)}, {sT3} offen offset:{(i%4)*1024} sc1 lds', f'h{T}'))
            hit.append(dict(ins=ins, gap=GAP))
    P.bg = hit + P.bg
    flush(cfg.get('f4', 10))
    colsum(60)
    A(f's_mul_i32 {sT2}, {sM}, 6144'); A(f's_mul_i32 {sT5}, {sW}, 1536'); A(f's_add_u32 {sT2}, {sT2}, {sT5}'); A(f's_add_u32 {sT5}, {sT2}, {sH1BASE}')
    def h_read(n):
        loc = (n // 20)*21504 + (n % 20)*1024
        return f'ds_read_b128 {v(BR+4*(n%NBR),4)}, {v(vLB[loc>>16])} offset:{loc & 0xffff}'
    def epi3(T):
        ac = AC3[T & 1]; L = []
        L.append((f'ds_read_b64 v[20:21], {v(vST)} offset:{T*21504}', 'st'))
        L.append((f'ds_read_b64 v[22:23], {v(vST)} offset:{T*21504+128}', 'st'))
        L.append(None); L.append(None); L.append(None); L.append(None)
        L.append(lambda: P.wait(lg='st'))
        for h in range(2): L.append(f'v_add_f32 {v(20+h)}, {v(20+h)}, {v(22+h)}')
        for sw in ('v_permlane16_swap_b32', 'v_permlane32_swap_b32'):
            for h in range(2): L.append(f'v_mov_b32 {v(22+h)}, {v(20+h)}')
            for h in range(2): L.append(f'{sw} {v(20+h)}, {v(22+h)}')
            for h in range(2): L.append(f'v_add_f32 {v(20+h)}, {v(20+h)}, {v(22+h)}')
        L += [f'v_mul_f32 v20, {f2u(-1.0/640):#x}, v20', f'v_mul_f32 v21, {f2u(1.0/640):#x}, v21', 'v_fma_f32 v21, -v20, v20, v21',
              'v_max_f32 v21, 0, v21', f'v_add_f32 v21, {f2u(1e-5):#x}, v21', 'v_rsq_f32 v21, v21']
        split = len(L)
        for i in range(12): L.append(f'v_fma_f32 {v(ac+i)}, v20, {v(CS1+i)}, {v(ac+i)}')
        for i in range(12): L.append(f'v_fma_f32 {v(ac+i)}, {v(ac+i)}, v21, {v(B1F+i)}')
        for i in range(12): L.append(f'v_max_f32 {v(ac+i)}, 0, {v(ac+i)}')
        for i in range(12): L.append(f'v_mul_f32 {v(ac+i)}, {v(ac+i)}, {v(ac+i)}')
        for i in range(4): L.append(f'v_cvt_pk_bf16_f32 {v(20+i)}, {v(ac+2*i)}, {v(ac+2*i+1)}')
        for i in range(2):
            L.append(f'v_cvt_pk_bf16_f32 {v(24+i)}, {v(ac+8+2*i)}, {v(ac+8+2*i+1)}')
            L.append(f'v_cvt_pk_bf16_f32 {v(26+i)}, {v(ac+8+2*i)}, {v(ac+8+2*i+1)}')
        for h in range(2): L.append(f'v_permlane16_swap_b32 {v(24+h)}, {v(26+h)}')
        def pub():
            A(f's_add_u32 {sT4}, {sT5}, {T*49152}')
            publish([f'buffer_store_dwordx4 v[20:23], {v(vL16)}, {srd(SWS)}, {sT4} offen',
                     f'buffer_store_dwordx4 v[24:27], {v(vHS)}, {srd(SWS)}, {sT4} offen offset:1024'], tag=f'pub{T}', wt=cfg.get('wt', 6) & 4)
        L.append(pub)
        return L[:split], L[split:]
    def emit_item(it):
        if it is None: return
        if callable(it): it()
        elif isinstance(it, tuple): A(it[0], tag=it[1])
        else: A(it)
    def drain_tag(tag):
        while any(it['ins'][-1][1] == tag for it in P.bg): tick(force=True)
    PRE = 4
    drain_tag('h0'); P.wait(vm='h0'); A('s_barrier')
    stamp('p3_t0')
    for n in range(PRE): A(h_read(n), tag=f'b{n}')
    BB = [84, 132, 180]
    vP4a = 9; vRW = 10
    b1u = [lambda: (drain_tag('b1'), P.wait(vm='b1'))]
    for j in range(3):
        for r in range(4):
            src = AC3[1] + 2*j + (r >> 1)
            b1u.append(f'v_and_b32 {v(B1F+4*j+r)}, 0xffff0000, {v(src)}' if r & 1 else f'v_lshlrev_b32 {v(B1F+4*j+r)}, 16, {v(src)}')
    p4c = [f'v_and_b32 {v(vP4a)}, 7, v0', f'v_lshlrev_b32 {v(vP4a)}, 2, {v(vP4a)}', f's_lshl_b32 {sT2}, {sW}, 5', f'v_add_u32 {v(vP4a)}, {sT2}, {v(vP4a)}',
           f's_mul_i32 {sB}, {sW}, 12288', f's_add_u32 {sB}, {sB}, {sH1BASE}',
           f's_mul_i32 {sT2}, {sW}, 5120', f'v_add_u32 {v(vRW)}, {sT2}, v1', f'v_add_u32 v12, 40960, {v(vRW)}',
           f's_mul_i32 {sT2}, {sW}, 20480', f'v_add_u32 v11, {sT2}, v1']
    pend = [None]*40 + b1u + p4c + epi3(0)[0]
    FD = cfg.get('fd', 12)
    for T in range(4):
        ac = AC3[T & 1]
        for k in range(20):
            n = 20*T + k
            if k == 20 - PRE and T < 3:
                drain_tag(f'h{T+1}'); P.wait(vm=f'h{T+1}'); A('s_barrier')
            if k == cfg.get('fk', 4) and T >= 2: setflag(3 + T - 2, f'pub{T-2}')
            if T == 3 and k >= 2:
                lo = NPRE + 3*(k - 2); hi = min(60, lo + 3)
                if lo < 60: P.bg += ld_items(w2reg, sW2S, 'w2_', lo, hi, gap=cfg.get('g3', 32))
            for j in range(3):
                if j == 0: P.wait(lg=f'b{n}')
                A(f'{MF} {v(ac+4*j,4)}, {w1reg(3*k+j)}, {v(BR+4*(n%NBR),4)}, {"0" if k == 0 else v(ac+4*j,4)}')
                slots = 2
                if j == 0 and n + PRE < 80: A(h_read(n + PRE), tag=f'b{n+PRE}'); slots = 1
                if tick(): slots = 0
                if k >= 1 or j == 2:
                    for _ in range(slots):
                        if pend: emit_item(pend.pop(0))
        while pend: emit_item(pend.pop(0))
        pend = epi3(T)[1] + (epi3(T + 1)[0] if T < 3 else [])
        stamp(f'p3_e{T}', 1 if T == 3 else 2)
    setflag(5, 'pub2')
    poll_issue(vP4a)
    while pend: emit_item(pend.pop(0)); tick()
    if stop == 3:
        setflag(6, 'pub3'); return finish(P)

    AC4 = [28, 52]
    def h1_items(T):
        L = []
        for kk in range(12):
            ins = [f's_add_u32 {sC}, {sB}, {T*49152 + kk*1024}'] if kk % 4 == 0 else []
            ins.append((f'buffer_load_dwordx4 {a(BB[T%3]+4*kk,4)}, {v(vL16)}, {srd(SWS)}, {sC} offen offset:{(kk%4)*1024} sc1', f'g{T}_{kk}'))
            L.append(dict(ins=ins, gap=cfg.get('g4', 32)))
        return L
    poll_check(vP4a, 4)
    stamp('poll4')
    P.bg = h1_items(0) + P.bg + h1_items(1)
    flush(cfg.get('f5', 8))
    A('s_barrier')
    setflag(6, 'pub3')
    stamp('flag6')
    P.bg += [dict(ins=[f's_mul_i32 {sT2}, {sM}, 160',
                       (f'buffer_load_dwordx4 v[76:79], v13, {srd(SB2)}, {sT2} offen', 'b2'),
                       (f'buffer_load_dwordx4 v[80:83], v13, {srd(SB2)}, {sT2} offen offset:64', 'b2'),
                       (f'buffer_load_dwordx2 v[84:85], v15, {srd(SB2)}, {sT2} offen offset:128', 'b2')], gap=GAP)]
    pend = []
    for T in range(4):
        ac = AC4[T & 1]
        for kk in range(12):
            if T < 2 and kk == cfg.get('pi', 4): poll_issue(vP4a)
            if T < 2 and kk == cfg.get('pc', 10):
                poll_check(vP4a, 5 + T); P.bg += h1_items(T + 2)
            drain_tag(f'g{T}_{kk}')
            for j in range(5):
                f = 5*kk + j
                if T == 0: drain_tag(f'w2_{f}')
                P.wait(vm=[f'g{T}_{kk}', f'w2_{f}'])
                A(f'{MF} {v(ac+4*j,4)}, {w2reg(f)}, {a(BB[T%3]+4*kk,4)}, {"0" if kk == 0 else v(ac+4*j,4)}')
                if not tick() and pend and kk >= 2: emit_item(pend.pop(0))
        stamp(f'p4_t{T}')
        assert T == 3 or not pend
        pend = [f'ds_write_b128 {v(vRW if T < 2 else 12)}, {v(ac+4*j,4)} offset:{(T%2)*20480 + j*1024}' for j in range(5)]
        if T == 2:
            pend.append(lambda: P.wait(vm='b2'))
            for j in range(5):
                for r in range(4):
                    o = (4*(j >> 1) + 2*(j & 1) + (r >> 1) if j < 4 else 8 + (r >> 1))
                    if r & 1: pend += [f'v_and_b32 {v(28+4*j+r)}, 0xffff0000, {v(76+o)}', f'v_and_b32 v20, 0xffff0000, {v(HP+2*j+(r>>1))}']
                    else: pend += [f'v_lshlrev_b32 {v(28+4*j+r)}, 16, {v(76+o)}', f'v_lshlrev_b32 v20, 16, {v(HP+2*j+(r>>1))}']
                    pend.append(f'v_add_f32 {v(28+4*j+r)}, {v(28+4*j+r)}, v20')
            pend += ['v_mul_u32_u24 v17, 1280, v16', 'v_add_u32 v13, v13, v17', 'v_add_u32 v15, v15, v17']
            keep = pend
        if T == 3:
            pend = keep + pend
    while pend: emit_item(pend.pop(0))
    P.wait(lg=0); A('s_barrier')
    RD = 100
    for w in range(4):
        for j in range(5): A(f'ds_read_b128 {v(RD+20*w+4*j,4)}, v11 offset:{w*5120 + j*1024}', tag=f'r{w}')
    for w in range(4):
        P.wait(lg=f'r{w}')
        for i in range(10): A(f'v_pk_add_f32 {v(28+2*i,2)}, {v(28+2*i,2)}, {v(RD+20*w+2*i,2)}')
    for i in range(10): A(f'v_cvt_pk_bf16_f32 {v(48+i)}, {v(28+2*i)}, {v(28+2*i+1)}')
    A(f'buffer_store_dwordx4 v[48:51], v13, {srd(SOUT)}, {sXT[1]} offen {cfg.get("ofl", "")}')
    A(f'buffer_store_dwordx4 v[52:55], v13, {srd(SOUT)}, {sXT[1]} offen offset:64 {cfg.get("ofl", "")}')
    A(f'buffer_store_dwordx2 v[56:57], v15, {srd(SOUT)}, {sXT[1]} offen offset:128 {cfg.get("ofl", "")}')
    stamp('stored')
    if prof: P.wait(vm=0)
    stamp('end')
    assert not P.bg
    return finish(P)

def finish(P):
    if P.prof:
        P('s_memrealtime s[100:101]'); P.wait(lg=0); P(f'v_writelane_b32 v19, s100, {len(P.stamps)}'); P.stamps.append('rt1')
        P(f's_lshl_b32 s100, s2, 2'); P(f's_add_u32 s100, s100, {sW}'); P('s_lshl_b32 s100, s100, 8'); P(f's_add_u32 s100, s100, {PROFB}')
        P('v_lshlrev_b32 v18, 2, v0'); P(f'buffer_store_dword v19, v18, {srd(SWS)}, s100 offen')
        P.L.insert(0, '; stamps: ' + ' '.join(P.stamps))
    P('L_end:')
    body = P.finish()
    hdr = f"""; generated by gen/gen3.py
; @launch grid=(256,1,1) block=(256,1,1) lds={LDS_TOTAL}
.amdgcn_target "amdgcn-amd-amdhsa--gfx950"
.text
.globl {NAME}_kernel
.p2align 8
.type {NAME}_kernel,@function
{NAME}_kernel:
"""
    ftr = f"""
s_endpgm
.section .rodata,"a"
.p2align 6
.amdhsa_kernel {NAME}_kernel
  .amdhsa_next_free_vgpr 512
  .amdhsa_next_free_sgpr 102
  .amdhsa_accum_offset 256
  .amdhsa_group_segment_fixed_size 0
  .amdhsa_kernarg_size 88
  .amdhsa_user_sgpr_count 2
  .amdhsa_user_sgpr_kernarg_segment_ptr 1
  .amdhsa_system_sgpr_workgroup_id_x 1
.end_amdhsa_kernel
"""
    print('model time', P.t, 'nops', P.nnops, 'short waits', P.warn, file=sys.stderr)
    return hdr + body + ftr

if __name__ == '__main__':
    out = sys.argv[1]
    stop = int(sys.argv[2]) if len(sys.argv) > 2 else 99
    cfg = eval(sys.argv[3]) if len(sys.argv) > 3 else {}
    s = gen(stop, cfg)
    if cfg.get('prof'): s = f'; cfg {cfg}\n' + s
    open(out, 'w').write(s)
    print('lines', s.count('\n'))
```

```python
import sys, math, struct
from asmlib import Prog
NAME = "sequential_preLN__sliding_local_dilated__dense_activation_squared_relu__prompt"

FL = 0
WO = 0x10000
W1 = WO + 800 * 1024
W2 = W1 + 1920 * 1024
OB = W2 + 1920 * 1024
HB = OB + 128 * 20480
H1B = HB + 128 * 21504
PROFB = H1B + 128 * 49152
WS_END = PROFB + 1024 * 256

SLOT = 15424; HALF = 7712; NSLOT = 6
XB = NSLOT * SLOT
XS = 20480
PS = XB + 2 * XS
LDS_TOTAL = 163840
PP = 832

SX, SWQ, SWS, SP0, SOUT, SDBG, SB1, SB2, SPD = 4, 8, 12, 16, 20, 24, 28, 32, 36
def srd(b): return f's[{b}:{b+3}]'
sW, sM, sRB = 's40', 's41', 's42'
sXT = ['s43', 's44', 's45', 's46', 's47']
sWM0, sXM0 = 's48', 's49'
sW0, sW1h = 's50', 's51'
sT2, sT3, sT4, sT5 = 's52', 's53', 's54', 's55'
sEXW = 's[56:57]'; sEXT0 = 's[58:59]'
sFAST, sFLOFF, sCNT, sXCC = 's60', 's61', 's62', 's63'
sOFF, sBG, sWOS, sW1S = 's96', 's97', 's98', 's99'
sW10 = 's3'
sJ = 's60'; sROT = ['s88', 's89', 's90', 's91']
CPF = 13
sOBASE, sHBASE, sH1BASE, sW2S = 's64', 's65', 's66', 's67'
sM1, sM3, sM23 = 's[68:69]', 's[70:71]', 's[72:73]'
sA, sB, sC, sD = 's74', 's75', 's76', 's77'

def v(i, n=1): return f'v{i}' if n == 1 else f'v[{i}:{i+n-1}]'
def a(i, n=1): return f'a{i}' if n == 1 else f'a[{i}:{i+n-1}]'
MF = 'v_mfma_f32_16x16x32_bf16'
SPIN = 200000
f2u = lambda f: struct.unpack('<I', struct.pack('<f', f))[0]

def pk_bc(reg):
    return v(reg & ~1, 2), reg & 1

def WOROWS(A, L):
    u1, u2, u3, u4, u5, sPR = L['u1'], L['u2'], L['u3'], L['u4'], L['u5'], L['sPR']
    A(f's_mul_i32 {u2}, {u1}, 205'); A(f's_lshr_b32 {u2}, {u2}, 10')
    A(f's_mul_i32 {u4}, {u2}, 5'); A(f's_sub_u32 {u1}, {u1}, {u4}')
    A(f's_mul_i32 {u2}, {u2}, 80')
    A(f's_mul_i32 {u4}, {u1}, 20'); A(f's_add_u32 {u4}, {u4}, {u3}')
    A(f's_mul_i32 {u5}, {sW1h}, 20'); A(f's_add_u32 {u5}, {u5}, 16')
    A(f's_cmp_lt_u32 {u1}, 4'); A(f's_cselect_b32 {u4}, {u4}, {u5}'); A(f's_cselect_b32 {sPR[1]}, 8, 40'); A(f's_add_u32 {sPR[0]}, {u2}, {u4}')

def gen(stop=99, cfg=None):
    cfg = cfg or {}
    P = Prog(); A = P
    tick = P.tick
    GAP = cfg.get('gap', 72)
    vL16 = 1
    vWO = [2, 3, 4, 5]; vXO = 6; vAR = [7, 8]; vAX = [9, 10]; vB = [11, 12, 224, 225]
    FA = [20, 36]; FB = [52, 72]
    ACC = 92; GR = 172
    acc = lambda F, T: ACC + (T * 4 + F) * 4
    vFS = 254; vFV = 255; ONES = 240; XR = 244
    prof = cfg.get('prof'); P.stamps = ['entry', 'rt0']; P.prof = prof; P.hprof = cfg.get('hprof')
    def stamp(name, lvl=1):
        if not prof or prof < lvl: return
        A('s_memtime s[100:101]'); P.wait(lg=0)
        A(f'v_writelane_b32 v19, s100, {len(P.stamps)}'); P.stamps.append(name)
    def AT(*ins):
        for x in ins: A(x); tick()
    if prof: A('s_memtime s[92:93]'); A('s_memrealtime s[94:95]')
    KA = 76
    A(f's_load_dwordx16 s[{KA}:{KA+15}], s[0:1], 0')
    A(f's_load_dwordx2 s[{SWS}:{SWS+1}], s[0:1], 80')
    A(f's_load_dwordx2 s[{SOUT}:{SOUT+1}], s[0:1], 64')
    A(f's_load_dwordx2 s[{SDBG}:{SDBG+1}], s[0:1], 72')
    A('s_cmp_ge_u32 s2, 256')
    A('s_cbranch_scc1 L_end')
    if cfg.get('empty'): A('s_branch L_end')
    A('v_lshrrev_b32 v13, 6, v0')
    A('v_and_b32 v0, 63, v0')
    A(f'v_readfirstlane_b32 {sW}, v13')
    A('v_lshlrev_b32 v1, 4, v0')
    A('v_lshlrev_b32 v17, 7, v0')
    A(f's_bfe_u32 {sM}, s2, 0x30003')
    if not cfg.get('nopf'):
        A('s_getpc_b64 s[64:65]'); A('L_pc:')
        A(f's_lshl_b32 {sT2}, {sM}, 2'); A(f's_add_u32 {sT2}, {sT2}, {sW}'); A(f's_mul_i32 {sT2}, {sT2}, {CPF*128}')
        A(f'v_add_u32 v13, {sT2}, v17'); A('v_min_u32 v13, L_end-L_pc, v13')
        A(f's_mov_b64 exec, {(1 << CPF) - 1:#x}')
        A('global_load_dword v253, v13, s[64:65]', tag='pf')
        A('s_mov_b64 exec, -1')
    for b, n in ((SX, 2621440), (SWQ, 2457600), (SWS, WS_END), (SOUT, 2621440), (SDBG, 256), (SB1, 3072), (SB2, 1280)):
        A(f's_mov_b32 s{b+2}, {n}'); A(f's_mov_b32 s{b+3}, 0x20000')
    A(f's_mov_b32 s{SP0+3}, 0x20000'); A(f's_mov_b32 s{SPD+3}, 0x20000')
    A(f's_and_b32 {sRB}, s2, 7'); A(f's_lshl_b32 {sRB}, {sRB}, 2'); A(f's_lshr_b32 {sJ}, s2, 6'); A(f's_add_u32 {sRB}, {sRB}, {sJ}')
    A(f's_mul_i32 {sXT[1]}, {sRB}, {64*1280}')
    A(f's_and_b32 {sW0}, {sW}, 1'); A(f's_lshr_b32 {sW1h}, {sW}, 1')
    sPR = ['s64', 's65']; sPP, sPD0, sPD1, sPD2, sPTYPE = 's66', 's67', 's68', 's69', 's70'
    sEXP = 's[72:73]'; kap, part = 's74', 's75'
    u0, u1, u2, u3, u4, u5 = 's96', 's97', 's98', 's99', 's71', 's62'
    A(f's_mov_b32 {sPTYPE}, 0')
    A(f's_mov_b32 {sT2}, s2')
    A(f's_mov_b32 s{SP0+2}, 819200'); A(f's_mov_b32 s{SPD+2}, {WS_END}')
    A(f's_mov_b32 {sPP}, 1280'); A(f's_mov_b32 s72, -1'); A(f's_mov_b32 s73, 0xff')
    A(f's_mov_b32 {sT4}, 20'); A(f's_mov_b32 {sT5}, {WO}')
    A('s_cmp_lt_u32 s2, 40'); A('s_cbranch_scc1 L_p0t')
    A(f's_mov_b32 {sPTYPE}, 1'); A(f's_sub_u32 {sT2}, s2, 40')
    A(f's_mov_b32 s{SP0+2}, 1966080')
    A(f's_mov_b32 {sT4}, 48'); A(f's_mov_b32 {sT5}, {W2}')
    A('s_cmp_lt_u32 s2, 136'); A('s_cbranch_scc1 L_p0t')
    A(f's_mov_b32 {sPTYPE}, 2'); A(f's_sub_u32 {sT2}, s2, 136')
    A(f's_mov_b32 {sPP}, 3072'); A(f's_mov_b32 s73, 0xffff')
    A('s_cmp_lt_u32 s2, 216'); A('s_cbranch_scc1 L_p0t')
    A(f's_mov_b32 s{SP0+2}, 0'); A(f's_mov_b32 s{SPD+2}, 0')
    A('L_p0t:')
    A(f's_lshr_b32 {kap}, {sT2}, 1'); A(f's_and_b32 {part}, {sT2}, 1')
    A(f's_lshr_b32 {sT3}, {sT2}, 2'); A(f's_and_b32 {u0}, {sT2}, 3')
    A(f's_cmp_eq_u32 {sPTYPE}, 2'); A(f's_cselect_b32 {kap}, {sT3}, {kap}'); A(f's_cselect_b32 {part}, {u0}, {part}')
    A(f's_cselect_b32 {u0}, 6, 5'); A(f's_mul_i32 {u0}, {u0}, {part}'); A(f's_lshl_b32 {u0}, {u0}, 7')
    A(f's_lshl_b32 {u1}, {kap}, 1'); A(f's_add_u32 {u1}, {u1}, {sW0}')
    A(f's_lshl_b32 {u2}, {u1}, 4'); A(f's_lshl_b32 {u3}, {sW1h}, 2'); A(f's_add_u32 {sPR[0]}, {u2}, {u3}')
    A(f's_mov_b32 {sPR[1]}, 8')
    A(f's_cmp_lg_u32 {sPTYPE}, 0'); A('s_cbranch_scc1 L_p0r')
    WOROWS(A, locals())
    A('L_p0r:')
    A(f's_add_u32 {sPR[1]}, {sPR[1]}, {sPR[0]}')
    for e in range(2): A(f's_mul_i32 {sPR[e]}, {sPR[e]}, {sPP}'); A(f's_add_u32 {sPR[e]}, {sPR[e]}, {u0}')
    A(f's_mul_i32 {u1}, {sW}, {8*PP}')
    A(f's_lshl_b32 {sT2}, s2, 2'); A(f's_add_u32 {sT2}, {sT2}, {sW}'); A(f's_mul_i32 {sT2}, {sT2}, {19*128}')
    A(f's_lshl_b32 {sT3}, {sM}, 2'); A(f's_add_u32 {sT3}, {sT3}, {sW}'); A(f's_mul_i32 {sT3}, {sT3}, 2560'); A(f's_add_u32 {sT3}, {sT3}, {sXT[1]}')
    P.wait(lg=0)
    if prof: A('v_writelane_b32 v19, s92, 0'); A('v_writelane_b32 v19, s94, 1')
    A(f's_mov_b64 s[{SWQ}:{SWQ+1}], s[{KA+2}:{KA+3}]'); A(f's_mov_b64 s[{SX}:{SX+1}], s[{KA}:{KA+1}]')
    A(f's_mov_b64 exec, 0x7ffff')
    A(f'buffer_load_dword v252, v17, {srd(SWQ)}, {sT2} offen', tag='pf')
    A(f's_mov_b64 exec, 0xfffff')
    if not cfg.get('noxpf'): A(f'buffer_load_dword v251, v17, {srd(SX)}, {sT3} offen {cfg.get("xpfl", "")}', tag='pf')
    A(f's_cmp_eq_u32 {sPTYPE}, 0'); A(f's_cselect_b64 s[{SP0}:{SP0+1}], s[{KA+4}:{KA+5}], s[{KA+12}:{KA+13}]')
    A(f's_cmp_eq_u32 {sPTYPE}, 2'); A(f's_cselect_b64 s[{SP0}:{SP0+1}], s[{KA+8}:{KA+9}], s[{SP0}:{SP0+1}]')
    A(f's_mov_b64 exec, {sEXP}')
    for e in range(2):
        for r in range(4):
            A(f's_add_u32 m0, {u1}, {PS + (4*e + r)*PP}')
            if r: A(f's_add_u32 {sPR[e]}, {sPR[e]}, {sPP}')
            A(f'buffer_load_dwordx4 {v(vL16)}, {srd(SP0)}, {sPR[e]} offen {cfg.get("p0fl", "nt")} lds', tag='p0')
    A('s_mov_b64 exec, -1')
    stamp('issp', 2)
    A(f's_mov_b64 s[{SPD}:{SPD+1}], s[{SWS}:{SWS+1}]')
    A(f's_mov_b64 s[{SB1}:{SB1+1}], s[{KA+10}:{KA+11}]'); A(f's_mov_b64 s[{SB2}:{SB2+1}], s[{KA+14}:{KA+15}]')
    A(f's_sub_u32 {sXT[0]}, {sXT[1]}, {16*1280}'); A(f's_cselect_b32 {sXT[0]}, 0, {sXT[0]}')
    for T in range(2, 5): A(f's_add_u32 {sXT[T]}, {sXT[1]}, {(T-1)*16*1280}')
    A(f's_mul_i32 {sT2}, {sW0}, {8*1280}'); A(f's_lshl_b32 {sT3}, {sW1h}, 7'); A(f's_add_u32 {sT2}, {sT2}, {sT3}')
    A('v_lshrrev_b32 v13, 3, v0'); A(f'v_mul_u32_u24 v13, 1280, v13')
    A('v_lshrrev_b32 v14, 4, v0')
    A(f's_lshl_b32 {sT3}, {sW0}, 2')
    A(f'v_add_u32 v15, {sT3}, v14'); A('v_and_b32 v16, 7, v0'); A('v_xor_b32 v15, v15, v16')
    A(f'v_lshl_add_u32 v13, v15, 4, v13'); A(f'v_add_u32 {v(vXO)}, {sT2}, v13')
    A(f's_mul_i32 {sXM0}, {sW1h}, 10240'); A(f's_lshl_b32 {sT3}, {sW0}, 10'); A(f's_add_u32 {sXM0}, {sXM0}, {sT3}')
    A(f's_mov_b32 s59, -1'); A(f's_cmp_eq_u32 {sW0}, 0'); A(f's_cselect_b32 s58, 0xffffff00, -1')
    A('v_cmp_lt_u32 vcc, 29, v0'); A('v_cndmask_b32 v13, 0, 1, vcc')
    A('v_mul_u32_u24 v15, 30, v13'); A('v_sub_u32 v15, v0, v15')
    A('v_mul_u32_u24 v16, 26, v15'); A('v_lshrrev_b32 v16, 8, v16')
    A('v_mul_u32_u24 v13, 3840, v13')
    A('v_mul_u32_u24 v16, 1120, v16')
    A('v_lshl_add_u32 v13, v15, 4, v13'); A('v_add_u32 v13, v13, v16')
    A(f's_lshl_b32 {sT2}, {sW0}, 4'); A(f's_lshl_b32 {sT3}, {sW1h}, 2'); A(f's_add_u32 {sT2}, {sT2}, {sT3}')
    A(f's_mul_i32 {sT2}, {sT2}, 3840'); A(f's_mul_i32 {sT3}, {sM}, 160'); A(f's_add_u32 {sT2}, {sT2}, {sT3}')
    A(f'v_add_u32 {v(vWO[0])}, {sT2}, v13')
    for q in range(1, 4): A(f'v_add_u32 {v(vWO[q])}, {(8*(q>>1)+2*(q&1))*3840}, {v(vWO[0])}')
    A(f's_mul_i32 {sWM0}, {sW1h}, {HALF}'); A(f's_mul_i32 {sT3}, {sW0}, {8*480}'); A(f's_add_u32 {sWM0}, {sWM0}, {sT3}')
    A(f's_mov_b32 s56, -1'); A(f's_mov_b32 s57, 0x0fffffff')
    if cfg.get('norot'): A(f's_mov_b32 {sJ}, 0')
    for p in range(4):
        A(f's_add_u32 {sROT[p]}, {sJ}, {p}'); A(f's_and_b32 {sROT[p]}, {sROT[p]}, 3'); A(f's_mul_i32 {sROT[p]}, {sROT[p]}, {32*3840}')

    XG = cfg.get('xgap', 60); WG = cfg.get('wgap', 80)
    def xdma(S, avail=-1):
        L = []
        for T in range(5):
            ins = [f's_add_u32 m0, {sXM0}, {XB + (S % 2)*XS + T*2048 - S*256}']
            if T == 0: ins.append(f's_mov_b64 exec, {sEXT0}')
            ins.append((f'buffer_load_dwordx4 {v(vXO)}, {srd(SX)}, {sXT[T]} offen offset:{S*256} {cfg.get("xfl", "")} lds', f'x{S}'))
            if T == 0: ins.append('s_mov_b64 exec, -1')
            L.append(dict(ins=ins, avail=avail, gap=XG))
        return L
    def wdma(ks, avail=-1):
        L = []
        for q in range(4):
            ins = [f's_add_u32 {sOFF}, {sROT[ks % 4]}, {(ks//4)*4*32*3840}'] if q == 0 else []
            ins += [f's_add_u32 m0, {sWM0}, {(ks % NSLOT)*SLOT + 2*q*480}', f's_mov_b64 exec, {sEXW}',
                    (f'buffer_load_dwordx4 {v(vWO[q])}, {srd(SWQ)}, {sOFF} offen {cfg.get("wfl", "")} lds', f'w{ks}'), 's_mov_b64 exec, -1']
            L.append(dict(ins=ins, avail=avail, gap=WG))
        return L
    def flush(n=10**9):
        while n > 0 and tick(force=True): n -= 1
    P.bg = wdma(0) + xdma(0) + wdma(1); flush()
    stamp('iss0', 2)
    A(f's_lshl_b32 {sFLOFF}, {sRB}, 7')
    A(f's_lshl_b32 {sT2}, {sM}, 4'); A(f's_lshl_b32 {sT3}, {sW}, 2'); A(f's_add_u32 {sT2}, {sT2}, {sT3}')
    A(f'v_mov_b32 {v(vFS)}, {sT2}'); A(f'v_mov_b32 {v(vFV)}, 0')
    A('s_mov_b64 exec, 1')
    A(f'buffer_store_dword {v(vFV)}, {v(vFS)}, {srd(SWS)}, {sFLOFF} offen sc1', tag='p0s')
    A('s_mov_b64 exec, -1')
    bg = wdma(2) + wdma(3) + xdma(1) + wdma(4) + wdma(5)
    for ks in range(6, 20):
        if ks in (9, 13, 17): bg += xdma((ks - 1) // 4, ks - 6)
        bg += wdma(ks, ks - 6)
    P.bg = bg; P.step = -1
    A(f's_lshl_b32 s77, {part}, 2'); A(f's_add_u32 s77, s77, {sW}')
    A(f's_mul_i32 s78, s77, {sT4}'); A(f's_add_u32 s78, s78, {kap}'); A('s_mul_i32 s78, s78, 5120'); A(f's_add_u32 {sPD0}, s78, {sT5}')
    A(f's_add_u32 {sPD1}, {sPD0}, 3072')
    A('s_mul_i32 s78, s77, 40'); A(f's_add_u32 s78, s78, {kap}'); A('s_mul_i32 s78, s78, 3072'); A(f's_add_u32 s78, s78, {W1}')
    A('s_add_u32 s79, s78, 61440')
    A(f's_cmp_eq_u32 {sPTYPE}, 2'); A(f's_cselect_b32 {sPD0}, s78, {sPD0}'); A(f's_cselect_b32 {sPD1}, s79, {sPD1}')
    A(f's_cselect_b32 {sPD2}, s79, 0x40000000')
    A('s_cselect_b64 vcc, -1, 0'); A('s_cselect_b32 s79, 24, 0')
    A('s_cselect_b32 s78, 6, 5'); A(f's_mul_i32 s78, s78, {sW}'); A('s_lshl_b32 s78, s78, 5'); A(f's_add_u32 s78, s78, {PS}')
    tick()
    vP, vS, vP2, vP3, vP4 = 192, 193, 194, 195, 220
    AT('v_lshrrev_b32 v13, 2, v0', 'v_and_b32 v15, 3, v0',
       f'v_mul_u32_u24 v16, {PP}, v13', f'v_add_u32 v16, s78, v16',
       f'v_lshl_add_u32 {v(vP)}, v15, 4, v16', f'v_lshl_add_u32 {v(vS)}, v15, 3, v16',
       f'v_cndmask_b32 {v(vP2)}, {v(vP)}, {v(vS)}, vcc', f'v_add_u32 {v(vP3)}, s79, {v(vP)}',
       f'v_add_u32 v16, 24, {v(vS)}', f'v_cndmask_b32 {v(vP4)}, v16, {v(vP)}, vcc',
       f's_mul_i32 {sT2}, {sW}, 40',
       f'v_mul_u32_u24 v16, 480, v13', f'v_add_u32 v16, {sT2}, v16',
       f'v_lshl_add_u32 {v(vAR[0])}, v15, 3, v16',
       f'v_mul_u32_u24 v17, 160, v15', f'v_add3_u32 v16, v16, v17, 32',
       'v_cmp_eq_u32 vcc, 3, v15', 'v_mov_b32 v17, 7680', f'v_cndmask_b32 {v(vAX[0])}, v16, v17, vcc',
       f'v_add_u32 {v(vAR[1])}, {4*SLOT}, {v(vAR[0])}', f'v_add_u32 {v(vAX[1])}, {4*SLOT}, {v(vAX[0])}',
       'v_and_b32 v16, 15, v0',
       'v_lshrrev_b32 v17, 1, v16', 'v_xor_b32 v17, v17, v14', 'v_lshlrev_b32 v17, 4, v17',
       f'v_lshl_add_u32 v17, v16, 7, v17',
       *[y for p in range(4) for y in (f's_add_u32 {sT2}, {sJ}, {p}', f's_bfe_u32 {sT3}, {sT2}, 0x10001', f's_mul_i32 {sT3}, {sT3}, 10240', f's_add_u32 {sT3}, {sT3}, {XB}',
                                       f's_and_b32 {sT2}, {sT2}, 1', f's_lshl_b32 {sT2}, {sT2}, 6', f'v_xor_b32 v18, {sT2}, v17', f'v_add_u32 {v(vB[p])}, {sT3}, v18')],
       'v_min_u32 v17, 11, v0', f'v_mul_u32_u24 v17, {HALF}, v17',
       'v_mov_b32 v222, 0x3f80', 'v_mov_b32 v223, 0',
       'ds_write_b64 v17, v[222:223] offset:7680')
    for i in range(4): AT(f'v_mov_b32 {v(ONES+i)}, 0x3f803f80')
    AT('v_bfe_u32 v17, v0, 3, 2', 'v_mul_u32_u24 v17, 10240, v17', 'v_and_b32 v18, 7, v0',
       f'v_lshl_add_u32 v17, v18, 4, v17', f'v_add_u32 v17, {XB}, v17',
       f'ds_write_b128 v17, {v(ONES,4)}')
    BP, BC, BP1 = 228, 232, 236
    AT('v_lshlrev_b32 v17, 2, v14', 'v_sub_u32 v17, v16, v17', 'v_mov_b32 v222, 0xf149f2ca')
    for r in range(4):
        for (dst, add) in ((BC, -r), (BP, 16 - r)):
            AT(f'v_add_u32 v18, {add}, v17', 'v_and_b32 v18, 0xfffffff1, v18',
               'v_cmp_eq_u32 vcc, 0, v18', f'v_cndmask_b32 {v(dst+r)}, v222, 0, vcc')
    A(f's_cmp_eq_u32 {sRB}, 0'); A('s_cselect_b64 vcc, -1, 0')
    for r in range(4): AT(f'v_cndmask_b32 {v(BP1+r)}, {v(BP+r)}, v222, vcc')
    AT(f's_lshl_b32 {sW10}, {sW}, 10',
       f's_mul_i32 {sWOS}, {sM}, 102400', f's_add_u32 {sWOS}, {sWOS}, {sW10}', f's_add_u32 {sWOS}, {sWOS}, {WO}',
       f's_lshl_b32 {sT2}, {sM}, 2', f's_add_u32 {sT2}, {sT2}, {sW}',
       f's_mul_i32 {sW1S}, {sT2}, 61440', f's_add_u32 {sW1S}, {sW1S}, {W1}',
       f's_getreg_b32 {sXCC}, hwreg(HW_REG_XCC_ID)', f's_and_b32 {sXCC}, {sXCC}, 7', f's_or_b32 {sXCC}, {sXCC}, 0x80')
    flush(cfg.get('pro', 8))
    stamp('issued')

    def frag_reads(ks):
        b = ks & 1; sl = ks % NSLOT; st = sl // 4; so = (sl % 4) * SLOT
        S = ks // 4; xo = (S % 2) * XS
        L = []
        L.append(f'ds_read_b128 {v(FB[b],4)}, {v(vB[ks&3])} offset:{xo}')
        for F in range(4):
            for jj in range(2):
                if F < 3: L.append(f'ds_read_b64_tr_b16 {v(FA[b]+4*F+2*jj,2)}, {v(vAR[st])} offset:{so + jj*HALF + F*160}')
                else: L.append(f'ds_read_b64_tr_b16 {v(FA[b]+4*F+2*jj,2)}, {v(vAX[st])} offset:{so + jj*HALF}')
        for T in range(1, 5): L.append(f'ds_read_b128 {v(FB[b]+4*T,4)}, {v(vB[ks&3])} offset:{xo + T*2048}')
        return L
    SP = cfg.get('sp', 1); SA = cfg.get('sa', 6); SC = cfg.get('sc', 14)
    groups = [(PS + i*4096, SC) for i in range(7)]
    g2 = [(2*SLOT + i*4096, max(SC, 14 + ((i+1)*4096 - 1)//SLOT)) for i in range(13)]
    g3 = [(XB + XS + i*4096, max(SC, 15)) for i in range(5)]
    groups = groups + sorted(g2 + g3, key=lambda x: x[1])
    wo_loc = lambda f: groups[f // 4][0] + (f % 4) * 1024
    def wo_items():
        return [dict(ins=[f's_add_u32 m0, {sW10}, {groups[gi][0]}', f's_add_u32 {sBG}, {sWOS}, {gi*4096}',
                          (f'buffer_load_dwordx4 {v(vL16)}, {srd(SWS)}, {sBG} offen sc1 lds', 'wo')], avail=groups[gi][1], gap=GAP) for gi in range(25)]
    def ld_items(regf, sbase, tagp, lo, hi, avail=-1, gap=GAP):
        L = []
        for f in range(lo, hi):
            ins = [f's_add_u32 {sBG}, {sbase}, {(f//4)*4096}'] if (f % 4 == 0 or f == lo) else []
            ins.append((f'buffer_load_dwordx4 {regf(f)}, {v(vL16)}, {srd(SWS)}, {sBG} offen offset:{(f%4)*1024} sc1', f'{tagp}{f}'))
            L.append(dict(ins=ins, avail=avail, gap=gap, solo=(f % 4 == 0 or f == lo)))
        return L
    w1reg = lambda f: a(4*f, 4)

    TB = 196
    def p0_reads():
        return [f'ds_read_b64_tr_b16 {v(TB+4*j+2*jj,2)}, {v(vr)} offset:{off + jj*16*PP}'
                for j, (vr, off) in enumerate([(vP, 0), (vP, 8), (vP2, 64), (vP3, 72), (vP4, 104), (vS, 160)]) for jj in range(2)]
    def p0_stores():
        st = [dict(ins=[(f'buffer_store_dwordx4 {v(TB+4*j,4)}, {v(vL16)}, {srd(SPD)}, {(sPD0, sPD0, sPD0, sPD1, sPD1, sPD2)[j]} offen offset:{(j%3)*1024} sc1', 'p0s')], gap=cfg.get('sgap', GAP)) for j in range(6)]
        inter = cfg.get('p0i', 1)
        nb = []
        for j in range(6):
            nb.append(st[j]); nb += P.bg[:inter]; P.bg = P.bg[inter:]
        P.bg = nb + P.bg
    if SP < 0:
        P.wait(vm='p0', lg=0); A('s_barrier')
        stamp('p0in', 2)
        for s in p0_reads(): A(s)
        flush(cfg.get('pro2', 0))
        P.wait(lg=0)
        p0_stores(); flush(cfg.get('pro3', 6))
    P.wait(vm=['x0', 'w0'], lg=0); A('s_barrier')
    stamp('first')
    for s in frag_reads(0): A(s)
    for ks in range(20):
        tags = []
        if ks + 1 < 20: tags = [f'w{ks+1}', f'x{(ks+1)//4}']
        while any(any(isinstance(x, tuple) and x[1] in tags for x in it['ins']) for it in P.bg):
            assert tick(force=True), ks
        if ks == SP: tags.append('p0')
        if ks == SA: tags.append('p0s')
        P.wait(vm=tags, lg=0); A('s_barrier')
        P.step = ks
        stamp(f'k{ks}', 1 if ks % 4 == 0 or ks == 19 else 2)
        fill = list(frag_reads(ks + 1)) if ks + 1 < 20 else []
        if ks == SP: fill += p0_reads()
        if ks == SP + 1 and SP >= 0: p0_stores()
        if ks == SA:
            assert not any(any(isinstance(x, tuple) and x[1] == 'p0s' for x in it['ins']) for it in P.bg)
            A(f's_cmp_lg_u32 {sW}, 0'); A('s_cbranch_scc1 L_arr')
            A(f's_and_b32 {sT2}, {sM}, 3'); A(f's_lshl_b32 {sT2}, {sT2}, 3'); A(f's_lshl_b32 {sT2}, {sXCC}, {sT2}')
            A(f's_lshl_b32 {sT3}, {sRB}, 3'); A(f's_and_b32 {sT4}, {sM}, 4'); A(f's_add_u32 {sT3}, {sT3}, {sT4}')
            A(f'v_mov_b32 v13, {sT2}'); A(f'v_mov_b32 v15, {sT3}')
            A('s_mov_b64 exec, 1')
            P.track = False
            A(f'buffer_atomic_or v13, v15, {srd(SDBG)}, 0 offen sc1 ; nocheck')
            P.track = True
            A('s_mov_b64 exec, -1')
            A('L_arr:')
        if ks == SC - cfg.get('sd', 2):
            A('v_lshlrev_b32 v17, 2, v0')
            A(f'buffer_load_dword v18, v17, {srd(SDBG)}, 0 offen sc1', tag='dbg')
        if ks == SC:
            A(f's_mov_b32 {sCNT}, 0'); A(f's_mov_b32 {sT2}, 0x80808080')
            P.wait(vm='dbg')
            A('L_dbg:')
            A(f'v_and_b32 v13, {sT2}, v18'); A(f'v_cmp_ne_u32 vcc, {sT2}, v13')
            A('s_cbranch_vccz L_dbgok')
            P.track = False
            A(f'buffer_load_dword v18, v17, {srd(SDBG)}, 0 offen sc1 ; nocheck')
            A(f's_add_u32 {sCNT}, {sCNT}, 1'); A(f's_cmp_gt_u32 {sCNT}, {SPIN}'); A('s_cbranch_scc1 L_end')
            A('s_waitcnt vmcnt(0) ; nocheck'); A('s_branch L_dbg')
            P.track = True
            A('L_dbgok:')
            A(f's_mul_i32 {sT2}, {sXCC}, 0x01010101'); A(f's_lshl_b32 {sT3}, {sRB}, 1')
            A(f'v_cmp_ne_u32 vcc, {sT2}, v18')
            A(f's_lshr_b64 vcc, vcc, {sT3}'); A(f's_and_b32 {sFAST}, vcc_lo, 3')
            if cfg.get('slow'): A(f's_mov_b32 {sFAST}, 1')
            P.bg += wo_items()
            xr = ['v_and_b32 v13, 15, v0', 'v_mul_u32_u24 v13, 1280, v13',
                  'v_lshl_add_u32 v15, v14, 4, v13', 'v_lshl_add_u32 v13, v14, 3, v13',
                  f's_mul_i32 {sT2}, {sW}, {16*1280}', f's_add_u32 {sT2}, {sT2}, {sXT[1]}', f's_mul_i32 {sT3}, {sM}, 160', f's_add_u32 {sXT[1]}, {sT2}, {sT3}',
                  (f'buffer_load_dwordx4 {v(XR,4)}, v15, {srd(SX)}, {sXT[1]} offen', 'xr'),
                  (f'buffer_load_dwordx4 {v(XR+4,4)}, v15, {srd(SX)}, {sXT[1]} offen offset:64', 'xr'),
                  (f'buffer_load_dwordx2 {v(XR+8,2)}, v13, {srd(SX)}, {sXT[1]} offen offset:128', 'xr')]
            P.bg.insert(len(P.bg) - 18, dict(ins=xr, gap=3*GAP, must=19))
            P.bg += ld_items(w1reg, sW1S, 'w1_', 0, 60)
            if cfg.get('touch'):
                TOP = cfg.get('top', 'load_dword'); TFL = cfg.get('tfl', 'sc1')
                t1 = ['v_lshlrev_b32 v17, 7, v0',
                      f's_lshl_b32 {sT2}, {sRB}, 2', f's_add_u32 {sT2}, {sT2}, {sW}',
                      f's_mul_i32 {sT3}, {sT2}, 1024', f's_add_u32 {sT3}, {sT3}, {HB - OB - 2560}',
                      f's_mul_i32 {sT4}, {sM}, {128 - 2560}', f's_add_u32 {sT4}, {sT4}, {20480 - 2560}', f's_add_u32 {sT4}, {sT4}, {sT3}',
                      f'v_mov_b32 v18, {sT3}', 'v_cmp_gt_u32 vcc, 20, v0', 'v_cndmask_b32 v18, v18, 0, vcc',
                      f'v_mov_b32 v252, {sT4}', 'v_cmp_gt_u32 vcc, 40, v0', 'v_cndmask_b32 v18, v252, v18, vcc', 'v_add_u32 v18, v17, v18',
                      f's_mul_i32 {sT3}, {sT2}, 20480', f's_mul_i32 {sT4}, {sM}, 2560', f's_add_u32 {sT3}, {sT3}, {sT4}', f's_add_u32 {sT3}, {sT3}, {OB}',
                      's_mov_b32 exec_hi, 0x1ff',
                      (f'buffer_{TOP} v253, v18, {srd(SWS)}, {sT3} offen {TFL}', 'tch'),
                      f's_mul_i32 {sT3}, {sT2}, 49152', f's_mul_i32 {sT4}, {sM}, 6144', f's_add_u32 {sT3}, {sT3}, {sT4}', f's_add_u32 {sT3}, {sT3}, {H1B}',
                      's_mov_b32 exec_hi, 0xffff',
                      (f'buffer_{TOP} v253, v17, {srd(SWS)}, {sT3} offen {TFL}', 'tch'),
                      's_mov_b32 exec_hi, -1']
                P.bg.insert(len(P.bg) - 86 + cfg['touch'] - 1, dict(ins=t1, gap=cfg.get('tgap', 11*GAP), must=19))
            fill += [f's_mul_i32 {sOBASE}, {sRB}, {4*20480}', f's_add_u32 {sOBASE}, {sOBASE}, {OB}',
                     f's_mul_i32 {sHBASE}, {sRB}, {4*21504}', f's_add_u32 {sHBASE}, {sHBASE}, {HB}',
                     f's_mul_i32 {sH1BASE}, {sRB}, {4*49152}', f's_add_u32 {sH1BASE}, {sH1BASE}, {H1B}',
                     f's_add_u32 {sW2S}, {sW1S}, {W2 - W1}',
                     's_mov_b32 s68, 0x22222222', 's_mov_b32 s69, 0x22222222', 's_mov_b32 s70, 0x88888888', 's_mov_b32 s71, 0x88888888',
                     's_mov_b32 s72, 0xcccccccc', 's_mov_b32 s73, 0xcccccccc']
        b = ks & 1
        mf = []
        for T in range(5):
            for F in range(4):
                c = '0' if ks == 0 else v(acc(F, T), 4)
                mf.append(f'{MF} {v(acc(F,T),4)}, {v(FA[b]+4*F,4)}, {v(FB[b]+4*T,4)}, {c}')
            c = '0' if ks == 0 else v(GR + 4*T, 4)
            mf.append(f'{MF} {v(GR+4*T,4)}, {v(FB[b]+4*T,4)}, {v(FB[b]+4*T,4)}, {c}')
        for i, m in enumerate(mf):
            A(m)
            if not tick():
                for _ in range(2 if len(fill) > 24 - i else 1):
                    if fill: A(fill.pop(0))
        for s in fill: A(s)
    assert not any('must' in it for it in P.bg)
    P.step = 100

    stamp('gemm_end')
    P.scale = cfg.get('ascale', 1.5)
    CS = 20; NM = 36; RS = 42; RQ = 48; RX = 86
    KXV = 56; QF = 192; VT0 = 208; VT1 = 218
    sc = (20 ** -0.5) * math.log2(math.e)
    AT('v_lshrrev_b32 v13, 2, v16', 'v_lshl_add_u32 v13, v13, 4, v16', 'v_lshlrev_b32 v13, 2, v13',
       'v_add_lshl_u32 v15, v16, 48, 2',
       f'v_mov_b32 v17, 1.0', f'v_mov_b32 v18, {f2u(sc):#x}', 'v_mov_b32 v2, 0',
       'v_mov_b32_dpp v17, v18 quad_perm:[0,1,2,3] row_mask:0x1 bank_mask:0xf',
       'v_mov_b32_dpp v17, v2 quad_perm:[0,1,2,3] row_mask:0x8 bank_mask:0xf')
    for T in range(5):
        g = GR + 4*T
        A(f'ds_bpermute_b32 {v(NM+T)}, v15, {v(acc(3,T))}', tag='st')
        AT(f'v_cndmask_b32 {v(g)}, {v(g)}, {v(g+1)}, {sM1}', f'v_cndmask_b32 {v(g+2)}, {v(g+2)}, {v(g+3)}, {sM3}',
           f'v_cndmask_b32 {v(g)}, {v(g)}, {v(g+2)}, {sM23}')
        A(f'ds_bpermute_b32 {v(RS+T)}, v13, {v(g)}', tag='st')
    for F in range(4):
        for r in range(4): AT(f'v_mov_b32_dpp {v(CS+4*F+r)}, {v(acc(F,0)+r)} row_newbcast:0 row_mask:0xf bank_mask:0xf')
    AT(f's_mul_i32 {sT2}, {sW}, 5120', f's_add_u32 {sT2}, {sT2}, {XB}',
       'v_lshlrev_b32 v2, 6, v16', 'v_lshl_add_u32 v2, v14, 4, v2', f'v_add_u32 v2, {sT2}, v2',
       'v_lshrrev_b32 v3, 2, v0', 'v_lshlrev_b32 v3, 6, v3', f'v_add_u32 v3, {sT2}, v3',
       'v_and_b32 v4, 3, v0', 'v_lshl_add_u32 v4, v4, 4, v3')
    P.wait(lg='st')
    for T in range(5): AT(f'v_mul_f32 {v(NM+T)}, {f2u(-1.0/640):#x}, {v(NM+T)}')
    for T in range(5): AT(f'v_mul_f32 {v(RS+T)}, {f2u(1.0/640):#x}, {v(RS+T)}')
    for T in range(5): AT(f'v_fma_f32 {v(RS+T)}, -{v(NM+T)}, {v(NM+T)}, {v(RS+T)}')
    for T in range(5): AT(f'v_max_f32 {v(RS+T)}, 0, {v(RS+T)}')
    for T in range(5): AT(f'v_add_f32 {v(RS+T)}, {f2u(1e-5):#x}, {v(RS+T)}')
    for T in range(5): AT(f'v_rsq_f32 {v(RS+T)}, {v(RS+T)}')
    for T in range(1, 5): AT(f'v_mul_f32 {v(RQ+T)}, {f2u(sc):#x}, {v(RS+T)}')
    for T in range(5): AT(f'v_mul_f32 {v(RX+T)}, v17, {v(RS+T)}')
    for T in range(5):
        for F in ((1, 3, 2) if T == 0 else (1, 3, 2, 0)):
            nm, s1 = pk_bc(NM + T)
            rs, s2 = pk_bc({0: RQ, 1: RS, 2: RS, 3: RX}[F] + T)
            ac = acc(F, T)
            for h in range(2):
                AT(f'v_pk_fma_f32 {v(ac+2*h,2)}, {v(CS+4*F+2*h,2)}, {nm}, {v(ac+2*h,2)} op_sel:[0,{s1},0] op_sel_hi:[1,{s1},1]')
            for h in range(2):
                AT(f'v_pk_mul_f32 {v(ac+2*h,2)}, {v(ac+2*h,2)}, {rs} op_sel:[0,{s2}] op_sel_hi:[1,{s2}]')
            dst = {1: KXV + 6*T, 3: KXV + 6*T + 2, 2: KXV + 6*T + 4, 0: QF + 4*(T-1)}[F]
            for h in range(2): AT(f'v_cvt_pk_bf16_f32 {v(dst+h)}, {v(ac+2*h)}, {v(ac+2*h+1)}')
        A(f'ds_write_b128 v2, {v(KXV+6*T+2,4)} offset:{T*1024}', tag='vw')
        if T:
            for h in range(2): AT(f'v_mov_b32 {v(QF+4*(T-1)+2+h)}, 0')
    for T in range(1, 5):
        for h in range(2): AT(f'v_permlane16_swap_b32 {v(QF+4*(T-1)+2+h)}, {v(KXV+6*T+2+h)}')
    SS = ACC; MX = ACC + 32; PF = ACC + 40
    for i in range(4):
        AT(f'{MF} {v(SS+8*i,4)}, {v(KXV+6*i,4)}, {v(QF+4*i,4)}, {v(BP1 if i == 0 else BP,4)}',
           f'{MF} {v(SS+8*i+4,4)}, {v(KXV+6*(i+1),4)}, {v(QF+4*i,4)}, {v(BC,4)}')
    for T in range(5):
        A(f'ds_read_b64_tr_b16 {v(VT0+2*T,2)}, v4 offset:{T*1024+8}', tag='vt')
        A(f'ds_read_b64_tr_b16 {v(VT1+2*T,2)}, v3 offset:{T*1024+32}', tag='vt')
    for i in range(4):
        s = SS + 8*i; m = MX + 2*i
        AT(f'v_max3_f32 {v(m)}, {v(s)}, {v(s+1)}, {v(s+2)}', f'v_max3_f32 {v(m+1)}, {v(s+3)}, {v(s+4)}, {v(s+5)}',
           f'v_max3_f32 {v(m)}, {v(m)}, {v(s+6)}, {v(s+7)}', f'v_max_f32 {v(m)}, {v(m)}, {v(m+1)}')
    for sw in ('v_permlane16_swap_b32', 'v_permlane32_swap_b32'):
        for i in range(4): AT(f'v_mov_b32 {v(MX+2*i+1)}, {v(MX+2*i)}')
        for i in range(4): AT(f'{sw} {v(MX+2*i)}, {v(MX+2*i+1)}')
        for i in range(4): AT(f'v_max_f32 {v(MX+2*i)}, {v(MX+2*i)}, {v(MX+2*i+1)}')
    O0 = 148; O1 = 164; SM = 20
    P.wait(lg='vt')
    for i in range(4):
        s = SS + 8*i
        for h in range(4): AT(f'v_pk_add_f32 {v(s+2*h,2)}, {v(s+2*h,2)}, {v(MX+2*i,2)} op_sel:[0,0] op_sel_hi:[1,0] neg_lo:[0,1] neg_hi:[0,1]')
        for h in range(8): AT(f'v_exp_f32 {v(s+h)}, {v(s+h)}')
        for h in range(4): AT(f'v_cvt_pk_bf16_f32 {v(PF+4*i+h)}, {v(s+2*h)}, {v(s+2*h+1)}')
        if i == 3:
            AT('v_and_b32 v13, 1, v14', 'v_mul_u32_u24 v13, 20480, v13')
        if i > 0:
            pass
    nobg = cfg.get('quiet1', 0)
    for i in range(4):
        A(f'{MF} {v(SM+4*i,4)}, {v(ONES,4)}, {v(PF+4*i,4)}, 0')
        A(f'{MF} {v(O0+4*i,4)}, {v(VT0+2*i,4)}, {v(PF+4*i,4)}, 0')
        A(f'{MF} {v(O1+4*i,4)}, {v(VT1+2*i,4)}, {v(PF+4*i,4)}, 0')
    AQ = (lambda *x: [A(y) for y in x]) if nobg else AT
    AQ('v_lshrrev_b32 v15, 1, v14', 'v_lshl_add_u32 v13, v15, 8, v13', 'v_lshl_add_u32 v13, v16, 4, v13',
       'v_mul_u32_u24 v15, 20480, v14', 'v_lshl_add_u32 v15, v16, 4, v15',
       f's_mul_i32 {sT2}, {sM}, 2560', f's_add_u32 {sT2}, {sT2}, {sOBASE}',
       f's_lshl_b32 {sT3}, {sW}, 9', f's_add_u32 {sT3}, {sT3}, {sT2}', f's_add_u32 {sT4}, {sT3}, 40960',
       f's_lshl_b32 {sT5}, {sW1h}, 8', f's_add_u32 {sT2}, {sT2}, {sT5}', f's_lshl_b32 {sT5}, {sW0}, 3', f's_add_u32 {sT2}, {sT2}, {sT5}')
    for i in range(4): AQ(f'v_rcp_f32 {v(SM+4*i)}, {v(SM+4*i)}')
    OP = 36; OL = 44
    for i in range(4):
        for h in range(2): AQ(f'v_pk_mul_f32 {v(O0+4*i+2*h,2)}, {v(O0+4*i+2*h,2)}, {v(SM+4*i,2)} op_sel:[0,0] op_sel_hi:[1,0]')
        for h in range(2): AQ(f'v_pk_mul_f32 {v(O1+4*i+2*h,2)}, {v(O1+4*i+2*h,2)}, {v(SM+4*i,2)} op_sel:[0,0] op_sel_hi:[1,0]')
        for h in range(2): AQ(f'v_cvt_pk_bf16_f32 {v(OP+2*i+h)}, {v(O0+4*i+2*h)}, {v(O0+4*i+2*h+1)}')
        for h in range(2): AQ(f'v_cvt_pk_bf16_f32 {v(OL+2*i+h)}, {v(O1+4*i+2*h)}, {v(O1+4*i+2*h+1)}')
    for pr in range(2):
        for h in range(2): A(f'v_permlane16_swap_b32 {v(OP+4*pr+h)}, {v(OP+4*pr+2+h)}')
    for i in range(1, 4):
        for h in range(2): A(f'v_mov_b32_dpp {v(OL+h)}, {v(OL+2*i+h)} quad_perm:[0,1,2,3] row_mask:{1<<i:#x} bank_mask:0xf')

    def publish(stores, tag='pub', wt=False):
        if wt:
            for s in stores: A(s + ' sc1', tag=tag)
            P.busy(GAP * len(stores) // 2, True)
            return
        l1, l2 = P.lab('L_sl'), P.lab('L_j')
        A(f's_cmp_lg_u32 {sFAST}, 0'); A(f's_cbranch_scc1 {l1}')
        for s in stores: A(s, tag=tag)
        A(f's_branch {l2}'); A(f'{l1}:')
        P.track = False
        for s in stores: A(s + ' sc1 ; nocheck')
        P.track = True
        A(f'{l2}:')
        P.busy(GAP * len(stores) // 2, True)
    def setflag(val, tag='pub'):
        l1, l2 = P.lab('L_sl'), P.lab('L_j')
        A(f'v_mov_b32 {v(vFV)}, {val}')
        P.wait(vm=tag)
        A('s_mov_b64 exec, 1')
        A(f's_cmp_lg_u32 {sFAST}, 0'); A(f's_cbranch_scc1 {l1}')
        A(f'buffer_store_dword {v(vFV)}, {v(vFS)}, {srd(SWS)}, {sFLOFF} offen')
        A(f's_branch {l2}'); A(f'{l1}:')
        P.track = False
        A(f'buffer_store_dword {v(vFV)}, {v(vFS)}, {srd(SWS)}, {sFLOFF} offen sc1 ; nocheck')
        P.track = True
        A(f'{l2}:')
        A('s_mov_b64 exec, -1')
    vPT = 5
    def poll_issue(vaddr):
        A(f'buffer_load_dword {v(vPT)}, {v(vaddr)}, {srd(SWS)}, {sFLOFF} offen sc1', tag='poll')
    def poll_check(vaddr, val):
        l1, l2 = P.lab('L_poll'), P.lab('L_ok')
        P.wait(vm='poll')
        A(f's_mov_b32 {sCNT}, 0')
        A(f'{l1}:')
        A(f'v_cmp_gt_u32 vcc, {val}, {v(vPT)}')
        A(f's_cbranch_vccz {l2}')
        P.track = False
        A(f'buffer_load_dword {v(vPT)}, {v(vaddr)}, {srd(SWS)}, {sFLOFF} offen sc1 ; nocheck')
        A(f's_add_u32 {sCNT}, {sCNT}, 1'); A(f's_cmp_gt_u32 {sCNT}, {SPIN}'); A('s_cbranch_scc1 L_end')
        A('s_waitcnt vmcnt(0) ; nocheck'); A(f's_branch {l1}')
        P.track = True
        A(f'{l2}:')

    stamp('attn_end')
    P.scale = 1.0
    assert not any(any(isinstance(x, tuple) and x[1] in ('wo', 'xr') for x in it['ins']) for it in P.bg)
    publish([f'buffer_store_dwordx4 {v(OP,4)}, v13, {srd(SWS)}, {sT3} offen',
             f'buffer_store_dwordx4 {v(OP+4,4)}, v13, {srd(SWS)}, {sT4} offen',
             f'buffer_store_dwordx2 {v(OL,2)}, v15, {srd(SWS)}, {sT2} offen offset:2048'], wt=cfg.get('wt', 6) & 1)
    vPA = 2; vLB = [1, 3, 4]
    BF = 92; AC2 = 172; AR = 20; NAR = 18
    flush(cfg.get('f1', 10))
    A(f'v_and_b32 {v(vPA)}, 31, v0'); A(f'v_lshlrev_b32 {v(vPA)}, 2, {v(vPA)}')
    A(f'v_add_u32 v3, 65536, v1'); A(f'v_add_u32 v4, 131072, v1')
    P.wait(vm='xr')
    for j in range(5):
        for r in range(4):
            src = XR + (4*(j >> 1) + 2*(j & 1) + (r >> 1) if j < 4 else 8 + (r >> 1))
            if r & 1: A(f'v_and_b32 {v(AC2+4*j+r)}, 0xffff0000, {v(src)}')
            else: A(f'v_lshlrev_b32 {v(AC2+4*j+r)}, 16, {v(src)}')
    setflag(1)
    stamp('flag1')
    if stop == 1: return finish(P)
    flush(cfg.get('f2', 10))
    poll_issue(vPA)
    A('s_barrier')
    def wo_read(f):
        loc = wo_loc(f)
        return f'ds_read_b128 {v(AR+4*(f%NAR),4)}, {v(vLB[loc>>16])} offset:{loc & 0xffff}'
    for f in range(15): A(wo_read(f), tag=f'a{f}')
    A(f's_mul_i32 {sA}, {sW}, 20480'); A(f's_add_u32 {sA}, {sA}, {sOBASE}')
    poll_check(vPA, 1)
    stamp('poll1')
    def fix_solo():
        pass
    rest = P.bg
    if rest and not rest[0].get('solo'):
        f0 = int(rest[0]['ins'][-1][1].split('_')[1])
        rest[0]['ins'].insert(0, f's_add_u32 {sBG}, {sW1S}, {(f0//4)*4096}')
    P.bg = ld_items(lambda k: v(BF + 4*k, 4), sA, 'o', 0, 20) + rest
    flush(cfg.get('f3', 9))
    for k in range(20):
        while any(it['ins'][-1][1] == f'o{k}' for it in P.bg): tick(force=True)
        for j in range(5):
            f = 5*k + j
            P.wait(vm=f'o{k}' if j == 0 else None, lg=f'a{f}')
            A(f'{MF} {v(AC2+4*j,4)}, {v(AR+4*(f%NAR),4)}, {v(BF+4*k,4)}, {v(AC2+4*j,4)}')
            if f + 15 < 100: A(wo_read(f + 15), tag=f'a{f+15}')
            if k < cfg.get('quiet2', 20): tick()
    stamp('p2_mfma')
    HP = XR
    vHS, vT8 = 6, 7
    A(f'v_lshrrev_b32 {v(vHS)}, 5, v0'); A(f'v_lshlrev_b32 {v(vHS)}, 8, {v(vHS)}'); A(f'v_lshl_add_u32 {v(vHS)}, v16, 4, {v(vHS)}')
    A(f'v_lshlrev_b32 {v(vT8)}, 3, v16')
    A(f's_mul_i32 {sT2}, {sW}, 21504'); A(f's_add_u32 {sT2}, {sT2}, {sHBASE}')
    A(f's_mul_i32 {sT3}, {sM}, 2560'); A(f's_add_u32 {sT3}, {sT3}, {sT2}')
    A(f's_lshl_b32 {sT4}, {sM}, 7'); A(f's_add_u32 {sT4}, {sT4}, {sT2}'); A(f's_add_u32 {sT4}, {sT4}, 20480')
    for j in range(5):
        for h in range(2): A(f'v_cvt_pk_bf16_f32 {v(HP+2*j+h)}, {v(AC2+4*j+2*h)}, {v(AC2+4*j+2*h+1)}')
    for h in range(2): A(f'v_mov_b32 {v(24+h)}, {v(HP+8+h)}'); A(f'v_mov_b32 {v(26+h)}, {v(HP+8+h)}')
    for h in range(2): A(f'v_permlane16_swap_b32 {v(24+h)}, {v(26+h)}')
    publish([f'buffer_store_dwordx4 {v(HP,4)}, {v(vL16)}, {srd(SWS)}, {sT3} offen',
             f'buffer_store_dwordx4 {v(HP+4,4)}, {v(vL16)}, {srd(SWS)}, {sT3} offen offset:1024',
             f'buffer_store_dwordx4 v[24:27], {v(vHS)}, {srd(SWS)}, {sT3} offen offset:2048'], wt=cfg.get('wt', 6) & 2)
    for i in range(10):
        A(f'v_dot2_f32_bf16 v20, {v(HP+i)}, {v(ONES)}, {"v20" if i else 0}'); A(f'v_dot2_f32_bf16 v21, {v(HP+i)}, {v(HP+i)}, {"v21" if i else 0}')
    for sw in ('v_permlane16_swap_b32', 'v_permlane32_swap_b32'):
        for h in range(2): A(f'v_mov_b32 {v(22+h)}, {v(20+h)}')
        for h in range(2): A(f'{sw} {v(20+h)}, {v(22+h)}')
        for h in range(2): A(f'v_add_f32 {v(20+h)}, {v(20+h)}, {v(22+h)}')
    publish([f'buffer_store_dwordx2 v[20:21], {v(vT8)}, {srd(SWS)}, {sT4} offen'], wt=cfg.get('wt', 6) & 2)

    CS1 = 28; B1F = 40; AC3 = [52, 64]; BR = 76; NBR = 6
    W2V = 100; NW2V = 35
    NA0 = 4
    def w2reg(f):
        if f < NW2V: return v(W2V + 4*f, 4)
        if f < NW2V + NA0: return a(240 + 4*(f - NW2V), 4)
        return a(4*(f - NW2V - NA0), 4)
    NPRE = NW2V + NA0
    P.bg += [dict(ins=['v_lshlrev_b32 v13, 4, v14', 'v_lshlrev_b32 v15, 3, v14',
                       f's_mul_i32 {sB}, {sM}, 384', f's_mul_i32 {sC}, {sW}, 96', f's_add_u32 {sB}, {sB}, {sC}',
                       (f'buffer_load_dwordx4 {v(AC3[1],4)}, v13, {srd(SB1)}, {sB} offen', 'b1'),
                       (f'buffer_load_dwordx2 {v(AC3[1]+4,2)}, v15, {srd(SB1)}, {sB} offen offset:64', 'b1')], gap=GAP, solo=True)]
    P.bg += ld_items(w2reg, sW2S, 'w2_', 0, NPRE)
    cs_next = [0]
    def colsum(n):
        for _ in range(n):
            f = cs_next[0]
            if f >= 60: return
            while any(it['ins'][-1][1] == f'w1_{f}' for it in P.bg): tick(force=True)
            P.wait(vm=f'w1_{f}')
            j = f % 3
            A(f'{MF} {v(CS1+4*j,4)}, {w1reg(f)}, {v(ONES,4)}, {"0" if f < 3 else v(CS1+4*j,4)}'); tick()
            cs_next[0] += 1
    flush(cfg.get('f6', 6))
    colsum(cfg.get('c1', 24))
    setflag(2)
    stamp('flag2')
    if stop == 2: return finish(P)
    flush(cfg.get('f7', 6))
    colsum(cfg.get('c2', 16))
    poll_issue(vPA)
    A('s_barrier')
    A(f's_mul_i32 {sT2}, {sW}, 21504'); A(f's_add_u32 {sT3}, {sT2}, {sHBASE}'); A(f's_add_u32 {sT3}, {sT3}, 20480')
    A(f's_mul_i32 {sA}, {sW}, 5120'); A(f's_add_u32 {sD}, {sA}, {sHBASE}')
    vST = 8
    A(f'v_lshlrev_b32 {v(vST)}, 8, v14'); A(f'v_add_u32 {v(vST)}, {v(vST)}, {v(vT8)}'); A(f'v_add_u32 {v(vST)}, 20480, {v(vST)}')
    A(f's_add_u32 m0, {sT2}, 20480')
    poll_check(vPA, 2)
    stamp('poll2')
    A(f'buffer_load_dwordx4 {v(vL16)}, {srd(SWS)}, {sT3} offen sc1 lds', tag='h0')
    hit = []
    for T in range(4):
        for i in range(5):
            ins = []
            if i in (0, 4): ins = [f's_add_u32 m0, {sA}, {T*21504 + i*1024}', f's_add_u32 {sT3}, {sD}, {T*21504 + i*1024}']
            ins.append((f'buffer_load_dwordx4 {v(vL16)}, {srd(SWS)}, {sT3} offen offset:{(i%4)*1024} sc1 lds', f'h{T}'))
            hit.append(dict(ins=ins, gap=GAP))
    P.bg = hit + P.bg
    flush(cfg.get('f4', 10))
    colsum(60)
    A(f's_mul_i32 {sT2}, {sM}, 6144'); A(f's_mul_i32 {sT5}, {sW}, 1536'); A(f's_add_u32 {sT2}, {sT2}, {sT5}'); A(f's_add_u32 {sT5}, {sT2}, {sH1BASE}')
    def h_read(n):
        loc = (n // 20)*21504 + (n % 20)*1024
        return f'ds_read_b128 {v(BR+4*(n%NBR),4)}, {v(vLB[loc>>16])} offset:{loc & 0xffff}'
    def epi3(T):
        ac = AC3[T & 1]; L = []
        L.append((f'ds_read_b64 v[20:21], {v(vST)} offset:{T*21504}', 'st'))
        L.append((f'ds_read_b64 v[22:23], {v(vST)} offset:{T*21504+128}', 'st'))
        L.append(None); L.append(None); L.append(None); L.append(None)
        L.append(lambda: P.wait(lg='st'))
        for h in range(2): L.append(f'v_add_f32 {v(20+h)}, {v(20+h)}, {v(22+h)}')
        for sw in ('v_permlane16_swap_b32', 'v_permlane32_swap_b32'):
            for h in range(2): L.append(f'v_mov_b32 {v(22+h)}, {v(20+h)}')
            for h in range(2): L.append(f'{sw} {v(20+h)}, {v(22+h)}')
            for h in range(2): L.append(f'v_add_f32 {v(20+h)}, {v(20+h)}, {v(22+h)}')
        L += [f'v_mul_f32 v20, {f2u(-1.0/640):#x}, v20', f'v_mul_f32 v21, {f2u(1.0/640):#x}, v21', 'v_fma_f32 v21, -v20, v20, v21',
              'v_max_f32 v21, 0, v21', f'v_add_f32 v21, {f2u(1e-5):#x}, v21', 'v_rsq_f32 v21, v21']
        split = len(L)
        for i in range(12): L.append(f'v_fma_f32 {v(ac+i)}, v20, {v(CS1+i)}, {v(ac+i)}')
        for i in range(12): L.append(f'v_fma_f32 {v(ac+i)}, {v(ac+i)}, v21, {v(B1F+i)}')
        for i in range(12): L.append(f'v_max_f32 {v(ac+i)}, 0, {v(ac+i)}')
        for i in range(12): L.append(f'v_mul_f32 {v(ac+i)}, {v(ac+i)}, {v(ac+i)}')
        for i in range(4): L.append(f'v_cvt_pk_bf16_f32 {v(20+i)}, {v(ac+2*i)}, {v(ac+2*i+1)}')
        for i in range(2):
            L.append(f'v_cvt_pk_bf16_f32 {v(24+i)}, {v(ac+8+2*i)}, {v(ac+8+2*i+1)}')
            L.append(f'v_cvt_pk_bf16_f32 {v(26+i)}, {v(ac+8+2*i)}, {v(ac+8+2*i+1)}')
        for h in range(2): L.append(f'v_permlane16_swap_b32 {v(24+h)}, {v(26+h)}')
        def pub():
            A(f's_add_u32 {sT4}, {sT5}, {T*49152}')
            publish([f'buffer_store_dwordx4 v[20:23], {v(vL16)}, {srd(SWS)}, {sT4} offen',
                     f'buffer_store_dwordx4 v[24:27], {v(vHS)}, {srd(SWS)}, {sT4} offen offset:1024'], tag=f'pub{T}', wt=cfg.get('wt', 6) & 4)
        L.append(pub)
        return L[:split], L[split:]
    def emit_item(it):
        if it is None: return
        if callable(it): it()
        elif isinstance(it, tuple): A(it[0], tag=it[1])
        else: A(it)
    def drain_tag(tag):
        while any(it['ins'][-1][1] == tag for it in P.bg): tick(force=True)
    PRE = 4
    drain_tag('h0'); P.wait(vm='h0'); A('s_barrier')
    stamp('p3_t0')
    for n in range(PRE): A(h_read(n), tag=f'b{n}')
    BB = [84, 132, 180]
    vP4a = 9; vRW = 10
    b1u = [lambda: (drain_tag('b1'), P.wait(vm='b1'))]
    for j in range(3):
        for r in range(4):
            src = AC3[1] + 2*j + (r >> 1)
            b1u.append(f'v_and_b32 {v(B1F+4*j+r)}, 0xffff0000, {v(src)}' if r & 1 else f'v_lshlrev_b32 {v(B1F+4*j+r)}, 16, {v(src)}')
    p4c = [f'v_and_b32 {v(vP4a)}, 7, v0', f'v_lshlrev_b32 {v(vP4a)}, 2, {v(vP4a)}', f's_lshl_b32 {sT2}, {sW}, 5', f'v_add_u32 {v(vP4a)}, {sT2}, {v(vP4a)}',
           f's_mul_i32 {sB}, {sW}, 12288', f's_add_u32 {sB}, {sB}, {sH1BASE}',
           f's_mul_i32 {sT2}, {sW}, 5120', f'v_add_u32 {v(vRW)}, {sT2}, v1', f'v_add_u32 v12, 40960, {v(vRW)}',
           f's_mul_i32 {sT2}, {sW}, 20480', f'v_add_u32 v11, {sT2}, v1']
    pend = [None]*40 + b1u + p4c + epi3(0)[0]
    FD = cfg.get('fd', 12)
    for T in range(4):
        ac = AC3[T & 1]
        for k in range(20):
            n = 20*T + k
            if k == 20 - PRE and T < 3:
                drain_tag(f'h{T+1}'); P.wait(vm=f'h{T+1}'); A('s_barrier')
            if k == cfg.get('fk', 4) and T >= 2: setflag(3 + T - 2, f'pub{T-2}')
            if T == 3 and k >= 2:
                lo = NPRE + 3*(k - 2); hi = min(60, lo + 3)
                if lo < 60: P.bg += ld_items(w2reg, sW2S, 'w2_', lo, hi, gap=cfg.get('g3', 32))
            for j in range(3):
                if j == 0: P.wait(lg=f'b{n}')
                A(f'{MF} {v(ac+4*j,4)}, {w1reg(3*k+j)}, {v(BR+4*(n%NBR),4)}, {"0" if k == 0 else v(ac+4*j,4)}')
                slots = 2
                if j == 0 and n + PRE < 80: A(h_read(n + PRE), tag=f'b{n+PRE}'); slots = 1
                if tick(): slots = 0
                if k >= 1 or j == 2:
                    for _ in range(slots):
                        if pend: emit_item(pend.pop(0))
        while pend: emit_item(pend.pop(0))
        pend = epi3(T)[1] + (epi3(T + 1)[0] if T < 3 else [])
        stamp(f'p3_e{T}', 1 if T == 3 else 2)
    setflag(5, 'pub2')
    poll_issue(vP4a)
    while pend: emit_item(pend.pop(0)); tick()
    if stop == 3:
        setflag(6, 'pub3'); return finish(P)

    AC4 = [28, 52]
    def h1_items(T):
        L = []
        for kk in range(12):
            ins = [f's_add_u32 {sC}, {sB}, {T*49152 + kk*1024}'] if kk % 4 == 0 else []
            ins.append((f'buffer_load_dwordx4 {a(BB[T%3]+4*kk,4)}, {v(vL16)}, {srd(SWS)}, {sC} offen offset:{(kk%4)*1024} sc1', f'g{T}_{kk}'))
            L.append(dict(ins=ins, gap=cfg.get('g4', 32)))
        return L
    poll_check(vP4a, 4)
    stamp('poll4')
    P.bg = h1_items(0) + P.bg + h1_items(1)
    flush(cfg.get('f5', 8))
    A('s_barrier')
    setflag(6, 'pub3')
    stamp('flag6')
    P.bg += [dict(ins=[f's_mul_i32 {sT2}, {sM}, 160',
                       (f'buffer_load_dwordx4 v[76:79], v13, {srd(SB2)}, {sT2} offen', 'b2'),
                       (f'buffer_load_dwordx4 v[80:83], v13, {srd(SB2)}, {sT2} offen offset:64', 'b2'),
                       (f'buffer_load_dwordx2 v[84:85], v15, {srd(SB2)}, {sT2} offen offset:128', 'b2')], gap=GAP)]
    pend = []
    for T in range(4):
        ac = AC4[T & 1]
        for kk in range(12):
            if T < 2 and kk == cfg.get('pi', 4): poll_issue(vP4a)
            if T < 2 and kk == cfg.get('pc', 10):
                poll_check(vP4a, 5 + T); P.bg += h1_items(T + 2)
            drain_tag(f'g{T}_{kk}')
            for j in range(5):
                f = 5*kk + j
                if T == 0: drain_tag(f'w2_{f}')
                P.wait(vm=[f'g{T}_{kk}', f'w2_{f}'])
                A(f'{MF} {v(ac+4*j,4)}, {w2reg(f)}, {a(BB[T%3]+4*kk,4)}, {"0" if kk == 0 else v(ac+4*j,4)}')
                if not tick() and pend and kk >= 2: emit_item(pend.pop(0))
        stamp(f'p4_t{T}')
        assert T == 3 or not pend
        pend = [f'ds_write_b128 {v(vRW if T < 2 else 12)}, {v(ac+4*j,4)} offset:{(T%2)*20480 + j*1024}' for j in range(5)]
        if T == 2:
            pend.append(lambda: P.wait(vm='b2'))
            for j in range(5):
                for r in range(4):
                    o = (4*(j >> 1) + 2*(j & 1) + (r >> 1) if j < 4 else 8 + (r >> 1))
                    if r & 1: pend += [f'v_and_b32 {v(28+4*j+r)}, 0xffff0000, {v(76+o)}', f'v_and_b32 v20, 0xffff0000, {v(HP+2*j+(r>>1))}']
                    else: pend += [f'v_lshlrev_b32 {v(28+4*j+r)}, 16, {v(76+o)}', f'v_lshlrev_b32 v20, 16, {v(HP+2*j+(r>>1))}']
                    pend.append(f'v_add_f32 {v(28+4*j+r)}, {v(28+4*j+r)}, v20')
            pend += ['v_mul_u32_u24 v17, 1280, v16', 'v_add_u32 v13, v13, v17', 'v_add_u32 v15, v15, v17']
            keep = pend
        if T == 3:
            pend = keep + pend
    while pend: emit_item(pend.pop(0))
    P.wait(lg=0); A('s_barrier')
    RD = 100
    for w in range(4):
        for j in range(5): A(f'ds_read_b128 {v(RD+20*w+4*j,4)}, v11 offset:{w*5120 + j*1024}', tag=f'r{w}')
    for w in range(4):
        P.wait(lg=f'r{w}')
        for i in range(10): A(f'v_pk_add_f32 {v(28+2*i,2)}, {v(28+2*i,2)}, {v(RD+20*w+2*i,2)}')
    for i in range(10): A(f'v_cvt_pk_bf16_f32 {v(48+i)}, {v(28+2*i)}, {v(28+2*i+1)}')
    A(f'buffer_store_dwordx4 v[48:51], v13, {srd(SOUT)}, {sXT[1]} offen {cfg.get("ofl", "")}')
    A(f'buffer_store_dwordx4 v[52:55], v13, {srd(SOUT)}, {sXT[1]} offen offset:64 {cfg.get("ofl", "")}')
    A(f'buffer_store_dwordx2 v[56:57], v15, {srd(SOUT)}, {sXT[1]} offen offset:128 {cfg.get("ofl", "")}')
    stamp('stored')
    if prof: P.wait(vm=0)
    stamp('end')
    assert not P.bg
    return finish(P)

def finish(P):
    if P.prof:
        P('s_memrealtime s[100:101]'); P.wait(lg=0); P(f'v_writelane_b32 v19, s100, {len(P.stamps)}'); P.stamps.append('rt1')
        P(f's_lshl_b32 s100, s2, 2'); P(f's_add_u32 s100, s100, {sW}'); P('s_lshl_b32 s100, s100, 8'); P(f's_add_u32 s100, s100, {PROFB}')
        P('v_lshlrev_b32 v18, 2, v0'); P(f'buffer_store_dword v19, v18, {srd(SWS)}, s100 offen')
        P.L.insert(0, '; stamps: ' + ' '.join(P.stamps))
        if P.hprof is not None:
            P(f's_cmp_lg_u32 {sW}, 0'); P('s_cbranch_scc1 L_end')
            P('v_readlane_b32 s96, v19, 1'); P(f'v_readlane_b32 s97, v19, {len(P.stamps)-1}')
            P('s_not_b32 s96, s96'); P('s_and_b32 s96, s96, 0xfffffff'); P('s_or_b32 s96, s96, 0x90000000')
            P('s_and_b32 s97, s97, 0xfffffff'); P('s_or_b32 s97, s97, 0x90000000')
            P('v_mov_b32 v20, s96'); P('v_mov_b32 v21, s97'); P('v_mov_b32 v22, 0')
            P('s_mov_b64 exec, 1')
            P(f'buffer_atomic_umax v20, v22, {srd(SDBG)}, 0 offen offset:56 sc1')
            P(f'buffer_atomic_umax v21, v22, {srd(SDBG)}, 0 offen offset:60 sc1')
            P('s_mov_b64 exec, -1')
            P(f's_cmp_lg_u32 s2, {P.hprof}'); P('s_cbranch_scc1 L_end')
            P('v_lshlrev_b32 v20, 3, v0'); P('v_add_u32 v21, 4, v20')
            P('ds_bpermute_b32 v20, v20, v19'); P('ds_bpermute_b32 v21, v21, v19'); P.wait(lg=0)
            P('v_and_b32 v20, 0xffff, v20'); P('v_lshl_or_b32 v20, v21, 16, v20')
            P('s_mov_b64 exec, 0x3fff')
            P(f'buffer_store_dword v20, v18, {srd(SDBG)}, 0 offen sc1')
    P('L_end:')
    body = P.finish()
    hdr = f"""; generated by gen/gen3.py
; @launch grid=(256,1,1) block=(256,1,1) lds={LDS_TOTAL}
.amdgcn_target "amdgcn-amd-amdhsa--gfx950"
.text
.globl {NAME}_kernel
.p2align 8
.type {NAME}_kernel,@function
{NAME}_kernel:
"""
    ftr = f"""
s_endpgm
.section .rodata,"a"
.p2align 6
.amdhsa_kernel {NAME}_kernel
  .amdhsa_next_free_vgpr 512
  .amdhsa_next_free_sgpr 102
  .amdhsa_accum_offset 256
  .amdhsa_group_segment_fixed_size 0
  .amdhsa_kernarg_size 88
  .amdhsa_user_sgpr_count 2
  .amdhsa_user_sgpr_kernarg_segment_ptr 1
  .amdhsa_system_sgpr_workgroup_id_x 1
.end_amdhsa_kernel
"""
    print('model time', P.t, 'nops', P.nnops, 'short waits', P.warn, file=sys.stderr)
    return hdr + body + ftr

if __name__ == '__main__':
    out = sys.argv[1]
    stop = int(sys.argv[2]) if len(sys.argv) > 2 else 99
    cfg = eval(sys.argv[3]) if len(sys.argv) > 3 else {}
    s = gen(stop, cfg)
    if cfg.get('prof'): s = f'; cfg {cfg}\n' + s
    open(out, 'w').write(s)
    print('lines', s.count('\n'))
```

```python
import re

def regs_of(tok):
    tok = tok.strip()
    neg = tok.lstrip('-|').rstrip('|')
    m = re.fullmatch(r'([vas])(\d+)', neg)
    if m: return [(m.group(1), int(m.group(2)))]
    m = re.fullmatch(r'([vas])\[(\d+):(\d+)\]', neg)
    if m: return [(m.group(1), i) for i in range(int(m.group(2)), int(m.group(3)) + 1)]
    if neg == 'vcc': return [('s', 106), ('s', 107)]
    if neg == 'vcc_lo': return [('s', 106)]
    if neg == 'vcc_hi': return [('s', 107)]
    if neg == 'exec': return [('s', 126), ('s', 127)]
    if neg == 'exec_lo': return [('s', 126)]
    if neg == 'exec_hi': return [('s', 127)]
    if neg == 'm0': return [('s', 124)]
    return []

TRANS = ('v_exp_', 'v_log_', 'v_rcp_', 'v_rsq_', 'v_sqrt_', 'v_sin_', 'v_cos_')

class Ins:
    def __init__(self, text):
        self.text = text
        t = text.split(';')[0].strip()
        self.label = None
        self.op = ''
        self.rd = []; self.wr = []
        self.kind = 'none'
        self.srcc = []; self.srcab = []
        self.data = []
        if not t or t.startswith('.'):
            return
        if t.endswith(':'):
            self.label = t[:-1]; return
        parts = t.split(None, 1)
        op = parts[0]; self.op = op
        rest = parts[1] if len(parts) > 1 else ''
        ops = []; cur = ''; d = 0
        for ch in rest:
            if ch == '[' or ch == '(': d += 1
            if ch == ']' or ch == ')': d -= 1
            if ch == ',' and d == 0: ops.append(cur.strip()); cur = ''
            else: cur += ch
        if cur.strip(): ops.append(cur.strip())
        mods = ''
        if ops:
            sp = ops[-1].split(None, 1)
            ops[-1] = sp[0]
            mods = sp[1] if len(sp) > 1 else ''
        self.ops = ops; self.mods = mods
        R = [regs_of(o) for o in ops]
        flat = lambda L: [x for l in L for x in l]
        if op.startswith('v_mfma'):
            self.kind = 'mfma'; self.wr = R[0]; self.srcab = R[1] + R[2]; self.srcc = R[3]; self.rd = self.srcab + self.srcc
            self.passes = 8 if '32x32' in op else 4
        elif op.startswith('v_permlane') and 'swap' in op:
            self.kind = 'valu'; self.wr = R[0] + R[1]; self.rd = R[0] + R[1]
        elif op.startswith('v_'):
            self.kind = 'valu'
            self.wr = R[0]; self.rd = flat(R[1:])
            if op.startswith('v_cmpx'): self.wr = self.wr + regs_of('exec')
            if 'dpp' in op or 'fmac' in op or 'dot2c' in op or op.startswith('v_writelane') or 'row_' in mods or 'quad_perm' in mods:
                self.rd = self.rd + R[0]
            if op.startswith('v_cndmask') and len(ops) == 3: self.rd = self.rd + regs_of('vcc')
            if '_co_' in op: self.wr = R[0] + R[1]; self.rd = flat(R[2:])
            self.dpp = ('dpp' in op) or ('row_' in mods) or ('quad_perm' in mods)
        elif op.startswith('ds_'):
            self.kind = 'ds'
            if op.startswith('ds_write'): self.rd = flat(R); self.data = flat(R[1:])
            else: self.wr = R[0]; self.rd = flat(R[1:])
        elif op.startswith('buffer_') or op.startswith('global_'):
            self.kind = 'vmem'
            islds = (' lds' in (' ' + mods)) or ('_lds_' in op)
            self.lds = islds
            if 'load' in op and not islds: self.wr = R[0]; self.rd = flat(R[1:])
            elif 'load' in op: self.rd = flat(R) + regs_of('m0')
            elif op.startswith('buffer_'):
                self.rd = flat(R); self.data = R[0]
                if 'atomic' in op and 'sc0' in mods: self.wr = R[0]
            else:
                self.rd = flat(R); self.data = R[1]
        elif op.startswith('s_load') or op.startswith('s_buffer_load') or op.startswith('s_mem'):
            self.kind = 'smem'; self.wr = R[0]; self.rd = flat(R[1:])
        elif op.startswith('s_'):
            self.kind = 'salu'
            if op.startswith(('s_cmp', 's_waitcnt', 's_barrier', 's_branch', 's_cbranch', 's_nop', 's_endpgm', 's_sleep', 's_setprio', 's_bitcmp')):
                self.rd = flat(R)
            else:
                self.wr = R[0]; self.rd = flat(R[1:])
                if 'saveexec' in op: self.wr = self.wr + regs_of('exec')
        else:
            raise ValueError('unknown op ' + op)
    def states(self):
        if self.op == 's_nop': return int(self.ops[0], 0) + 1
        return 1 if self.op else 0

def need(p, c):
    n = 0
    pw = set(p.wr);
    if p.kind == 'valu':
        vw = {r for r in pw if r[0] != 's'}; sw = {r for r in pw if r[0] == 's'}
        if c.kind == 'mfma' and vw & set(c.rd): n = max(n, 3 if p.op.startswith('v_dot') else 2)
        if c.kind == 'valu':
            if c.op.startswith('v_permlane') and vw & set(c.rd): n = max(n, 2)
            if getattr(c, 'dpp', False) and vw & set(c.rd): n = max(n, 2)
            if c.op.startswith(('v_readlane', 'v_readfirstlane')) and vw & set(c.rd): n = max(n, 1)
            if p.op.startswith(TRANS) and vw & set(c.rd): n = max(n, 1)
            if sw & set(c.rd): n = max(n, 4 if c.op.startswith(('v_readlane', 'v_writelane', 'v_div_fmas')) else 2)
            if ('op_sel' in p.mods or 'sdwa' in p.op or 'dst_sel' in p.mods) and not p.op.startswith('v_pk_') and vw & (set(c.rd) | set(c.wr)): n = max(n, 1)
            if ('s', 126) in sw:
                if getattr(c, 'dpp', False): n = max(n, 5)
                if c.op.startswith(('v_readlane', 'v_readfirstlane', 'v_writelane', 'v_permlane')): n = max(n, 4)
        if p.op.startswith('v_dot') and c.kind in ('valu', 'vmem', 'ds') and vw & (set(c.rd) | set(c.wr)):
            same_c = (c.op == p.op and c.kind == 'valu' and not (vw & set(x for o in c.ops[1:3] for x in regs_of(o))))
            if not same_c: n = max(n, 3)
        if c.kind == 'mfma' and ('s', 126) in sw: n = max(n, 4)
        if c.kind == 'vmem' and sw & set(c.rd): n = max(n, 5)
        if c.kind == 'salu' and sw & set(c.rd): n = max(n, 2)
        if c.op.startswith('s_cbranch_vcc') and ('s', 106) in sw: n = max(n, 0)
    elif p.kind == 'mfma':
        big = 8 if p.passes == 4 else 12
        if c.kind == 'mfma':
            if pw & set(c.srcab): n = max(n, big)
            if pw & set(c.srcc) and not (c.srcc == p.wr and c.passes == p.passes): n = max(n, 6 if p.passes == 4 else 10)
            if pw & set(c.wr) and not (pw & set(c.srcc)): n = max(n, 0)
        elif c.kind in ('valu', 'vmem', 'ds'):
            if pw & (set(c.rd) | set(c.wr)): n = max(n, big)
        if c.kind == 'valu' and set(p.srcc) & set(c.wr): n = max(n, 3 if p.passes == 4 else 7)
    elif p.kind == 'salu':
        if ('s', 124) in pw and c.kind == 'vmem' and getattr(c, 'lds', False): n = max(n, 1)
        if ('s', 124) in pw and c.kind == 'ds' and 'addtid' in c.op: n = max(n, 1)
    if p.kind == 'vmem' and len(p.data) >= 3 and set(p.data) & set(c.wr): n = max(n, 2 if c.kind in ('valu', 'mfma') else 1)
    if p.kind != 'valu' and getattr(c, 'dpp', False) and c.kind == 'valu' and {r for r in pw if r[0] != 's'} & set(c.rd) and p.kind in ('mfma',): n = max(n, 2)
    return n

class Prog:
    def __init__(self):
        self.L = []
        self.vm = []
        self.lg = []
        self.vt = []; self.warn = []; self.scale = 1.0
        self.cur = {'exec': 's_mov_b64 exec, -1'}; self.xlock = True; self.early = 32
        self.rt = 0; self.tl = 0; self.nxt = 0; self.slack = 0
        self.track = True
        self.uid = 0
        self.t = 0; self.mf = 0; self.vf = 0
        self.ool = []
        self.bg = []; self.lastbg = -10**9; self.gap = 72; self.step = 0
    def __call__(self, s, tag=None):
        for line in s.split('\n'):
            line = line.strip()
            if not line: continue
            self.L.append(line)
            op = line.split()[0]
            if op.startswith('s_') and len(line.split()) > 1:
                d = line.split()[1].rstrip(',')
                if d != 'exec' and not op.startswith(('s_cmp', 's_cbranch', 's_waitcnt', 's_branch', 's_nop')):
                    for k in [k for k, x in self.cur.items() if k != 'exec' and (k == d or d in x.replace(',', ' ').split()[2:])]: del self.cur[k]
            if op.endswith(':') or op.startswith(';') or not self.track: pass
            elif op.startswith('s_'): self.t += 4
            else:
                self.t = max(self.t, self.vf)
                if op.startswith('v_mfma'):
                    st = max(self.t, self.mf); self.mf = st + 16; self.t = st + 4; self.vf = st + 8
                elif op.startswith(('v_pk_fma_f32', 'v_pk_mul_f32', 'v_pk_add_f32', 'v_dot')): self.t = max(self.t, self.mf + 12) + 4
                elif op.startswith(TRANS + ('v_permlane',)): self.t += 8
                elif op.startswith('ds_write_b128'): self.t += 12
                elif op.startswith(('buffer_', 'global_')): self.t += 8
                else: self.t += 4
            if self.track:
                if op.startswith(('buffer_', 'global_')): self.vm.append(tag); self.vt.append(self.t)
                elif op.startswith('ds_'): self.lg.append(tag)
                elif op.startswith(('s_load', 's_buffer_load', 's_mem')): self.lg.append('SMEM')
    def tick(self, force=False):
        if not self.bg: return 0
        it = self.bg[0]
        if it.get('avail', -1) > self.step: return 0
        st = list(it.get('st', []))
        ex = it.get('ex', '-1')
        if not self.xlock: st.append(('exec', f's_mov_b64 exec, {ex}'))
        pre = [(r, x) for r, x in st if self.cur.get(r) != x]
        now = self.now()
        if not force:
            if pre and now >= self.nxt - self.early:
                for r, x in pre[:2]: self(x); self.cur[r] = x
                return len(pre[:2])
            if now < self.nxt: return 0
        for r, x in pre: self(x); self.cur[r] = x
        self.bg.pop(0)
        self.busy(it.get('gap', 72), force)
        if self.xlock and ex != '-1': self(f's_mov_b64 exec, {ex}')
        for x in it['ins']:
            if callable(x): x()
            elif isinstance(x, tuple): self(x[0], tag=x[1])
            else: self(x)
        if self.xlock and ex != '-1': self('s_mov_b64 exec, -1')
        return 2
    def pre(self, n=2):
        if not self.bg: return 0
        it = self.bg[0]
        if it.get('avail', -1) > self.step: return 0
        st = list(it.get('st', []))
        if not self.xlock: st.append(('exec', f's_mov_b64 exec, {it.get("ex", "-1")}'))
        pre = [(r, x) for r, x in st if self.cur.get(r) != x][:n]
        for r, x in pre: self(x); self.cur[r] = x
        return len(pre)
    def ready(self):
        if not self.bg: return False
        it = self.bg[0]
        if it.get('avail', -1) > self.step: return False
        return all(self.cur.get(r) == x for r, x in it.get('st', []))
    def age(self, tag):
        n = self._n(self.vm, tag)
        return 10**9 if n is None else self.t - self.vt[len(self.vm) - n - 1]
    def now(self):
        self.rt += (self.t - self.tl) * self.scale; self.tl = self.t
        return self.rt
    def busy(self, cost, reset=False):
        now = self.now()
        self.nxt = (now if reset else max(self.nxt, now - self.slack)) + cost
    def unlock(self): self.xlock = False
    def lock(self):
        if self.cur.get('exec') != 's_mov_b64 exec, -1': self('s_mov_b64 exec, -1'); self.cur['exec'] = 's_mov_b64 exec, -1'
        self.xlock = True
    def pending(self, tags):
        if not isinstance(tags, (list, tuple, set)): tags = [tags]
        return any(isinstance(x, tuple) and x[1] in tags for it in self.bg for x in it['ins'])
    def drain(self, tags):
        while self.pending(tags):
            assert self.tick(force=True), tags
    def lab(self, base='L'):
        self.uid += 1
        return f'{base}_{self.uid}'
    def _n(self, q, tags):
        if not isinstance(tags, (list, tuple, set)): tags = [tags]
        last = -1
        for i, t in enumerate(q):
            if t in tags: last = i
        if last < 0: return None
        return len(q) - 1 - last
    def wait(self, vm=None, lg=None):
        parts = []
        if vm is not None:
            n = 0 if vm == 0 else self._n(self.vm, vm)
            if n is not None:
                n = min(n, 63)
                if len(self.vm) > n:
                    ti = self.vt[len(self.vm) - n - 1]
                    if self.t - ti < 600: self.warn.append((self.vm[len(self.vm) - n - 1], self.t - ti, len(self.L)))
                parts.append(f'vmcnt({n})'); self.vm = self.vm[len(self.vm) - n:] if n else []; self.vt = self.vt[len(self.vt) - n:] if n else []
        if lg is not None:
            n = 0 if lg == 0 else self._n(self.lg, lg)
            if n is not None:
                if 'SMEM' in self.lg: n = 0
                n = min(n, 15)
                parts.append(f'lgkmcnt({n})'); self.lg = self.lg[len(self.lg) - n:] if n else []
        if parts: self.L.append('s_waitcnt ' + ' '.join(parts)); self.t += 4
    def room(self):
        return self.mf - max(self.t, self.vf)
    def finish(self):
        ins = [Ins(t) for t in self.L]
        out = []
        nn = 0
        for c in ins:
            if c.op:
                req = 0; el = 0
                for p in reversed(out):
                    if el >= 20: break
                    if p.op:
                        r = need(p, c) - el
                        req = max(req, r)
                        el += p.states()
                        if p.op in ('s_branch', 's_endpgm'): break
                if req > 0:
                    out.append(Ins(f's_nop {req-1}')); nn += 1
            out.append(c)
        labels = {x.label: i for i, x in enumerate(out) if x.label}
        for i, b in enumerate(out):
            if b.op.startswith(('s_branch', 's_cbranch')):
                tgt = labels[b.ops[0]]
                pre = []; el = 0
                for p in reversed(out[:i + 1]):
                    if el >= 20: break
                    if p.op: pre.append((p, el)); el += p.states()
                d = 0
                for c in out[tgt:]:
                    if d >= 20: break
                    if c.op:
                        for p, e in pre:
                            if need(p, c) > e + d - 0:
                                raise Exception(f'branch-edge hazard: {p.text} -> {c.text} via {b.text}')
                        d += c.states()
                        if c.op in ('s_branch', 's_endpgm'): break
        self.check_waits(out)
        self.nnops = nn
        return '\n'.join(('' if x.label else '  ') + x.text for x in out)
    def check_waits(self, out):
        vm = []; lg = []
        for c in out:
            if not c.op: continue
            if 'nocheck' in c.text: continue
            if c.op == 's_waitcnt':
                m = re.search(r'vmcnt\((\d+)\)', c.text)
                if m:
                    n = int(m.group(1)); vm = vm[len(vm) - n:] if n and len(vm) > n else (vm if n else [])
                m = re.search(r'lgkmcnt\((\d+)\)', c.text)
                if m:
                    n = int(m.group(1))
                    if n and any(k == 'smem' for k, _ in lg): pass
                    else: lg = lg[len(lg) - n:] if n and len(lg) > n else (lg if n else [])
                continue
            touched = set(c.rd) | set(c.wr)
            for q in (vm, lg):
                for k, w in q:
                    if w & touched and not (c.kind == k and c.kind in ('vmem', 'ds') and not (w & set(c.rd))):
                        raise Exception(f'unwaited reg {sorted(w & touched)} at: {c.text}')
            if c.kind == 'vmem': vm.append(('vmem', set(c.wr)))
            elif c.kind == 'ds': lg.append(('ds', set(c.wr)))
            elif c.kind == 'smem': lg.append(('smem', set(c.wr)))
```

```python
import sys, math, struct
from asmlib import Prog
NAME = "sequential_preLN__sliding_local_dilated__dense_activation_squared_relu__prompt"

FL = 0
WO = 0x10000
W1 = WO + 800 * 1024
W2 = W1 + 1920 * 1024
OB = W2 + 1920 * 1024
HB = OB + 128 * 20480
H1B = HB + 128 * 21504
PROFB = H1B + 128 * 49152
H1S = PROFB + 1024 * 256
WS_END = H1S + 128 * 49152

SLOT = 15424; HALF = 7712
XS = 20480
LDS_TOTAL = 163840
PP = 832
STG = 86016; STW = 19456
PIT = 336

SX, SWQ, SWS, SP0, SOUT, SDBG, SB1, SB2, SPD = 4, 8, 12, 16, 20, 24, 28, 32, 36
def srd(b): return f's[{b}:{b+3}]'
sW, sM, sRB = 's40', 's41', 's42'
sXT = ['s43', 's44', 's45', 's46', 's47']
sWM0, sXM0 = 's48', 's49'
sW0, sW1h = 's50', 's51'
sT2, sT3, sT4, sT5 = 's52', 's53', 's54', 's55'
sEXW = 's[56:57]'; sEXT0 = 's[58:59]'
sFAST, sFLOFF, sCNT, sXCC = 's60', 's61', 's62', 's63'
sOFF, sBG, sWOS, sW1S = 's96', 's97', 's98', 's99'
sW10 = 's3'
sJ = 's60'; sROT = ['s92', 's93', 's94', 's95']
sOBASE, sHBASE, sH1BASE, sW2S = 's64', 's65', 's66', 's67'
sM1, sM3, sM23 = 's[68:69]', 's[70:71]', 's[72:73]'
sA, sB, sC, sD = 's74', 's75', 's76', 's77'
sO1, sO2, sNEED, sH1 = 's78', 's79', 's80', 's81'
sEVN = 's[82:83]'; sOUTM = 's[84:85]'
sSTG, sHS, sHL, sG = 's86', 's87', 's88', 's89'

def v(i, n=1): return f'v{i}' if n == 1 else f'v[{i}:{i+n-1}]'
def a(i, n=1): return f'a{i}' if n == 1 else f'a[{i}:{i+n-1}]'
MF = 'v_mfma_f32_16x16x32_bf16'
SPIN = 200000
f2u = lambda f: struct.unpack('<I', struct.pack('<f', f))[0]

def pk_bc(reg):
    return v(reg & ~1, 2), reg & 1

def gen(cfg=None):
    cfg = cfg or {}
    P = Prog(); A = P
    tick = P.tick
    GAP = cfg.get('gap', 74)
    SPL = 0; SYM = cfg.get('sym', 0); AL = cfg.get('al', 1); PT = cfg.get('pt', 0) if AL else 0
    LEAD = cfg.get('lead', 3); NSLOT = cfg.get('nslot', LEAD + 1)
    XB = NSLOT * SLOT; PS = XB + 2 * XS
    assert PS + 32 * PP <= LDS_TOTAL
    vL16 = 1
    vWO = [2, 3, 4, 5]; vXO = 6; vAR = [7, 8]; vAX = [9, 10]; vB = [11, 12, 224, 225]
    FA = [20, 36]; FB = [52, 72]
    ACC = 92; GR = 172
    acc = lambda F, T: ACC + (T * 4 + F) * 4
    vFS = 254; vFV = 255; ONES = 240; XR = 244
    prof = cfg.get('prof'); P.stamps = ['entry', 'rt0']; P.prof = prof
    def stamp(name, lvl=1):
        if cfg.get('log'):
            tg = [x[1] for it in P.bg for x in it['ins'] if isinstance(x, tuple)]
            print(name, 't', P.t, 'bg', len(P.bg), tg[:1], tg[-1:], file=sys.stderr)
        if not prof or prof < lvl: return
        A('s_memtime s[100:101]'); P.wait(lg=0)
        A(f'v_writelane_b32 v19, s100, {len(P.stamps)}'); P.stamps.append(name)
    def emit(it):
        if it is None: return
        if callable(it): it()
        elif isinstance(it, tuple): A(it[0], tag=it[1])
        else: A(it)
    def AT(*ins):
        for x in ins: emit(x); tick()
    def flush(n=10**9):
        while n > 0 and tick(force=True): n -= 1
    if prof: A('s_memtime s[100:101]'); A('s_memrealtime vcc')
    KA = 76
    A(f's_load_dwordx16 s[{KA}:{KA+15}], s[0:1], 0')
    A(f's_load_dwordx2 s[{SWS}:{SWS+1}], s[0:1], 80')
    A(f's_load_dwordx2 s[{SOUT}:{SOUT+1}], s[0:1], 64')
    A(f's_load_dwordx2 s[{SDBG}:{SDBG+1}], s[0:1], 72')
    A('s_cmp_ge_u32 s2, 256')
    A('s_cbranch_scc1 L_end')
    A('v_lshrrev_b32 v13, 6, v0')
    A('v_and_b32 v0, 63, v0')
    A(f'v_readfirstlane_b32 {sW}, v13')
    A('v_lshlrev_b32 v1, 4, v0')
    A('v_lshlrev_b32 v17, 7, v0')
    A(f's_bfe_u32 {sM}, s2, 0x30003')
    CPF = cfg.get('cpf', 4)
    if CPF:
        A('s_getpc_b64 s[64:65]'); A('L_pc:')
        if CPF == 4: A(f's_lshr_b32 {sT2}, s2, 3'); A(f's_lshl_b32 {sT2}, {sT2}, 2')
        else: A(f's_lshl_b32 {sT2}, {sM}, 2')
        A(f's_add_u32 {sT2}, {sT2}, {sW}'); A(f's_mul_i32 {sT2}, {sT2}, {CPF*128}')
        A(f'v_add_u32 v13, {sT2}, v17'); A('v_min_u32 v13, L_end-L_pc, v13')
        A(f's_mov_b64 exec, {(1 << CPF) - 1:#x}')
        A('global_load_dword v253, v13, s[64:65]', tag='pf')
        A('s_mov_b64 exec, -1')
    for b, n in ((SX, 2621440), (SWQ, 2457600), (SWS, WS_END), (SOUT, 2621440), (SDBG, 256), (SB1, 3072), (SB2, 1280)):
        A(f's_mov_b32 s{b+2}, {n}'); A(f's_mov_b32 s{b+3}, 0x20000')
    A(f's_mov_b32 s{SP0+3}, 0x20000'); A(f's_mov_b32 s{SPD+3}, 0x20000')
    A(f's_and_b32 {sRB}, s2, 7'); A(f's_lshl_b32 {sRB}, {sRB}, 2'); A(f's_lshr_b32 {sJ}, s2, 6'); A(f's_add_u32 {sRB}, {sRB}, {sJ}')
    A(f's_mul_i32 {sXT[1]}, {sRB}, {64*1280}')
    A(f's_and_b32 {sW0}, {sW}, 1'); A(f's_lshr_b32 {sW1h}, {sW}, 1')
    def setup_wx():
        A(f's_sub_u32 {sXT[0]}, {sXT[1]}, {16*1280}'); A(f's_cselect_b32 {sXT[0]}, 0, {sXT[0]}')
        for T in range(2, 5): A(f's_add_u32 {sXT[T]}, {sXT[1]}, {(T-1)*16*1280}')
        A(f's_mul_i32 {sWM0}, {sW0}, {8*1280}'); A(f's_lshl_b32 {sXM0}, {sW1h}, 7'); A(f's_add_u32 {sWM0}, {sWM0}, {sXM0}')
        A('v_lshrrev_b32 v13, 3, v0'); A(f'v_mul_u32_u24 v13, 1280, v13')
        A('v_lshrrev_b32 v14, 4, v0')
        A(f's_lshl_b32 {sXM0}, {sW0}, 2')
        A(f'v_add_u32 v15, {sXM0}, v14'); A('v_and_b32 v16, 7, v0'); A('v_xor_b32 v15, v15, v16')
        A(f'v_lshl_add_u32 v13, v15, 4, v13'); A(f'v_add_u32 {v(vXO)}, {sWM0}, v13')
        A(f's_mul_i32 {sXM0}, {sW1h}, 10240'); A(f's_lshl_b32 {sWM0}, {sW0}, 10'); A(f's_add_u32 {sXM0}, {sXM0}, {sWM0}')
        A(f's_mov_b32 s59, -1'); A(f's_cmp_eq_u32 {sW0}, 0'); A(f's_cselect_b32 s58, 0xffffff00, -1')
        A('v_mul_u32_u24 v13, 69, v0'); A('v_lshrrev_b32 v13, 11, v13')
        A('v_mul_u32_u24 v15, 30, v13'); A('v_sub_u32 v15, v0, v15')
        A('v_mul_u32_u24 v16, 26, v15'); A('v_lshrrev_b32 v16, 8, v16')
        A('v_mul_u32_u24 v13, 3840, v13')
        A('v_mul_u32_u24 v16, 1120, v16')
        A('v_lshl_add_u32 v13, v15, 4, v13'); A('v_add_u32 v13, v13, v16')
        A(f's_lshl_b32 s56, {sW0}, 4'); A(f's_lshl_b32 s57, {sW1h}, 2'); A(f's_add_u32 s56, s56, s57')
        A(f's_mul_i32 s56, s56, 3840'); A(f's_mul_i32 s57, {sM}, 160'); A(f's_add_u32 s56, s56, s57')
        A(f'v_add_u32 {v(vWO[0])}, s56, v13')
        for q in range(1, 4): A(f'v_add_u32 {v(vWO[q])}, {(8*(q>>1)+2*(q&1))*3840 - 960*q}, {v(vWO[0])}')
        A(f's_mul_i32 {sWM0}, {sW1h}, {HALF}'); A(f's_mul_i32 s57, {sW0}, {8*480}'); A(f's_add_u32 {sWM0}, {sWM0}, s57')
        A(f's_mov_b32 s56, -1'); A(f's_mov_b32 s57, 0x0fffffff')
        for p in range(4):
            A(f's_add_u32 {sROT[p]}, {sJ}, {p}'); A(f's_and_b32 {sROT[p]}, {sROT[p]}, 3'); A(f's_mul_i32 {sROT[p]}, {sROT[p]}, {32*3840}')
    sPR = ['s64', 's65']; sPP, sPD0, sPD1, sPD2, sPTYPE = 's66', 's67', 's68', 's69', 's70'
    sEXP = 's[72:73]'; kap, part = 's74', 's75'
    u0, u1, u2, u3 = 's97', 's98', 's99', 's71'
    sPM0 = 's62'
    def setup_p0():
        A(f's_mov_b32 {sPTYPE}, 0')
        A(f's_mov_b32 {sT2}, s2')
        A(f's_mov_b32 s{SP0+2}, 819200'); A(f's_mov_b32 s{SPD+2}, {WS_END}')
        A(f's_mov_b32 {sPP}, 1280'); A(f's_mov_b32 s72, -1'); A(f's_mov_b32 s73, 0xff')
        A(f's_mov_b32 {sT4}, 20'); A(f's_mov_b32 {sT5}, {WO}')
        A('s_cmp_lt_u32 s2, 40'); A('s_cbranch_scc1 L_p0t')
        A(f's_mov_b32 {sPTYPE}, 1'); A(f's_sub_u32 {sT2}, s2, 40')
        A(f's_mov_b32 s{SP0+2}, 1966080')
        A(f's_mov_b32 {sT4}, 48'); A(f's_mov_b32 {sT5}, {W2}')
        A('s_cmp_lt_u32 s2, 136'); A('s_cbranch_scc1 L_p0t')
        A(f's_mov_b32 {sPTYPE}, 2'); A(f's_sub_u32 {sT2}, s2, 136')
        A(f's_mov_b32 {sPP}, 3072'); A(f's_mov_b32 s73, 0xffff')
        A('s_cmp_lt_u32 s2, 216'); A('s_cbranch_scc1 L_p0t')
        A(f's_mov_b32 s{SP0+2}, 0'); A(f's_mov_b32 s{SPD+2}, 0')
        A('L_p0t:')
        A(f's_lshr_b32 {kap}, {sT2}, 1'); A(f's_and_b32 {part}, {sT2}, 1')
        A(f's_lshr_b32 {sT3}, {sT2}, 2'); A(f's_and_b32 {u0}, {sT2}, 3')
        A(f's_cmp_eq_u32 {sPTYPE}, 2'); A(f's_cselect_b32 {kap}, {sT3}, {kap}'); A(f's_cselect_b32 {part}, {u0}, {part}')
        A(f's_cselect_b32 {u0}, 6, 5'); A(f's_mul_i32 {u0}, {u0}, {part}'); A(f's_lshl_b32 {u0}, {u0}, 7')
        A(f's_lshl_b32 {u1}, {kap}, 1'); A(f's_add_u32 {u1}, {u1}, {sW0}')
        A(f's_lshl_b32 {u2}, {u1}, 4'); A(f's_lshl_b32 {u3}, {sW1h}, 2'); A(f's_add_u32 {sPR[0]}, {u2}, {u3}')
        A(f's_mov_b32 {sPR[1]}, 8')
        A(f's_cmp_lg_u32 {sPTYPE}, 0'); A('s_cbranch_scc1 L_p0r')
        A(f's_mul_i32 {u2}, {u1}, 20'); A(f's_add_u32 {sPR[0]}, {u2}, {u3}')
        A(f's_cmp_lt_u32 {kap}, 16'); A('s_cbranch_scc1 L_p0r')
        A(f's_lshl_b32 {u2}, {kap}, 1'); A(f's_add_u32 {u2}, {u2}, {sW1h}'); A(f's_lshl_b32 {u2}, {u2}, 1'); A(f's_add_u32 {u2}, {u2}, {sW0}')
        A(f's_mul_i32 {u2}, {u2}, 40'); A(f's_sub_u32 {sPR[0]}, {u2}, {2560 - 16}'); A(f's_mov_b32 {sPR[1]}, 20')
        A('L_p0r:')
        A(f's_add_u32 {sPR[1]}, {sPR[1]}, {sPR[0]}')
        for e in range(2): A(f's_mul_i32 {sPR[e]}, {sPR[e]}, {sPP}'); A(f's_add_u32 {sPR[e]}, {sPR[e]}, {u0}')
        A(f's_mul_i32 {sPM0}, {sW}, {8*PP}')
    XG = cfg.get('xgap', 74); WG = cfg.get('wgap', 108)
    def xdma(S):
        return [dict(st=[('m0', f's_add_u32 m0, {sXM0}, {XB + (S % 2)*XS + T*2048 - S*256}')], ex=sEXT0 if T == 0 else '-1', gap=XG,
                     ins=[(f'buffer_load_dwordx4 {v(vXO)}, {srd(SX)}, {sXT[T]} offen offset:{S*256} {cfg.get("xfl", "")} lds', f'x{S}')]) for T in range(5)]
    def wdma(ks):
        so = sROT[ks % 4] if ks < 4 else sOFF
        st = [('m0', f's_add_u32 m0, {sWM0}, {(ks % NSLOT)*SLOT}')]
        if ks >= 4: st.append((sOFF, f's_add_u32 {sOFF}, {sROT[ks % 4]}, {(ks//4)*4*32*3840}'))
        return [dict(st=st, ex=sEXW, gap=WG,
                     ins=[(f'buffer_load_dwordx4 {v(vWO[q])}, {srd(SWQ)}, {so} offen offset:{960*q} {cfg.get("wfl", "")} lds', f'w{ks}')]) for q in range(4)]
    order = cfg.get('ord', 'p x t P W0 X0 W1 | W2').split()
    if not PT: order = [t for t in order if t != 't']
    setup_p0(); setup_wx()
    A(f's_lshl_b32 {sT2}, s2, 2'); A(f's_add_u32 {sT2}, {sT2}, {sW}'); A(f's_mul_i32 {sT2}, {sT2}, {19*128}')
    A(f's_lshl_b32 {sT3}, {sM}, 2'); A(f's_add_u32 {sT3}, {sT3}, {sW}'); A(f's_mul_i32 {sT3}, {sT3}, 2560'); A(f's_add_u32 {sT3}, {sT3}, {sXT[1]}')
    if PT:
        A(f's_lshl_b32 s96, {sM}, 2'); A(f's_add_u32 s96, s96, {sW}'); A(f's_mul_i32 s96, s96, {(48 if PT == 2 else 7)*128}')
        if PT == 1:
            A('v_add_u32 v18, s96, v17'); A('v_lshrrev_b32 v13, 14, v18'); A('v_mul_u32_u24 v13, 86016, v13'); A('v_add_u32 v18, v18, v13'); A('s_mov_b32 s96, 81920')
        A(f's_mul_i32 s97, {sRB}, {4*49152}'); A('s_add_u32 s96, s96, s97'); A(f's_add_u32 s96, s96, {H1B}')
    if 'T' in order:
        A('v_lshlrev_b32 v18, 20, v0'); A('s_lshl_b32 s96, s2, 7'); A('v_add_u32 v18, s96, v18')
        A(f's_mul_i32 s97, {sRB}, {4*49152}'); A(f's_add_u32 s97, s97, {H1B}'); A('v_writelane_b32 v18, s97, 6')
        A(f's_add_u32 s97, s97, {4*49152 - 128}'); A('v_writelane_b32 v18, s97, 7'); A(f's_mov_b32 s97, {OB - 128}'); A('v_writelane_b32 v18, s97, 5')
    P.wait(lg=0)
    if 'T' in order: A(f's_mov_b64 s[{SB1}:{SB1+1}], s[{KA+10}:{KA+11}]'); A(f's_mov_b64 s[{SB2}:{SB2+1}], s[{KA+14}:{KA+15}]')
    if prof: A('v_writelane_b32 v19, s100, 0'); A('v_writelane_b32 v19, vcc_lo, 1')
    stamp('karg', 2)
    A(f's_mov_b64 s[{SWQ}:{SWQ+1}], s[{KA+2}:{KA+3}]'); A(f's_mov_b64 s[{SX}:{SX+1}], s[{KA}:{KA+1}]')
    A(f's_cmp_eq_u32 {sPTYPE}, 0'); A(f's_cselect_b64 s[{SP0}:{SP0+1}], s[{KA+4}:{KA+5}], s[{KA+12}:{KA+13}]')
    A(f's_cmp_eq_u32 {sPTYPE}, 2'); A(f's_cselect_b64 s[{SP0}:{SP0+1}], s[{KA+8}:{KA+9}], s[{SP0}:{SP0+1}]')
    done = set()
    def tok_items(t):
        done.add(t)
        if t == 'p': return [dict(ex='0x7ffff', ins=[(f'buffer_load_dword v252, v17, {srd(SWQ)}, {sT2} offen', 'pf')])]
        if t == 'x': return [dict(ex='0xfffff', ins=[(f'buffer_load_dword v251, v17, {srd(SX)}, {sT3} offen', 'pf')])]
        if t == 't':
            if PT == 2: return [dict(ins=['s_mov_b32 exec_hi, 0xffff', (f'buffer_load_dword v250, v17, {srd(SWS)}, s96 offen', 'pf'), 's_mov_b32 exec_hi, -1'])]
            return [dict(ex='0x7f', ins=[(f'buffer_load_dword v250, v18, {srd(SWS)}, s96 offen', 'pf')])]
        if t == 'T':
            return [dict(ex='0xff', ins=[(f'buffer_load_dword v250, v18, {srd(SWS)}, 0 offen sc1', 'pf')]),
                    dict(ex='1', ins=[(f'buffer_load_dword v249, off, {srd(SOUT)}, {sXT[1]}', 'pf'), (f'buffer_load_dword v248, off, {srd(SDBG)}, 0 sc1', 'pf'),
                                      (f'buffer_load_dword v247, off, {srd(SB1)}, 0', 'pf'), (f'buffer_load_dword v246, off, {srd(SB2)}, 0', 'pf')])]
        if t == 'U': return [dict(ex='1', ins=[(f'buffer_load_dword v245, off, {srd(SP0)}, {sPR[0]}', 'pf'), (f'buffer_load_dword v244, off, {srd(SX)}, {sXT[1]}', 'pf')])]
        if t == 'P':
            L = []
            for e in range(2):
                for r in range(4):
                    L.append(dict(st=[('m0', f's_add_u32 m0, {sPM0}, {PS + (4*e + r)*PP}')], ex=sEXP,
                                  ins=([f's_add_u32 {sPR[e]}, {sPR[e]}, {sPP}'] if r else []) +
                                  [(f'buffer_load_dwordx4 {v(vL16)}, {srd(SP0)}, {sPR[e]} offen {cfg.get("p0fl", "nt")} lds', 'p0')]))
            return L
        if t[0] == 'W': return wdma(int(t[1:]))
        if t[0] == 'X': return xdma(int(t[1:]))
    cut = order.index('|')
    assert not set('pxtTU') & set(order[cut:]) and not (PT and 'T' in order) and ('U' not in order or order.index('U') < order.index('P'))
    P.unlock()
    for t in order[:cut]: P.bg += tok_items(t)
    flush(); P.lock()
    stamp('iss0', 2)
    A(f's_mov_b64 s[{SPD}:{SPD+1}], s[{SWS}:{SWS+1}]')
    if 'T' not in order: A(f's_mov_b64 s[{SB1}:{SB1+1}], s[{KA+10}:{KA+11}]'); A(f's_mov_b64 s[{SB2}:{SB2+1}], s[{KA+14}:{KA+15}]')
    A(f's_lshl_b32 {sFLOFF}, {sRB}, 7')
    A(f's_lshl_b32 {sT3}, {sW}, 3'); A(f's_add_u32 {sT2}, {sM}, {sT3}'); A(f's_lshl_b32 {sT2}, {sT2}, 2')
    A(f'v_mov_b32 {v(vFS)}, {sT2}'); A(f'v_mov_b32 {v(vFV)}, 0')
    clr = dict(ex='1', gap=16, ins=[(f'buffer_store_dword {v(vFV)}, {v(vFS)}, {srd(SWS)}, {sFLOFF} offen {cfg.get("p0sf", "sc1")}', 'p0s')])
    A(f's_lshl_b32 s77, {part}, 2'); A(f's_add_u32 s77, s77, {sW}')
    A(f's_mul_i32 s78, s77, {sT4}'); A(f's_add_u32 s78, s78, {kap}'); A('s_mul_i32 s78, s78, 5120'); A(f's_add_u32 {sPD0}, s78, {sT5}')
    A(f's_add_u32 {sPD1}, {sPD0}, 3072')
    A('s_mul_i32 s78, s77, 40'); A(f's_add_u32 s78, s78, {kap}'); A('s_mul_i32 s78, s78, 3072'); A(f's_add_u32 s78, s78, {W1}')
    A('s_add_u32 s79, s78, 61440')
    A(f's_cmp_eq_u32 {sPTYPE}, 2'); A(f's_cselect_b32 {sPD0}, s78, {sPD0}'); A(f's_cselect_b32 {sPD1}, s79, {sPD1}')
    A(f's_cselect_b32 {sPD2}, s79, 0x40000000')
    A('s_cselect_b64 vcc, -1, 0'); A('s_cselect_b32 s79, 24, 0')
    A('s_cselect_b32 s78, 6, 5'); A(f's_mul_i32 s78, s78, {sW}'); A('s_lshl_b32 s78, s78, 5'); A(f's_add_u32 s78, s78, {PS}')
    vP, vS, vP2, vP3, vP4 = 192, 193, 194, 195, 220
    for x in ('v_lshrrev_b32 v13, 2, v0', 'v_and_b32 v15, 3, v0',
       f'v_mul_u32_u24 v16, {PP}, v13', f'v_add_u32 v16, s78, v16',
       f'v_lshl_add_u32 {v(vP)}, v15, 4, v16', f'v_lshl_add_u32 {v(vS)}, v15, 3, v16',
       f'v_cndmask_b32 {v(vP2)}, {v(vP)}, {v(vS)}, vcc', f'v_add_u32 {v(vP3)}, s79, {v(vP)}',
       f'v_add_u32 v16, 24, {v(vS)}', f'v_cndmask_b32 {v(vP4)}, v16, {v(vP)}, vcc',
       f's_mul_i32 {sT2}, {sW}, 40',
       f'v_mul_u32_u24 v16, 480, v13', f'v_add_u32 v16, {sT2}, v16',
       f'v_lshl_add_u32 {v(vAR[0])}, v15, 3, v16',
       f'v_mul_u32_u24 v17, 160, v15', f'v_add3_u32 v16, v16, v17, 32',
       'v_cmp_eq_u32 vcc, 3, v15', 'v_mov_b32 v17, 7680', f'v_cndmask_b32 {v(vAX[0])}, v16, v17, vcc',
       *([f'v_add_u32 {v(vAR[1])}, {4*SLOT}, {v(vAR[0])}', f'v_add_u32 {v(vAX[1])}, {4*SLOT}, {v(vAX[0])}'] if NSLOT > 4 else []),
       'v_and_b32 v16, 15, v0',
       'v_lshrrev_b32 v17, 1, v16', 'v_xor_b32 v17, v17, v14', 'v_lshlrev_b32 v17, 4, v17',
       f'v_lshl_add_u32 v17, v16, 7, v17',
       *[y for p in range(4) for y in (f's_add_u32 {sT2}, {sJ}, {p}', f's_bfe_u32 {sT3}, {sT2}, 0x10001', f's_mul_i32 {sT3}, {sT3}, 10240', f's_add_u32 {sT3}, {sT3}, {XB}',
                                       f's_and_b32 {sT2}, {sT2}, 1', f's_lshl_b32 {sT2}, {sT2}, 6', f'v_xor_b32 v18, {sT2}, v17', f'v_add_u32 {v(vB[p])}, {sT3}, v18')],
       f'v_min_u32 v17, {2*NSLOT-1}, v0', f'v_mul_u32_u24 v17, {HALF}, v17',
       'v_mov_b32 v222, 0x3f80', 'v_mov_b32 v223, 0',
       'ds_write_b64 v17, v[222:223] offset:7680',
       *[f'v_mov_b32 {v(ONES+i)}, 0x3f803f80' for i in range(4)],
       'v_bfe_u32 v17, v0, 3, 2', 'v_mul_u32_u24 v17, 10240, v17', 'v_and_b32 v18, 7, v0',
       f'v_lshl_add_u32 v17, v18, 4, v17', f'v_add_u32 v17, {XB}, v17',
       f'ds_write_b128 v17, {v(ONES,4)}'): A(x)
    P.unlock()
    for t in order[cut+1:]: P.bg += tok_items(t)
    flush(); P.lock()
    stamp('issued')
    BP, BC, BP1 = 228, 232, 236
    late = ['v_lshlrev_b32 v17, 2, v14', 'v_sub_u32 v17, v16, v17', 'v_mov_b32 v222, 0xf149f2ca']
    for r in range(4):
        for (dst, add) in ((BC, -r), (BP, 16 - r)):
            late += [f'v_add_u32 v18, {add}, v17', 'v_and_b32 v18, 0xfffffff1, v18',
                     'v_cmp_eq_u32 vcc, 0, v18', None, f'v_cndmask_b32 {v(dst+r)}, v222, 0, vcc']
    late += [lambda: (A(f's_cmp_eq_u32 {sRB}, 0'), A('s_cselect_b64 vcc, -1, 0'))]
    for r in range(4): late.append(f'v_cndmask_b32 {v(BP1+r)}, {v(BP+r)}, v222, vcc')
    late += [f's_lshl_b32 {sW10}, {sW}, 10',
       f's_mul_i32 {sWOS}, {sM}, 102400', f's_add_u32 {sWOS}, {sWOS}, {sW10}', f's_add_u32 {sWOS}, {sWOS}, {WO}',
       f's_lshl_b32 {sT2}, {sM}, 2', f's_add_u32 {sT2}, {sT2}, {sW}',
       f's_mul_i32 {sW1S}, {sT2}, 61440', f's_add_u32 {sW1S}, {sW1S}, {W1}',
       f's_getreg_b32 {sXCC}, hwreg(HW_REG_XCC_ID)', f's_and_b32 {sXCC}, {sXCC}, 7', f's_or_b32 {sXCC}, {sXCC}, 0x80']

    def frag_reads(ks):
        b = ks & 1; sl = ks % NSLOT; st = sl // 4; so = (sl % 4) * SLOT
        S = ks // 4; xo = (S % 2) * XS
        L = []
        L.append(f'ds_read_b128 {v(FB[b],4)}, {v(vB[ks&3])} offset:{xo}')
        for F in range(4):
            for jj in range(2):
                if F < 3: L.append(f'ds_read_b64_tr_b16 {v(FA[b]+4*F+2*jj,2)}, {v(vAR[st])} offset:{so + jj*HALF + F*160}')
                else: L.append(f'ds_read_b64_tr_b16 {v(FA[b]+4*F+2*jj,2)}, {v(vAX[st])} offset:{so + jj*HALF}')
        for T in range(1, 5): L.append(f'ds_read_b128 {v(FB[b]+4*T,4)}, {v(vB[ks&3])} offset:{xo + T*2048}')
        return L
    SP = cfg.get('sp', 1); SA = cfg.get('sa', 7); SC = cfg.get('sc', 15)
    def free_at(lo, hi):
        t = SC
        for ks in range(20):
            s0 = (ks % NSLOT) * SLOT
            if lo < s0 + SLOT and hi > s0: t = max(t, ks)
        for S in range(5):
            s0 = XB + (S % 2) * XS
            if lo < s0 + XS and hi > s0: t = max(t, 4*S + 3)
        return t
    groups = sorted([(l, free_at(l, l + 4096)) for l in range(61440, LDS_TOTAL, 4096)], key=lambda x: (x[1], -x[0]))
    assert len(groups) == 25
    sRW1 = ['s43', 's45', 's46', 's47']; sRO = ['s49', 's58', 's59', 's91']; sRW2 = sROT; sRQ = ['s56', 's57', 's48', 's96']
    idx = [('o', i) for i in range(5)] + [('1', i) for i in range(15)] + [('2', i) for i in range(15)]
    LQ = cfg.get('lq', 4); seq = []
    for i in range(-LQ, 35):
        if i + LQ < 35: seq.append(idx[i + LQ] + (0,))
        if i >= 0: seq += [idx[i] + (q,) for q in (1, 2, 3)]
    for i in range(5): seq.insert(cfg.get('wt0', 1) + i * cfg.get('wts', 2), ('o', i, 4))
    so = [x for x in seq if x[0] == 'o']; s1 = [x for x in seq if x[0] == '1']; s2_ = [x for x in seq if x[0] == '2']
    wo_loc = lambda f: groups[so.index(('o', (f // 4) % 5, f // 20))][0] + (f % 4) * 1024
    W2T = [(a(240 + 4*i, 4), 100) for i in range(4)] + [(v(192 + 4*i, 4), 150) for i in range(9)] + \
          [(v(100 + 4*i, 4), 200 + i + 3 if i < 18 else 310) for i in range(23)] + [(v(244, 4), 310), (v(248, 4), 310)] + \
          [(v(228 + 4*i, 4), 330) for i in range(3)] + [(a(48 + 4*i, 4), 400) for i in range(19)]
    w2pos = lambda r: s2_.index(('2', 5*(r // 20) + r % 5, (r // 5) % 4))
    w2reg = lambda r: W2T[w2pos(r)][0]
    def rot(regs, stride, base):
        L = [f's_lshr_b32 {sT3}, s2, 6' if cfg.get('rot', 1) else f's_mov_b32 {sT3}, 0']
        for q in range(4): L += [f's_add_u32 {sT2}, {sT3}, {q}', f's_and_b32 {sT2}, {sT2}, 3', f's_mul_i32 {sT2}, {sT2}, {stride}', f's_add_u32 {regs[q]}, {sT2}, {base}']
        return L
    def w_item(x):
        t, i, q = x; GAP = cfg.get('wg', 74); SF = cfg.get('sf', ['sc1']*5)[q]
        if t == 'o':
            g = groups[so.index(x)]
            return dict(st=[('m0', f's_add_u32 m0, {sW10}, {g[0]}'), (sBG, f's_add_u32 {sBG}, {sRO[q]}, {i*4096}' if q < 4 else f's_add_u32 {sBG}, {sWOS}, {(20 + i)*4096}')],
                        ins=[(f'buffer_load_dwordx4 {v(vL16)}, {srd(SWS)}, {sBG} offen {SF} lds', 'wo')], avail=g[1], gap=GAP)
        if t == '1':
            f = 15*q + i
            return dict(st=[(sBG, f's_add_u32 {sBG}, {sRW1[q]}, {(i & ~3)*1024}')] if i > 3 else [], gap=GAP,
                        ins=[(f'buffer_load_dwordx4 {a(4*f, 4)}, {v(vL16)}, {srd(SWS)}, {sBG if i > 3 else sRW1[q]} offen offset:{(i & 3)*1024} {SF}', f'w1_{f}')])
        c = s2_.index(x); r = 5*(4*(i // 5) + q) + i % 5
        st = [(sBG, f's_add_u32 {sBG}, {sRW2[q]}, {(i // 5)*20480 + (i % 5)*1024}')]
        if c < 41: return dict(st=st, gap=GAP, avail=W2T[c][1], ins=[(f'buffer_load_dwordx4 {W2T[c][0]}, {v(vL16)}, {srd(SWS)}, {sBG} offen {SF}', f'w2_{r}')])
        return dict(st=st + [('m0', f's_add_u32 m0, {sSTG}, {(c - 41)*1024}')], gap=GAP, avail=330 if cfg.get('sgb', 0) or SYM else 400,
                    ins=[(f'buffer_load_dwordx4 {v(vL16)}, {srd(SWS)}, {sBG} offen {SF} lds', f'sg{c - 41}')])
    def ld_items(regf, sbase, tagp, lo, hi, avail=-1, gap=GAP, sreg=sBG, off=0):
        return [dict(st=[(sreg, f's_add_u32 {sreg}, {sbase}, {off + (f//4)*4096}')], avail=avail(f) if callable(avail) else avail, gap=gap,
                     ins=[(f'buffer_load_dwordx4 {regf(f)}, {v(vL16)}, {srd(SWS)}, {sreg} offen offset:{(f%4)*1024} sc1', f'{tagp}{f}')]) for f in range(lo, hi)]
    w1reg = lambda f: a(4*f, 4)

    TB = 196
    def p0_reads():
        return [f'ds_read_b64_tr_b16 {v(TB+4*j+2*jj,2)}, {v(vr)} offset:{off + jj*16*PP}'
                for j, (vr, off) in enumerate([(vP, 0), (vP, 8), (vP2, 64), (vP3, 72), (vP4, 104), (vS, 160)]) for jj in range(2)]
    p0st = [dict(ins=[(f'buffer_store_dwordx4 {v(TB+4*j,4)}, {v(vL16)}, {srd(SPD)}, {(sPD0, sPD0, sPD0, sPD1, sPD1, sPD2)[j]} offen offset:{(j%3)*1024} {cfg.get("p0sf", "sc1")}', 'p0s')], gap=256) for j in range(6)]
    plan = {ks: [] for ks in range(20)}
    for k in range(20):
        if f'W{k}' not in done: plan[max(0, k - LEAD)] += wdma(k)
    for S in range(5):
        if f'X{S}' in done: continue
        xs = xdma(S); s0 = 4*S - 5 + cfg.get('xd', 0)
        for i, it in enumerate(xs): plan[max(0, s0 + i // 2)].append(it)
    if 'P' not in done: plan[cfg.get('pl', 0)] += tok_items('P')
    plan[cfg.get('cl', 0)].append(clr)
    spn = cfg.get('spn', 2)
    if SP < 0:
        P.wait(vm='p0', lg=0); A('s_barrier')
        stamp('p0in', 2)
        for s in p0_reads(): A(s)
    for j in range(6): plan[SP + 1 + j // spn].append(p0st[j])
    assert SP + 1 + 5 // spn < SA
    P.wait(vm=['x0', 'w0'], lg=0); A('s_barrier')
    stamp('first')
    for s in frag_reads(0): A(s)
    sc = (20 ** -0.5) * math.log2(math.e)
    vBA, vBB = 226, 227
    CS = 20; KXV = 56; QF = 192; VT0 = 208; VT1 = 218
    SB = [GR, GR + 4, GR + 8, 52, GR + 16]
    RQ, RS, NM, RX = [[x + i for x in SB] for i in range(4)]
    stats = []
    for T in range(5):
        g = GR + 4*T
        stats += [f'v_cndmask_b32 {v(g)}, {v(g)}, {v(g+1)}, {sM1}', f'v_cndmask_b32 {v(g+2)}, {v(g+2)}, {v(g+3)}, {sM3}',
                  f'v_cndmask_b32 {v(g)}, {v(g)}, {v(g+2)}, {sM23}',
                  (f'ds_bpermute_b32 {v(NM[T])}, {v(vBB)}, {v(acc(3,T))}', 'st'), (f'ds_bpermute_b32 {v(RS[T])}, {v(vBA)}, {v(g)}', 'st')]
    stats += [f'v_mov_b32_dpp {v(CS+4*F+r)}, {v(acc(F,0)+r)} row_newbcast:0 row_mask:0xf bank_mask:0xf' for F in (3, 0, 1, 2) for r in range(4)]
    stats.insert(len(stats) - cfg.get('stw', 8), lambda: P.wait(lg='st'))
    ch = [f'v_mul_f32 {v(NM[T])}, {f2u(-1.0/640):#x}, {v(NM[T])}' for T in range(5)] + [f'v_mul_f32 {v(RS[T])}, {f2u(1.0/640):#x}, {v(RS[T])}' for T in range(5)]
    ch += [f'v_fma_f32 {v(RS[T])}, -{v(NM[T])}, {v(NM[T])}, {v(RS[T])}' for T in range(5)] + [f'v_max_f32 {v(RS[T])}, 0, {v(RS[T])}' for T in range(5)]
    ch += [f'v_add_f32 {v(RS[T])}, {f2u(1e-5):#x}, {v(RS[T])}' for T in range(5)] + [f'v_rsq_f32 {v(RS[T])}, {v(RS[T])}' for T in range(5)]
    ch += [f'v_mul_f32 {v(RX[T])}, v221, {v(RS[T])}' for T in range(5)] + [f'v_mul_f32 {v(RQ[T])}, {f2u(sc):#x}, {v(RS[T])}' for T in range(1, 5)]
    stats += ch
    for ks in range(20):
        tags = []
        if ks + 1 < 20: tags = [f'w{ks+1}', f'x{(ks+1)//4}']
        assert not P.pending(tags)
        if ks == SP: tags.append('p0')
        if ks == cfg.get('wb', SA): tags.append('p0s')
        P.wait(vm=tags, lg=0); A('s_barrier')
        P.step = ks
        stamp(f'k{ks}', 1 if ks % 4 == 0 or ks == 19 else 2)
        fill = list(frag_reads(ks + 1)) if ks + 1 < 20 else []
        if ks == SP: fill += p0_reads()
        if ks == cfg.get('wb'):
            assert ks + 2 <= SA and not any(y[1] == 'p0s' for k2 in range(ks, 20) for it in plan[k2] for y in it['ins'] if isinstance(y, tuple))
            A(f's_cmp_lg_u32 {sW}, 0'); A('s_cbranch_scc1 L_wb')
            P.L.append('buffer_wbl2 sc1 ; nocheck')
            A('L_wb:')
        if ks == SA:
            A(f's_cmp_eq_u32 {sW}, 0'); A('s_cbranch_scc0 L_arr' if cfg.get('inla', 0) else 's_cbranch_scc1 L_arr0'); no = len(P.ool)
            P.ool += ['L_arr0:', f's_and_b32 {sT2}, {sM}, 3', f's_lshl_b32 {sT2}, {sT2}, 3', f's_lshl_b32 {sT2}, {sXCC}, {sT2}',
                      f's_lshl_b32 {sT3}, {sRB}, 3', f's_and_b32 {sT4}, {sM}, 4', f's_add_u32 {sT3}, {sT3}, {sT4}',
                      f'v_mov_b32 v13, {sT2} ; nocheck', f'v_mov_b32 v15, {sT3} ; nocheck', 's_mov_b64 exec, 1',
                      f'buffer_atomic_or v13, v15, {srd(SDBG)}, 0 offen sc1 ; nocheck', 's_mov_b64 exec, -1', 's_branch L_arr']
            if cfg.get('inla', 0): P.L += P.ool[no+1:-1]; del P.ool[no:]
            A('L_arr:')
            assert not late
            late = [f's_mul_i32 {sH1BASE}, {sRB}, {4*49152}', f's_add_u32 {sH1BASE}, {sH1BASE}, {H1B}'] + (
                   [f's_mov_b32 {sOBASE}, {sH1BASE}', f's_add_u32 {sHBASE}, {sH1BASE}, 98304'] if AL else
                   [f's_mul_i32 {sOBASE}, {sRB}, {4*20480}', f's_add_u32 {sOBASE}, {sOBASE}, {OB}',
                     f's_mul_i32 {sHBASE}, {sRB}, {4*21504}', f's_add_u32 {sHBASE}, {sHBASE}, {HB}']) + [
                     f's_add_u32 {sW2S}, {sW1S}, {W2 - W1}',
                     's_mov_b32 s68, 0x22222222', 's_mov_b32 s69, 0x22222222', 's_mov_b32 s70, 0x88888888', 's_mov_b32 s71, 0x88888888',
                     's_mov_b32 s72, 0xcccccccc', 's_mov_b32 s73, 0xcccccccc',
                     's_mov_b32 s82, 0xffff', 's_mov_b32 s83, 0xffff', 's_mov_b32 s84, 0x03ff03ff', 's_mov_b32 s85, 0x03ff03ff',
                     f's_lshl_b32 {sT2}, {sM}, 2', f's_add_u32 {sT2}, {sT2}, {sW}',
                     f's_lshl_b32 {sO1}, {sT2}, 9', f's_add_u32 {sO1}, {sO1}, {sOBASE}',
                     f's_lshl_b32 {sO2}, {sT2}, 7', f's_add_u32 {sO2}, {sO2}, {sOBASE}', f's_add_u32 {sO2}, {sO2}, 16384',
                     f's_mul_i32 {sH1}, {sT2}, 1536', f's_add_u32 {sH1}, {sH1}, {sH1BASE}',
                     f's_add_u32 {sNEED}, {sW1h}, 1',
                     f's_mul_i32 {sA}, {sW}, 20480', f's_add_u32 {sA}, {sA}, {sOBASE}',
                     f's_mul_i32 {sSTG}, {sW}, {STW}', f's_add_u32 {sSTG}, {sSTG}, {STG}',
                     f's_mul_i32 {sG}, {sW}, 12288', f's_add_u32 {sG}, {sG}, {sH1BASE}',
                     f's_mul_i32 {sT5}, {sW}, {16*1280}', f's_add_u32 {sT5}, {sT5}, {sXT[1]}', f's_mul_i32 {sT4}, {sM}, 160', f's_add_u32 {sT5}, {sT5}, {sT4}',
                     f'v_lshrrev_b32 {v(vBA)}, 2, v16', f'v_lshl_add_u32 {v(vBA)}, {v(vBA)}, 4, v16', f'v_lshlrev_b32 {v(vBA)}, 2, {v(vBA)}',
                     f'v_add_lshl_u32 {v(vBB)}, v16, 48, 2',
                     f'v_mov_b32 v221, 1.0', f'v_mov_b32 v222, {f2u(sc):#x}', 'v_mov_b32 v223, 0', None,
                     'v_mov_b32_dpp v221, v222 quad_perm:[0,1,2,3] row_mask:0x1 bank_mask:0xf', None,
                     'v_mov_b32_dpp v221, v223 quad_perm:[0,1,2,3] row_mask:0x8 bank_mask:0xf',
                     'v_mul_u32_u24 v13, 1280, v16', 'v_lshl_add_u32 v15, v14, 4, v13', 'v_lshl_add_u32 v13, v14, 3, v13']
        if ks == SC - cfg.get('sd', 2):
            A('v_lshlrev_b32 v17, 2, v0')
            A(f'buffer_load_dword v18, v17, {srd(SDBG)}, 0 offen sc1', tag='dbg')
        if ks == SC:
            assert not late
            A(f's_mov_b32 {sCNT}, 0'); A(f's_mov_b32 {sT2}, 0x80808080')
            P.wait(vm='dbg')
            A('L_dbg:')
            A(f'v_and_b32 v222, {sT2}, v18'); A(f'v_cmp_ne_u32 vcc, {sT2}, v222')
            A('s_cbranch_vccnz L_dbgr')
            P.ool += ['L_dbgr:', f'buffer_load_dword v18, v17, {srd(SDBG)}, 0 offen sc1 ; nocheck',
                      f's_add_u32 {sCNT}, {sCNT}, 1', f's_cmp_gt_u32 {sCNT}, {SPIN}', 's_cbranch_scc1 L_end',
                      's_waitcnt vmcnt(0) ; nocheck', 's_branch L_dbg']
            A(f's_mul_i32 {sT2}, {sXCC}, 0x01010101'); A(f's_lshl_b32 {sT3}, {sRB}, 1')
            A(f'v_cmp_ne_u32 vcc, {sT2}, v18')
            A(f's_lshr_b64 vcc, vcc, {sT3}'); A(f's_and_b32 {sFAST}, vcc_lo, 3')
            if cfg.get('slow'): A(f's_mov_b32 {sFAST}, 1')
            if AL:
                A(f's_cmp_lg_u32 {sFAST}, 0'); A('s_cbranch_scc1 L_sb')
                P.ool += ['L_sb:', f's_add_u32 {sH1}, {sH1}, {H1S - H1B}', f's_add_u32 {sG}, {sG}, {H1S - H1B}']
                if PT == 2:
                    P.ool += [f's_mul_i32 {sT2}, {sRB}, {4*49152 - 4*20480}', f's_add_u32 {sT2}, {sT2}, {H1B - OB}'] + [f's_sub_u32 {x}, {x}, {sT2}' for x in (sO1, sO2, sA)]
                    P.ool += [f's_mul_i32 {sHBASE}, {sRB}, {4*21504}', f's_add_u32 {sHBASE}, {sHBASE}, {HB}']
                P.ool += ['s_branch L_sbj']
                A('L_sbj:')
            stream = [w_item(x) for x in seq]
            assert 20 - LEAD >= SC
            xr = [(f'buffer_load_dwordx4 {v(XR,4)}, v15, {srd(SX)}, {sT5} offen', 'xr'),
                  (f'buffer_load_dwordx4 {v(XR+4,4)}, v15, {srd(SX)}, {sT5} offen offset:64', 'xr'),
                  (f'buffer_load_dwordx2 {v(XR+8,2)}, v13, {srd(SX)}, {sT5} offen offset:128', 'xr')]
            stream.insert(cfg.get('xri', 19), dict(ins=xr, gap=4*GAP))
            if cfg.get('fpt', 1): stream.insert(0, dict(ins=[(f'buffer_load_dword v18, {v(vFS)}, {srd(SWS)}, {sFLOFF} offen sc1', 'pf')], gap=16))
        if ks == 14: assert SC > 14 and not late; fill += rot(sRW1, 15360, sW1S) + rot(sRO, 20480, sWOS)
        if ks == cfg.get('cp2'):
            assert ks > SA; n2 = cfg.get('cn2', 2)
            fill += [lambda: (A('s_getpc_b64 s[36:37]'), A('L_pc2:')), 's_lshr_b32 s38, s2, 3', f's_lshl2_add_u32 s38, s38, {sW}', f's_mul_i32 s38, s38, {n2*128}',
                     'v_lshl_add_u32 v214, v0, 7, s38', 'v_min_u32 v214, L_end-L_pc2, v214']
            plan[ks].append(dict(ex=f'{(1 << n2) - 1:#x}', ins=[('global_load_dword v214, v214, s[36:37]', 'pf')]))
        if ks == 18: late += rot(sRW2, 5120, sW2S) + rot(sRQ, 4096, sA)
        if ks == 16: late += [f'v_mov_b32 {v(QF+4*(T-1)+2+h)}, 0' for T in range(1, 5) for h in range(2)]
        if ks == 20 - LEAD:
            late += [f's_mul_i32 {sT2}, {sW}, 5120',
               'v_bfe_u32 v3, v0, 1, 2', 'v_xor_b32 v3, v3, v14', 'v_lshlrev_b32 v2, 6, v16', 'v_lshl_add_u32 v2, v3, 4, v2', f'v_add_u32 v2, {sT2}, v2',
               'v_lshrrev_b32 v3, 2, v0', 'v_lshlrev_b32 v3, 6, v3', f'v_add_u32 v3, {sT2}, v3',
               'v_bfe_u32 v5, v0, 3, 2', 'v_and_b32 v4, 3, v0', 'v_xor_b32 v4, v4, v5', 'v_lshl_add_u32 v4, v4, 4, v3',
               'v_xor_b32 v5, 2, v5', 'v_lshl_add_u32 v3, v5, 4, v3',
               'v_and_b32 v5, 1, v14', 'v_mul_u32_u24 v5, 20480, v5', 'v_lshl_add_u32 v6, v16, 3, v5',
               'v_lshrrev_b32 v17, 1, v14', 'v_lshl_add_u32 v5, v17, 8, v5', 'v_lshl_add_u32 v5, v16, 4, v5']
        b = ks & 1
        mf = []
        for T in range(5):
            for F in range(4):
                c = '0' if ks == 0 else v(acc(F, T), 4)
                mf.append(f'{MF} {v(acc(F,T),4)}, {v(FA[b]+4*F,4)}, {v(FB[b]+4*T,4)}, {c}')
            c = '0' if ks == 0 else v(GR + 4*T, 4)
            mf.append(f'{MF} {v(GR+4*T,4)}, {v(FB[b]+4*T,4)}, {v(FB[b]+4*T,4)}, {c}')
        if ks == 19 and cfg.get('s19', 1): mf = [mf[i] for i in [4, 3, 9, 8, 14, 13, 19, 18, 24, 23] + [i for i in range(25) if i % 5 < 3]]
        items = plan[ks]
        if ks >= SC:
            nx = cfg.get('wn', {}).get(ks, 0 if ks < 20 - LEAD else 6)
            i = 0
            while nx and i < len(stream):
                if stream[i].get('avail', -1) <= ks: items.append(stream.pop(i)); nx -= 1
                else: i += 1
        nl = min(len(late), cfg.get('nl', 12) if ks < 18 else 99)
        fill += late[:nl]; late = late[nl:]
        if ks == 19 and cfg.get('s19', 1): nf = len(stats); fill += stats
        g0 = (len(fill) + 1) // 2
        allx = all(it.get('ex', '-1') == '-1' for it in items)
        if allx: g0 = 0
        g0 = min(g0, 24 - len(items))
        pos = [g0 + 1 + (i * (24 - g0)) // len(items) for i in range(len(items))]
        P.bg = list(items)
        for i, m in enumerate(mf):
            A(m)
            if i == g0 and not allx:
                while fill: emit(fill.pop(0))
                P.unlock()
            n = 2
            if ks == 19 and cfg.get('s19', 1):
                if i not in pos: P.pre(1)
                else: assert tick(force=True); pos.remove(i)
                while fill and P.room() >= 4 and (len(fill) > nf or i >= 2): emit(fill.pop(0))
                continue
            while i in pos:
                assert tick(force=True); pos.remove(i); n = 0
            if n and (i + 1 in pos or i + 2 in pos) and (allx or i >= g0): n -= P.pre(2)
            for _ in range(n):
                if fill: emit(fill.pop(0))
        assert not P.bg
        P.lock()
        if ks == 19 and cfg.get('s19', 1): assert len(fill) <= nf and allx; stats = fill; fill = []
        for s in fill: emit(s)
    assert not late
    P.bg = stream
    P.step = 100

    stamp('gemm_end')
    P.busy(0, True)
    P.scale = cfg.get('ascale', 1.1); P.slack = cfg.get('aslack', 100)
    AT(*stats)
    def U(T):
        L = []
        for F in ((3, 2, 1) if T == 0 else (3, 2, 1, 0)):
            nm, s1 = pk_bc(NM[T])
            rs, s2 = pk_bc({0: RQ, 1: RS, 2: RS, 3: RX}[F][T])
            ac = acc(F, T)
            for h in range(2):
                L.append(f'v_pk_fma_f32 {v(ac+2*h,2)}, {v(CS+4*F+2*h,2)}, {nm}, {v(ac+2*h,2)} op_sel:[0,{s1},0] op_sel_hi:[1,{s1},1]')
            for h in range(2):
                L.append(f'v_pk_mul_f32 {v(ac+2*h,2)}, {v(ac+2*h,2)}, {rs} op_sel:[0,{s2}] op_sel_hi:[1,{s2}]')
            dst = {1: KXV + 6*T, 3: KXV + 6*T + 2, 2: KXV + 6*T + 4, 0: QF + 4*(T-1)}[F]
            for h in range(2): L.append(f'v_cvt_pk_bf16_f32 {v(dst+h)}, {v(ac+2*h)}, {v(ac+2*h+1)}')
            if F == 2: L.append((f'ds_write_b128 v2, {v(KXV+6*T+2,4)} offset:{T*1024}', 'vw'))
            if F == 1:
                L.append((f'ds_read_b64_tr_b16 {v(VT0+2*T,2)}, v4 offset:{T*1024+8}', f'vt{T}'))
                L.append((f'ds_read_b64_tr_b16 {v(VT1+2*T,2)}, v3 offset:{T*1024}', f'vt{T}'))
        if T:
            for h in range(2): L.append(f'v_permlane16_swap_b32 {v(QF+4*(T-1)+2+h)}, {v(KXV+6*T+2+h)}')
        return L
    SFL = cfg.get('sfl', 'sc1')
    def dual(L, plain, sf=sFAST):
        if plain:
            l1, l2 = P.lab('L_ds'), P.lab('L_dj')
            alt = [x[0] + ' sc1 ; nocheck' if isinstance(x, tuple) else x for x in L] + [f's_branch {l2}']
            A(f's_cmp_lg_u32 {sf}, 0')
            if sf != sFAST and cfg.get('inl2', 0): A(f's_cbranch_scc0 {l1}'); P.L += alt + [f'{l1}:']
            else: A(f's_cbranch_scc1 {l1}'); P.ool += [f'{l1}:'] + alt
        for x in L:
            if isinstance(x, tuple): A(x[0] + (cfg.get('pfl', '') if plain else ' ' + SFL), tag=x[1])
            else: A(x)
        if plain: A(f'{l2}:')
    def Spair(p):
        SS, MX, PF, O0, O1, SM, OP, OL = [(92, 108, 112, 120, 128, 172, 180, 184), (140, 156, 160, 20, 28, 36, 44, 48)][p]
        L = []; I = (0, 1)
        for i in I:
            t = 2*p + i
            L += [f'{MF} {v(SS+8*i,4)}, {v(KXV+6*t,4)}, {v(QF+4*t,4)}, {v(BP1 if t == 0 else BP,4)}',
                  f'{MF} {v(SS+8*i+4,4)}, {v(KXV+6*(t+1),4)}, {v(QF+4*t,4)}, {v(BC,4)}']
        L += [None]*7
        for i in I: L += [f'v_max3_f32 {v(MX+2*i)}, {v(SS+8*i)}, {v(SS+8*i+1)}, {v(SS+8*i+2)}', f'v_max3_f32 {v(MX+2*i+1)}, {v(SS+8*i+3)}, {v(SS+8*i+4)}, {v(SS+8*i+5)}']
        for i in I: L.append(f'v_max3_f32 {v(MX+2*i)}, {v(MX+2*i)}, {v(SS+8*i+6)}, {v(SS+8*i+7)}')
        for i in I: L.append(f'v_max_f32 {v(MX+2*i)}, {v(MX+2*i)}, {v(MX+2*i+1)}')
        for sw in ('v_permlane16_swap_b32', 'v_permlane32_swap_b32'):
            for i in I: L.append(f'v_mov_b32 {v(MX+2*i+1)}, {v(MX+2*i)}')
            L.append(None)
            for i in I: L.append(f'{sw} {v(MX+2*i)}, {v(MX+2*i+1)}')
            for i in I: L.append(f'v_max_f32 {v(MX+2*i)}, {v(MX+2*i)}, {v(MX+2*i+1)}')
        for i in I:
            s = SS + 8*i
            for h in range(4): L.append(f'v_pk_add_f32 {v(s+2*h,2)}, {v(s+2*h,2)}, {v(MX+2*i,2)} op_sel:[0,0] op_sel_hi:[1,0] neg_lo:[0,1] neg_hi:[0,1]')
            for h in range(8): L.append(f'v_exp_f32 {v(s+h)}, {v(s+h)}')
            for h in range(4): L.append(f'v_cvt_pk_bf16_f32 {v(PF+4*i+h)}, {v(s+2*h)}, {v(s+2*h+1)}')
            if i == 0: L.append(lambda: P.wait(lg=[f'vt{2*p+x}' for x in range(3)]))
            mm = [f'{MF} {v(SM+4*i,4)}, {v(ONES,4)}, {v(PF+4*i,4)}, 0', f'{MF} {v(O0+4*i,4)}, {v(VT0+2*(2*p+i),4)}, {v(PF+4*i,4)}, 0',
                  f'{MF} {v(O1+4*i,4)}, {v(VT1+2*(2*p+i),4)}, {v(PF+4*i,4)}, 0']
            if i == 0: hold = mm
            else:
                k = len(L) - 14
                for j, m in enumerate(hold): L.insert(k + 3*j, m)
                L += [None, None] + mm
        def fin(i):
            R = [f'v_rcp_f32 {v(SM+4*i)}, {v(SM+4*i)}', None]
            for h in range(2): R.append(f'v_pk_mul_f32 {v(O0+4*i+2*h,2)}, {v(O0+4*i+2*h,2)}, {v(SM+4*i,2)} op_sel:[0,0] op_sel_hi:[1,0]')
            for h in range(2): R.append(f'v_pk_mul_f32 {v(O1+4*i+2*h,2)}, {v(O1+4*i+2*h,2)}, {v(SM+4*i,2)} op_sel:[0,0] op_sel_hi:[1,0]')
            for h in range(2): R.append(f'v_cvt_pk_bf16_f32 {v(OP+2*i+h)}, {v(O0+4*i+2*h)}, {v(O0+4*i+2*h+1)}')
            for h in range(2): R.append(f'v_cvt_pk_bf16_f32 {v(OL+2*i+h)}, {v(O1+4*i+2*h)}, {v(O1+4*i+2*h+1)}')
            return R
        L += fin(0) + fin(1)
        for h in range(2): L.append(f'v_permlane16_swap_b32 {v(OP+h)}, {v(OP+2+h)}')
        for h in range(2): L.append(f'v_mov_b32_dpp {v(OL+h)}, {v(OL+2+h)} quad_perm:[0,1,2,3] row_mask:0x2 bank_mask:0xf')
        def pub():
            if p: A(f's_add_u32 {sO1}, {sO1}, 40960'); A(f's_add_u32 {sO2}, {sO2}, 40960')
            dual([(f'buffer_store_dwordx4 {v(OP,4)}, v5, {srd(SWS)}, {sO1} offen', f'opub{p}'), 's_mov_b32 exec_hi, 0',
                  (f'buffer_store_dwordx2 {v(OL,2)}, v6, {srd(SWS)}, {sO2} offen', f'opub{p}')], cfg.get('plo', 0))
            A('s_mov_b32 exec_hi, -1')
            P.busy(160 if cfg.get('plo', 0) else 320)
        L.append(pub)
        return L
    def run(main, fill, quiet=0):
        for n, x in enumerate(main):
            if x is None:
                if fill: emit(fill.pop(0))
            else: emit(x)
            if n < len(main) - quiet: tick()
    def setflag(val, tag, cls=None):
        l1, l2 = P.lab('L_sl'), P.lab('L_j')
        if cls is not None:
            A(f's_cmp_lg_u32 {sW1h}, {cls}'); A(f's_cbranch_scc1 {l2}')
            A(f'v_mov_b32 {v(vFV)}, {val}')
            sv = (list(P.vm), list(P.vt)); P.wait(vm=tag); P.L[-1] += ' ; nocheck'; P.vm, P.vt = sv
            A('s_mov_b64 exec, 1')
            A(f's_cmp_lg_u32 {sFAST}, 0'); A(f's_cbranch_scc1 {l1}')
            P.track = False
            A(f'buffer_store_dword {v(vFV)}, {v(vFS)}, {srd(SWS)}, {sFLOFF} offen ; nocheck')
            P.track = True
            P.ool += [f'{l1}:', f'buffer_store_dword {v(vFV)}, {v(vFS)}, {srd(SWS)}, {sFLOFF} offen sc1 ; nocheck', f's_branch {l2}']
            A(f'{l2}:')
            A('s_mov_b64 exec, -1')
            return
        A(f'v_mov_b32 {v(vFV)}, {val}')
        P.wait(vm=tag)
        A('s_mov_b64 exec, 1')
        A(f's_cmp_lg_u32 {sFAST}, 0'); A(f's_cbranch_scc1 {l1}')
        A(f'buffer_store_dword {v(vFV)}, {v(vFS)}, {srd(SWS)}, {sFLOFF} offen')
        P.ool += [f'{l1}:', f'buffer_store_dword {v(vFV)}, {v(vFS)}, {srd(SWS)}, {sFLOFF} offen sc1 ; nocheck', f's_branch {l2}']
        A(f'{l2}:')
        A('s_mov_b64 exec, -1')
    vPT = 10
    def poll_issue(vaddr, off=0):
        A(f'buffer_load_dword {v(vPT)}, {v(vaddr)}, {srd(SWS)}, {sFLOFF} offen offset:{off} sc1', tag='poll')
    def poll_check(vaddr, val, off=0, inl=0):
        l1, l2 = P.lab('L_poll'), P.lab('L_ok')
        P.wait(vm='poll')
        A(f'{l1}:')
        A(f'v_cmp_gt_u32 vcc, {val}, {v(vPT)}')
        if inl:
            A(f's_cbranch_vccz {l2}')
            P.track = False
            A(f'buffer_load_dword {v(vPT)}, {v(vaddr)}, {srd(SWS)}, {sFLOFF} offen offset:{off} sc1 ; nocheck')
            A(f's_add_u32 {sCNT}, {sCNT}, 1'); A(f's_cmp_gt_u32 {sCNT}, {SPIN}'); A('s_cbranch_scc1 L_end')
            A('s_waitcnt vmcnt(0) ; nocheck'); A(f's_branch {l1}')
            P.track = True
            A(f'{l2}:')
            return
        A(f's_cbranch_vccnz {l2}')
        P.ool += [f'{l2}:', f'buffer_load_dword {v(vPT)}, {v(vaddr)}, {srd(SWS)}, {sFLOFF} offen offset:{off} sc1 ; nocheck',
                  f's_add_u32 {sCNT}, {sCNT}, 1', f's_cmp_gt_u32 {sCNT}, {SPIN}', 's_cbranch_scc1 L_end',
                  's_waitcnt vmcnt(0) ; nocheck', f's_branch {l1}']

    def spoll(n, mask, off=0):
        l1, l2 = P.lab('L_sp'), P.lab('L_sok')
        if off: A(f's_add_u32 {sT2}, {sFLOFF}, {off}')
        A(f'{l1}:')
        A(f's_load_dwordx{n} s[4:{3+n}], s[{SWS}:{SWS+1}], {sT2 if off else sFLOFF} glc')
        A(f's_add_u32 {sCNT}, {sCNT}, 1'); A(f's_cmp_gt_u32 {sCNT}, {SPIN}'); A('s_cbranch_scc1 L_end')
        P.wait(lg=0)
        if n == 8: A('s_and_b64 s[4:5], s[4:5], s[8:9]'); A('s_and_b64 s[6:7], s[6:7], s[10:11]')
        A('s_and_b64 s[4:5], s[4:5], s[6:7]'); A('s_and_b32 s4, s4, s5')
        A(f's_andn2_b32 s4, {mask}, s4')
        A(f's_cbranch_scc1 {l1}')
    BF = 92; AC2 = 172; AR = 20; NAR = 18
    CS1 = 28; CST = 228
    cq = [[15*q + i for _, i, q in s1 if i % 3 == j] for j in range(3)]
    cso = [cq[n % 3][n // 3] for n in range(60)]
    cs_next = [0]; cfill = []
    def colsum(n, age=None):
        for _ in range(n):
            c = cs_next[0]
            if c >= 60: P.step = max(P.step, 330); return
            f = cso[c]; j = c % 3
            if age is not None and (P.pending(f'w1_{f}') or P.age(f'w1_{f}') < age): return
            assert c < 57 or P.step >= 300
            P.drain(f'w1_{f}')
            P.wait(vm=f'w1_{f}')
            A(f'{MF} {v((CS1 if c >= 57 else CST)+4*j,4)}, {w1reg(f)}, {v(ONES,4)}, {v(CST+4*j,4) if c >= 3 else "0"}')
            if not tick():
                for _ in range(3):
                    if cfill and P.room() >= 4: emit(cfill.pop(0))
            cs_next[0] += 1
    vPA = 7; vL8 = 8; vLB = [1, 3, 4]
    stamp('a_st', 3)
    AT(*U(0), *U(1), *U(2))
    stamp('a_u', 3)
    f34 = U(3) + U(4)
    run(Spair(0), f34, cfg.get('q0', 0))
    stamp('pub0')
    AT(*f34)
    xun = [f'v_and_b32 {v(vPA)}, 31, v0', f'v_lshlrev_b32 {v(vPA)}, 2, {v(vPA)}', f'v_lshlrev_b32 {v(vL8)}, 3, v0',
           lambda: (P.drain('xr'), P.wait(vm='xr'))]
    for j in range(5):
        for r in range(4):
            src = XR + (4*(j >> 1) + 2*(j & 1) + (r >> 1) if j < 4 else 8 + (r >> 1))
            xun.append(f'v_and_b32 {v(AC2+4*j+r)}, 0xffff0000, {v(src)}' if r & 1 else f'v_lshlrev_b32 {v(AC2+4*j+r)}, 16, {v(src)}')
    P.drain('wo')
    sp1 = Spair(1)
    if cfg.get('fl1', 20) and not SYM: sp1.insert(len(sp1) - cfg.get('fl1', 20), lambda: setflag(1, 'opub0'))
    run(sp1, xun, cfg.get('q1', 0))
    stamp('attn_end')
    P.step = 150
    P.scale = cfg.get('hscale', 1.0)
    flush(cfg.get('f1', 4))
    for x in xun: emit(x)
    A(f'v_add_u32 v3, 65536, v1'); A(f'v_add_u32 v4, 131072, v1')
    if cfg.get('fl1', 20): P.wait(vm='wo')
    else: setflag(1, ['opub0', 'wo'])
    stamp('flag1')
    A('s_barrier')
    def wo_read(f):
        loc = wo_loc(f)
        return f'ds_read_b128 {v(AR+4*(f%NAR),4)}, {v(vLB[loc>>16])} offset:{loc & 0xffff}'
    flush(cfg.get('f2', 6))
    for f in range(15): A(wo_read(f), tag=f'a{f//5}')
    if not SYM: poll_issue(vPA)
    flush(cfg.get('f2b', 6))
    colsum(cfg.get('c0', 30), cfg.get('ca', 300))
    setflag(2, 'opub1')
    stamp('flag2')
    flush(cfg.get('f2c', 0))
    colsum(cfg.get('c0b', 0), cfg.get('ca', 300))
    if SYM:
        poll_issue(vPA); flush(cfg.get('f2d', 0)); colsum(cfg.get('c0c', 0), cfg.get('ca', 300))
    poll_check(vPA, 2 if SYM else sNEED, inl=cfg.get('inl', 1))
    stamp('poll1')
    oit = [dict(gap=GAP, ins=[(f'buffer_load_dwordx4 {v(BF + 4*k, 4)}, {v(vL16)}, {srd(SWS)}, {sRQ[k // 4]} offen offset:{(k % 4)*1024} sc1', f'o{k}')]) for k in range(16)]
    for k in range(16, 20):
        oit.append(dict(st=[(sC, f's_add_u32 {sC}, {sA}, 16384')], gap=GAP,
                        ins=[(f'buffer_load_dwordx2 {v(BF+4*k+2*e,2)}, {v(vL8)}, {srd(SWS)}, {sC} offen offset:{(k-16)*1024 + 512*e} sc1', f'o{k}') for e in range(2)]))
    B1F = 40; AC3 = [52, 64]; BR = 76; NBR = 6
    P.bg = oit + P.bg
    flush(cfg.get('f3', 12))
    colsum(cfg.get('c0d', 0), cfg.get('ca', 300))
    P.scale = cfg.get('pscale', 1.0)
    vHS, vT8, vST, vPH = 6, 5, 9, 2
    pend = [f'v_lshrrev_b32 {v(vHS)}, 5, v0', f'v_lshlrev_b32 {v(vHS)}, 8, {v(vHS)}', f'v_lshl_add_u32 {v(vHS)}, v16, 4, {v(vHS)}',
            f'v_lshlrev_b32 {v(vT8)}, 3, v16', f'v_mov_b32 {v(vPH)}, {v(vPA)}' if SYM else f'v_lshlrev_b32 {v(vPH)}, 2, v16',
            f's_mul_i32 {sT2}, {sW}, 21504', f's_add_u32 {sT2}, {sT2}, {sHBASE}',
            f's_mul_i32 {sT3}, {sM}, 2560', f's_add_u32 {sT3}, {sT3}, {sT2}',
            f's_lshl_b32 {sT4}, {sM}, 7', f's_add_u32 {sT4}, {sT4}, {sT2}', f's_add_u32 {sT4}, {sT4}, 20480',
            'v_lshlrev_b32 v13, 4, v14', 'v_lshlrev_b32 v15, 3, v14',
            f's_mul_i32 {sB}, {sM}, 384', f's_mul_i32 {sD}, {sW}, 96', f's_add_u32 {sB}, {sB}, {sD}',
            f's_mul_i32 {sHL}, {sW}, 5120', f's_lshr_b32 {sD}, s2, 6' if cfg.get('rot', 1) else f's_mov_b32 {sD}, 0',
            f's_add_u32 {sD}, {sD}, {sW}', f's_and_b32 {sD}, {sD}, 3', f's_mul_i32 {sD}, {sD}, 5120', f's_add_u32 {sD}, {sD}, {sHBASE}',
            *([f's_mul_i32 {sHS}, {sW}, 21504'] if SYM else [f's_mul_i32 {sHS}, {sW0}, 21504', f's_lshl_b32 {sT5}, {sW1h}, 9', f's_add_u32 {sHS}, {sHS}, {sT5}']),
            f's_add_u32 {sHS}, {sHS}, 20480']
    for x in pend: emit(x)
    for k in range(20):
        P.step = 200 + k
        P.drain(f'o{k}')
        for j in range(5):
            f = 5*k + j
            if j == 0: P.wait(vm=f'o{k}', lg=f'a{k}')
            A(f'{MF} {v(AC2+4*j,4)}, {v(AR+4*(f%NAR),4)}, {v(BF+4*k,4)}, {v(AC2+4*j,4)}')
            if f + 15 < 100: A(wo_read(f + 15), tag=f'a{(f+15)//5}')
            if k < cfg.get('quiet2', 20): tick()
    P.step = 300
    stamp('p2_mfma')
    HP = XR
    for j in range(5):
        for h in range(2): A(f'v_cvt_pk_bf16_f32 {v(HP+2*j+h)}, {v(AC2+4*j+2*h)}, {v(AC2+4*j+2*h+1)}')
        if j == 1: dual([(f'buffer_store_dwordx4 {v(HP,4)}, {v(vL16)}, {srd(SWS)}, {sT3} offen', 'hpub')], cfg.get('plh', 0))
        if j == 3: dual([(f'buffer_store_dwordx4 {v(HP+4,4)}, {v(vL16)}, {srd(SWS)}, {sT3} offen offset:1024', 'hpub')], cfg.get('plh', 0))
    for h in range(2): A(f'v_mov_b32 {v(24+h)}, {v(HP+8+h)}')
    for i in range(10):
        A(f'v_dot2_f32_bf16 v20, {v(HP+i)}, {v(ONES)}, {"v20" if i else 0}'); A(f'v_dot2_f32_bf16 v21, {v(HP+i)}, {v(HP+i)}, {"v21" if i else 0}')
        if i == 0:
            for h in range(2): A(f'v_permlane16_swap_b32 {v(24+h)}, {v(26+h)}')
            A(f's_mov_b64 exec, {sEVN}')
            dual([(f'buffer_store_dwordx4 v[24:27], {v(vHS)}, {srd(SWS)}, {sT3} offen offset:2048', 'hpub')], cfg.get('plh', 0))
            A('s_mov_b64 exec, -1')
    for sw in ('v_permlane16_swap_b32', 'v_permlane32_swap_b32'):
        for h in range(2): A(f'v_mov_b32 {v(22+h)}, {v(20+h)}')
        for h in range(2): A(f'{sw} {v(20+h)}, {v(22+h)}')
        A('v_pk_add_f32 v[20:21], v[20:21], v[22:23]')
    A('s_mov_b64 exec, 0xffff')
    dual([(f'buffer_store_dwordx2 v[20:21], {v(vT8)}, {srd(SWS)}, {sT4} offen', 'hpub')], cfg.get('plh', 0))
    A('s_mov_b64 exec, -1')
    P.busy(cfg.get('hb', 500), True)
    P.scale = cfg.get('hscale', 1.0)
    stamp('hpub', 2)

    P.bg.insert(0, dict(ins=[(f'buffer_load_dwordx4 {v(AC3[1],4)}, v13, {srd(SB1)}, {sB} offen', 'b1'),
                       (f'buffer_load_dwordx2 {v(AC3[1]+4,2)}, v15, {srd(SB1)}, {sB} offen offset:64', 'b1')], gap=32))
    P.step = 310
    vP4a, vRW, vRW4, vRR, vHR, vOUT, vSG = 11, 12, 13, 15, 17, 18, 14
    cfill += ['v_mul_u32_u24 v3, 192, v14', 'v_and_b32 v3, 192, v3', 'v_xor_b32 v3, v3, v1', 'v_add_u32 v4, 65536, v3',
              f'v_and_b32 {v(vST)}, 1, v14', f'v_mul_u32_u24 {v(vST)}, 21504, {v(vST)}', f'v_lshrrev_b32 v7, 1, v14',
              f'v_lshl_add_u32 {v(vST)}, v7, 9, {v(vST)}', f'v_add_u32 {v(vST)}, {v(vST)}, {v(vT8)}', f'v_add_u32 {v(vST)}, 20480, {v(vST)}']
    for x in [f'v_and_b32 {v(vP4a)}, 31, v0', f'v_lshlrev_b32 {v(vP4a)}, 2, {v(vP4a)}',
              f'v_mul_u32_u24 {v(vRW)}, {PIT}, v16', f'v_add_u32 {v(vRW)}, {sSTG}, {v(vRW)}',
              f'v_and_b32 v7, 1, v14', f'v_mul_u32_u24 v7, 152, v7', f'v_lshl_add_u32 v7, v14, 3, v7', f'v_add_u32 {v(vRW4)}, v7, {v(vRW)}',
              f'v_lshl_add_u32 {v(vRW)}, v14, 4, {v(vRW)}',
              f's_lshl_b32 {sT2}, {sW}, 2', f'v_add_u32 v7, {sT2}, v14',
              f'v_mul_u32_u24 {v(vRR)}, {PIT}, v7', f'v_lshl_add_u32 {v(vRR)}, v16, 4, {v(vRR)}', f'v_add_u32 {v(vRR)}, {STG}, {v(vRR)}',
              f's_mul_i32 {sT2}, {sM}, 10', f'v_add_u32 v8, {sT2}, v16', f'v_mul_u32_u24 {v(vHR)}, 12, v8', f'v_and_b32 {v(vHR)}, 12, {v(vHR)}',
              f'v_xor_b32 {v(vHR)}, {v(vHR)}, v7', f'v_lshlrev_b32 {v(vHR)}, 4, {v(vHR)}', f'v_lshl_add_u32 {v(vHR)}, v8, 8, {v(vHR)}',
              *rot(sRQ, 1024, sG), f's_mul_i32 {sT3}, {sT3}, 5120', f'v_subrev_u32 {v(vHR)}, {sT3}, {v(vHR)}', f'v_add_u32 v8, 20480, {v(vHR)}', f'v_min_u32 {v(vHR)}, {v(vHR)}, v8',
              f'v_mul_u32_u24 {v(vOUT)}, 1280, v7', f'v_lshlrev_b32 v7, 4, v16', f'v_add_u32 {v(vOUT)}, {v(vOUT)}, v7',
              f's_mul_i32 {sT5}, {sM}, 160', f's_add_u32 {sXT[1]}, {sXT[1]}, {sT5}',
              f'v_add_u32 {v(vSG)}, {sSTG}, v1',
              f's_lshl_b32 {sT2}, {sM}, 2', f's_add_u32 {sT2}, {sT2}, {sW}', lambda: (A(f's_cmp_ge_u32 {sT2}, 21'), A(f's_cselect_b32 s90, 1, {sFAST}')),
              lambda: (A(f's_cmp_ge_u32 {sT2}, 24'), A(f's_cselect_b32 s91, 1, {sFAST}'))]: cfill.append(x)
    NCF = len(cfill)
    flush(cfg.get('f6', 4)); assert not P.pending('b1')
    colsum(cfg.get('c1', 40))
    if cfg.get('pe', 1) and not SPL: poll_issue(vPH)
    colsum(cfg.get('c1b', 10))
    setflag(3, 'hpub', 0 if cfg.get('pe', 1) == 2 else None)
    stamp('flag3')
    if cfg.get('sgb', 0): A('s_barrier')
    if not cfg.get('pe', 1):
        flush(cfg.get('f7', 4))
        colsum(cfg.get('c2', 10))
        if not SPL: poll_issue(vPH)
    flush(cfg.get('f8', 0))
    colsum(cfg.get('c3', 0))
    while len(cfill) > NCF - 10: emit(cfill.pop(0))
    if SPL: spoll(4, '0x04040404')
    else: poll_check(vPH, 3, inl=cfg.get('inl', 1))
    stamp('poll2')
    def h_items(p):
        L = []
        for T in (2*p, 2*p + 1):
            for i in range(5):
                i0 = 4 if i == 4 else 0
                L.append(dict(st=[('m0', f's_add_u32 m0, {sHL}, {T*21504 + i0*1024}'), (sC, f's_add_u32 {sC}, {sD}, {T*21504 + i0*1024}')], gap=GAP,
                              ins=[(f'buffer_load_dwordx4 v3, {srd(SWS)}, {sC} offen offset:{(i%4)*1024} sc1 lds', f'h{T}')]))
        if SYM:
            if p == 0: L.insert(5, dict(st=[('m0', f's_mov_b32 m0, {sHS}'), (sC, f's_add_u32 {sC}, {sHBASE}, {sHS}')], gap=GAP,
                                        ins=[(f'buffer_load_dwordx4 {v(vL16)}, {srd(SWS)}, {sC} offen sc1 lds', 'h0')]))
            return L
        L.insert(5, dict(st=[('m0', f's_add_u32 m0, {sHS}, {p*43008}'), (sC, f's_add_u32 {sC}, {sHBASE}, m0')], gap=GAP // 2,
                         ins=['s_mov_b32 exec_hi, 0', (f'buffer_load_dwordx4 {v(vL16)}, {srd(SWS)}, {sC} offen sc1 lds', f'h{2*p}'), 's_mov_b32 exec_hi, -1']))
        return L
    hx = cfg.get('hx', 0)
    P.bg = h_items(0) + P.bg[:hx] + (h_items(1) if SYM else []) + P.bg[hx:]
    flush(cfg.get('f4', 11))
    if cfg.get('pe', 1) == 2: setflag(3, 'hpub', 1); flush(cfg.get('f5', 0))
    colsum(61)
    flush(cfg.get('f9', 0))
    def h_read(n):
        loc = (n // 20)*21504 + (n % 20)*1024
        return f'ds_read_b128 {v(BR+4*(n%NBR),4)}, {v(3 + (loc>>16))} offset:{loc & 0xffff}'
    NMR = [(252, 253), (240, 241), (242, 243), (2, 5) if SYM else (252, 253)]
    def stats3(p, R):
        L = []
        if p: L.append(f'v_add_u32 {v(vST)}, 43008, {v(vST)}')
        for i in range(2): L.append((f'ds_read2_b64 {v(R+4*i,4)}, {v(vST)} offset0:{32*i} offset1:{32*i+16}', 'st'))
        L.append(('Z', 6))
        L.append(lambda: P.wait(lg='st'))
        for i in range(4): L.append(f'v_add_f32 {v(R+i)}, {v(R+i)}, {v(R+4+i)}')
        for i in range(2): L.append(f'v_add_f32 {v(R+4+i)}, {v(R+i)}, {v(R+2+i)}')
        for i in range(2): L.append(f'v_add_f32 {v(R+i)}, {v(R+i)}, {v(R+2+i)}')
        L.append(None)
        for i in range(2): L.append(f'v_permlane32_swap_b32 {v(R+i)}, {v(R+4+i)}')
        for i in range(2): L.append(f'v_add_f32 {v(R+i)}, {v(R+i)}, {v(R+4+i)}')
        X, Y = NMR[2*p], NMR[2*p + 1]
        n, r = v(X[0]), v(X[1])
        L += [f'v_mul_f32 {n}, {f2u(-1.0/640):#x}, {v(R)}', f'v_mul_f32 {r}, {f2u(1.0/640):#x}, {v(R+1)}', f'v_fma_f32 {r}, -{n}, {n}, {r}',
              f'v_max_f32 {r}, 0, {r}', f'v_add_f32 {r}, {f2u(1e-5):#x}, {r}', f'v_rsq_f32 {r}, {r}',
              f'v_mov_b32 {v(Y[0])}, {n}', f'v_mov_b32 {v(Y[1])}, {r}', None,
              f'v_permlane16_swap_b32 {n}, {v(Y[0])}', f'v_permlane16_swap_b32 {r}, {v(Y[1])}']
        return L
    def epi3(T):
        ac = AC3[T & 1]; L = []; nm, rs = v(NMR[T][0]), v(NMR[T][1])
        O = (8, 9, 10, 11, 0, 1, 2, 3, 4, 5, 6, 7)
        for i in range(12): L.append(f'v_fmac_f32 {v(ac+i)}, {v(CS1+i)}, {nm}')
        for i in O: L.append(f'v_fma_f32 {v(ac+i)}, {v(ac+i)}, {rs}, {v(B1F+i)}')
        for i in O: L.append(f'v_mul_f32 {v(ac+i)}, {v(ac+i)}, |{v(ac+i)}|')
        for i in (4, 5, 0, 1, 2, 3): L.append(f'v_cvt_pk_bf16_f32 {v(20+i)}, {v(ac+2*i)}, {v(ac+2*i+1)}')
        L.append(('M', f'c{T}'))
        for i in (4, 5, 0, 1): L.append(f'v_pk_max_i16 {v(20+i)}, {v(20+i)}, 0')
        for h in range(2): L.append(f'v_permlane16_swap_b32 {v(24+h)}, {v(26+h)}')
        for i in (2, 3): L.append(f'v_pk_max_i16 {v(20+i)}, {v(20+i)}, 0')
        if T: L.append(f's_add_u32 {sH1}, {sH1}, 49152')
        def pub():
            assert not AL or T < 2 or T - 2 in gok
            assert hok
            dual([(f'buffer_store_dwordx4 v[20:23], {v(vL16)}, {srd(SWS)}, {sH1} offen', f'pub{T}'), f's_mov_b64 exec, {sEVN}',
                  (f'buffer_store_dwordx4 v[24:27], {v(vHS)}, {srd(SWS)}, {sH1} offen offset:1024', f'pub{T}')], AL, sFAST if PT or not T & 1 else ['s90', 's91'][T >> 1])
            P.busy(192 if AL else 384); published(T)
        L.append(('B', pub, T))
        return L
    PRE = 4
    su = [lambda: (P.drain('b1'), P.wait(vm='b1'))]
    for j in range(3):
        for r in range(4):
            src = AC3[1] + 2*j + (r >> 1)
            su.append(f'v_and_b32 {v(B1F+4*j+r)}, 0xffff0000, {v(src)}' if r & 1 else f'v_lshlrev_b32 {v(B1F+4*j+r)}, 16, {v(src)}')
    su.append(('M', 'c-1'))
    P.drain('h0'); P.wait(vm='h0'); A('s_barrier')
    stamp('p3_t0')
    P.busy(0, True); P.slack = cfg.get('cslack', 100); P.scale = cfg.get('cscale', 1.05)
    for n in range(PRE): A(h_read(n), tag=f'b{n}')
    GB = [0, 124, 172, 0]
    def g_items(T):
        av = lambda kk: (400 + 180 + 3*((GB[T] + 4*kk + 3)//12 + 1)) if T < 3 else 400 + 240 + 5*(kk + 1)
        return [dict(st=[(sC, f's_add_u32 {sC}, {sRQ[kk % 4]}, {T*49152 + (kk // 4)*4096}')], avail=av(kk), gap=cfg.get('g4', GAP),
                     ins=[(f'buffer_load_dwordx4 {a(GB[T] + 4*kk, 4)}, {v(vL16)}, {srd(SWS)}, {sC} offen {cfg.get("gfl", "sc1")}', f'g{T}_{kk}')]) for kk in range(12)]
    AC4 = [76, 28]
    B2F = 2; HR = 96; R1 = 48; R2 = [64, 68, 20, 24]
    def red_w(T, j):
        ac = AC4[T & 1]; o = (T & 1) * 16 * PIT
        upto(f'bar{T-1}'); unmask()
        if j < 4: A(f'ds_write_b128 {v(vRW)}, {v(ac+4*j,4)} offset:{o + (j >> 1)*64 + (j & 1)*160}', tag='pw')
        else: A(f'ds_write_b128 {v(vRW4)}, {v(ac+16,4)} offset:{o + 128}', tag='pw')
    HBR = [72, 240]
    def red_h(T):
        L = [(f'ds_read_b128 {v(HR,4)}, {v(vHR)} offset:{T*21504}', 'rh'), ('Z', 6), lambda: P.wait(lg='rh')]
        for r in range(8): L.append(f'v_and_b32 {v(HBR[r>>2]+(r&3))}, 0xffff0000, {v(HR+(r>>1))}' if r & 1 else f'v_lshlrev_b32 {v(HBR[r>>2]+(r&3))}, 16, {v(HR+(r>>1))}')
        for r in range(8): L.append(f'v_add_f32 {v(HBR[r>>2]+(r&3))}, {v(HBR[r>>2]+(r&3))}, {v(B2F+r)}')
        return L
    def red_r(T, gate):
        o = (T & 1) * 16 * PIT
        D = [R1, R1 + 4, R1 + 8, R1 + 12] + R2
        L = [('G', gate), lambda: P.wait(lg='pw'), 's_barrier', ('M', f'bar{T}')]
        for i in range(8): L.append((f'ds_read_b128 {v(D[i],4)}, {v(vRR)} offset:{(i >> 1)*STW + o + (i & 1)*160}', f'rr{i >> 1}'))
        L.append(('Z', cfg.get('z2', 6)))
        pa = lambda d, s: [f'v_pk_add_f32 {v(d+2*h,2)}, {v(d+2*h,2)}, {v(s+2*h,2)}' for h in range(2)]
        if T < 3: pa = lambda d, s: [f'v_add_f32 {v(d+h)}, {v(d+h)}, {v(s+h)}' for h in range(4)]
        L.append(lambda: P.wait(lg='rr0'))
        L += pa(D[0], HBR[0]) + pa(D[1], HBR[1])
        for i in range(1, 4):
            L.append(lambda i=i: P.wait(lg=f'rr{i}'))
            L += pa(D[0], D[2*i]) + pa(D[1], D[2*i+1])
        for i in range(4): L.append(f'v_cvt_pk_bf16_f32 {v(72+i)}, {v(R1+2*i)}, {v(R1+2*i+1)}')
        if T: L.append(f's_add_u32 {sXT[1]}, {sXT[1]}, {16*1280}')
        L.append(('X', sOUTM, lambda: (A(f'buffer_store_dwordx4 v[72:75], {v(vOUT)}, {srd(SOUT)}, {sXT[1]} offen {cfg.get("ofl", "nt")}'), P.busy(128))))
        return L
    def dmap(T, r):
        if T < 3: return divmod(r, 5)
        return (r // 3, r % 3) if r < 36 else ((r - 36) // 2, 3 + (r - 36) % 2)
    ev = {}
    def at(n, f): ev.setdefault(n, []).append(f)
    if not SYM: at(cfg.get('hpi', 4), lambda: poll_issue(vPH, 64))
    def hchk():
        poll_check(vPH, 3, 64, inl=cfg.get('inl3', 0) & 1); P.bg = h_items(1) + P.bg; hok.append(1)
    if not SYM: at(cfg.get('hpc', 40), hchk)
    FK, PI, PC = cfg.get('fk', 50), cfg.get('pi', 70), cfg.get('pc', 105)
    def published(T):
        n0 = P.step - 400; hot[0] = False
        if cfg.get('log'): print('pub', T, n0, file=sys.stderr)
        assert n0 + FK > [HB2, HB3, 0, 0][T]
        at(n0 + FK, lambda: setflag(4 + T, f'pub{T}'))
        at(n0 + PI, lambda: poll_issue(vP4a))
        def gchk():
            poll_check(vP4a, 4 + T, inl=cfg.get('inl3', 0) >> (T + 1) & 1); P.bg = P.bg + g_items(T) if T else g_items(T) + P.bg
            gok.add(T)
        at(n0 + PC, gchk)
    gok = set(); hot = [False]; hok = [1] if SYM else []
    b2l = dict(ins=[(f'buffer_load_dwordx4 {v(HR,4)}, v7, {srd(SB2)}, {sT5} offen', 'b2')], gap=16, avail=400 + 240)
    at(240, lambda: P.bg.insert(0, b2l))
    st0 = stats3(0, 20)
    pend = st0[:2] + su + st0[3:] + cfill + (stats3(1, 20) if SYM and cfg.get('st1', 0) == 0 else [])
    cp = [0]; xm = [False]; HB2 = cfg.get('hb2', 100); assert HB2 <= 120 - 3*PRE; HB3 = HB2 if cfg.get('hb3', 0) else 180 - 3*PRE
    def kind(x):
        if x is None: return 'N'
        if callable(x): return 'S'
        if isinstance(x, tuple): return x[0] if len(x[0]) == 1 else 'D'
        if x.startswith('s_'): return 'S'
        return 'W' if x.startswith(('v_permlane', 'v_rsq')) else 'D'
    def unmask():
        if xm[0]: A('s_mov_b64 exec, -1'); xm[0] = False; return 1
        return 0
    def pop():
        x = pend.pop(0); k = kind(x)
        if k in 'MGZ': return
        if k == 'X': A(f's_mov_b64 exec, {x[1]}'); x[2](); xm[0] = True; return
        if k == 'B': unmask(); x[1](); xm[0] = True; return
        if k != 'S': unmask()
        if k == 'V': x[1]()
        else: emit(x)
    def upto(m):
        while ('M', m) in pend: pop()
    def prewait(n):
        if n >= 480: return
        T, r = divmod(n % 240, 60)
        if n < 240:
            k, j = divmod(r, 3)
            if j == 0: P.wait(lg=f'b{20*T + k}')
        else:
            kk, j = dmap(T, r); r = 5*kk + j
            assert T in gok, n
            if P.pending([f'g{T}_{kk}', f'w2_{r}']): unmask(); P.drain([f'g{T}_{kk}', f'w2_{r}'])
            if T == 0:
                while cp[0] <= w2pos(r) - 41: unmask(); P.drain(f'sg{cp[0]}'); copy()
            P.wait(vm=[f'g{T}_{kk}', f'w2_{r}'], lg=f'cp{w2pos(r)-41}' if T == 0 else None)
    def copy():
        P.wait(vm=f'sg{cp[0]}')
        A(f'ds_read_b128 {a(48+4*cp[0],4)}, {v(vSG)} offset:{cp[0]*1024}', tag=f'cp{cp[0]}'); cp[0] += 1
    prewait(0)
    for n in range(480):
        P.step = 400 + n
        T, r = divmod(n % 240, 60)
        if r == 0: upto(f'c{T-2}' if n < 240 else f'c{T+2}')
        if n < 240:
            k, j = divmod(r, 3); ac = AC3[T & 1]; q = 20*T + k
            A(f'{MF} {v(ac+4*j,4)}, {w1reg(3*k+j)}, {v(BR+4*(q%NBR),4)}, {"0" if k == 0 else v(ac+4*j,4)}')
        else:
            kk, j = dmap(T, r); ac = AC4[T & 1]
            A(f'{MF} {v(ac+4*j,4)}, {w2reg(5*kk + j)}, {a(GB[T]+4*kk,4)}, {"0" if kk == 0 else v(ac+4*j,4)}')
        l0 = len(P.L)
        unmask()
        if n in (60 - 3*PRE, HB2, HB3):
            ht = 'h3' if n == HB3 else f'h{T+1}'
            P.drain(ht); P.wait(vm=ht); A('s_barrier')
        prewait(n + 1)
        for f in ev.get(n, []): f()
        while pend and kind(pend[0]) == 'M' or pend and kind(pend[0]) == 'G' and pend[0][1] <= n: pop()
        if len(P.L) == l0:
            if pend and kind(pend[0]) in 'SXB' and r >= 2 and not (kind(pend[0]) == 'B' and AL and pend[0][2] >= 2 and pend[0][2] - 2 not in gok): pop()
            elif P.bg and P.now() >= P.nxt - 40: P.pre(1)
        if n < 240 and j == 0 and q + PRE < 80: unmask(); A(h_read(q + PRE), tag=f'b{q+PRE}')
        if P.room() >= 8 and not xm[0] and P.ready() and not (hot[0] and r >= 2 and r % cfg.get('hot', 8) and P.bg[0]['ins'][-1][1][0] in 'sw'): tick()
        c = cp[0]
        if c < 19 and n >= 180 + 3*((48 + 4*c + 3)//12 + 1) and P.room() >= 4 and not xm[0] and not hot[0] and not P.pending(f'sg{c}') and P.age(f'sg{c}') > cfg.get('sga', 900): copy()
        while pend and r >= 2 and not xm[0]:
            kd = kind(pend[0])
            if kd == 'N':
                pend.pop(0)
                if pend and pend[0] is None: pend.pop(0)
                break
            if kd == 'M': pop(); continue
            if kd == 'Z': pend[0] = ('G', n + pend[0][1]); break
            if kd in 'XGB' or P.room() < {'S': 4, 'D': 4, 'W': 8, 'V': 8}[kd]: break
            pop()
        if r == 59:
            if n < 240: pend += epi3(T) + ([('G', 0 if SYM else HB2)] + stats3(1, 20) if T == 0 and (not SYM or cfg.get('st1', 0)) else []); hot[0] = True
            elif T < 3:
                Z0 = cfg.get('z0', 4)
                for j in range(5): at(n + 2 + Z0*j, lambda T=T, j=j: red_w(T, j))
                pend += red_r(T, n + 2 + 4*Z0 + cfg.get('z1', 5)) + red_h(T + 1)
                if T == 2:
                    for j in range(3): at(n + 39 + Z0*j, lambda j=j: red_w(3, j))
            else:
                while pend: pop()
                red_w(3, 3); red_w(3, 4)
                pend += red_r(T, 0)
            if n == 239:
                pend.append(lambda: (unmask(), P.drain('b2'), P.wait(vm='b2')))
                for r2 in range(8): pend.append(f'v_and_b32 {v(B2F+r2)}, 0xffff0000, {v(HR+(r2>>1))}' if r2 & 1 else f'v_lshlrev_b32 {v(B2F+r2)}, 16, {v(HR+(r2>>1))}')
                pend += red_h(0)
            if cfg.get('log'): print('pend', len(pend), file=sys.stderr)
            unmask()
            stamp(f'p3_e{T}' if n < 240 else f'p4_t{T}', 1 if T == 3 else 2)
    assert cp[0] == 19
    while pend: pop()
    unmask()
    stamp('stored')
    if prof: P.wait(vm=0)
    stamp('end')
    assert not P.bg, P.bg
    return finish(P)

def finish(P):
    if P.prof:
        P('s_memrealtime s[100:101]'); P.wait(lg=0); P(f'v_writelane_b32 v19, s100, {len(P.stamps)}'); P.stamps.append('rt1')
        P(f's_lshl_b32 s100, s2, 2'); P(f's_add_u32 s100, s100, {sW}'); P('s_lshl_b32 s100, s100, 8'); P(f's_add_u32 s100, s100, {PROFB}')
        P('v_lshlrev_b32 v18, 2, v0'); P(f'buffer_store_dword v19, v18, {srd(SWS)}, s100 offen')
        P.L.insert(0, '; stamps: ' + ' '.join(P.stamps))
    P('s_endpgm')
    P.track = False
    for x in P.ool: P(x)
    P('L_end:')
    body = P.finish()
    hdr = f"""; generated by gen/gen4.py
; @launch grid=(256,1,1) block=(256,1,1) lds={LDS_TOTAL}
.amdgcn_target "amdgcn-amd-amdhsa--gfx950"
.text
.globl {NAME}_kernel
.p2align 8
.type {NAME}_kernel,@function
{NAME}_kernel:
"""
    ftr = f"""
s_endpgm
.section .rodata,"a"
.p2align 6
.amdhsa_kernel {NAME}_kernel
  .amdhsa_next_free_vgpr 512
  .amdhsa_next_free_sgpr 102
  .amdhsa_accum_offset 256
  .amdhsa_group_segment_fixed_size 0
  .amdhsa_kernarg_size 88
  .amdhsa_user_sgpr_count 2
  .amdhsa_user_sgpr_kernarg_segment_ptr 1
  .amdhsa_system_sgpr_workgroup_id_x 1
.end_amdhsa_kernel
"""
    print('model time', P.t, 'nops', P.nnops, 'short waits', P.warn, file=sys.stderr)
    return hdr + body + ftr

if __name__ == '__main__':
    out = sys.argv[1]
    cfg = eval(sys.argv[3]) if len(sys.argv) > 3 else {}
    s = gen(cfg)
    if cfg.get('prof'): s = f'; cfg {cfg}\n' + s
    open(out, 'w').write(s)
    print('lines', s.count('\n'))
```

```python
import sys, math, struct
from asmlib import Prog
NAME = "sequential_preLN__sliding_local_dilated__dense_activation_squared_relu__prompt"

FL = 0
WO = 0x10000
W1 = WO + 800 * 1024
W2 = W1 + 1920 * 1024
OB = W2 + 1920 * 1024
HB = OB + 128 * 20480
H1B = HB + 128 * 21504
PROFB = H1B + 128 * 49152
H1S = PROFB + 1024 * 256
WS_END = H1S + 128 * 49152

SLOT = 15424; HALF = 7712
XS = 20480
LDS_TOTAL = 163840
PP = 832
STG = 86016; STW = 19456
PIT = 336

SX, SWQ, SWS, SP0, SOUT, SDBG, SB1, SB2, SPD = 4, 8, 12, 16, 20, 24, 28, 32, 36
def srd(b): return f's[{b}:{b+3}]'
sW, sM, sRB = 's40', 's41', 's42'
sXT = ['s43', 's44', 's45', 's46', 's47']
sWM0, sXM0 = 's48', 's49'
sW0, sW1h = 's50', 's51'
sT2, sT3, sT4, sT5 = 's52', 's53', 's54', 's55'
sEXW = 's[56:57]'; sEXT0 = 's[58:59]'
sFAST, sFLOFF, sCNT, sXCC = 's60', 's61', 's62', 's63'
sOFF, sBG, sWOS, sW1S = 's96', 's97', 's98', 's99'
sW10 = 's3'
sJ = 's60'; sROT = ['s92', 's93', 's94', 's95']
sOBASE, sHBASE, sH1BASE, sW2S = 's64', 's65', 's66', 's67'
sM1, sM3, sM23 = 's[68:69]', 's[70:71]', 's[72:73]'
sA, sB, sC, sD = 's74', 's75', 's76', 's77'
sO1, sO2, sNEED, sH1 = 's78', 's79', 's80', 's81'
sEVN = 's[82:83]'; sOUTM = 's[84:85]'
sSTG, sHS, sHL, sG = 's86', 's87', 's88', 's89'

def v(i, n=1): return f'v{i}' if n == 1 else f'v[{i}:{i+n-1}]'
def a(i, n=1): return f'a{i}' if n == 1 else f'a[{i}:{i+n-1}]'
MF = 'v_mfma_f32_16x16x32_bf16'
SPIN = 200000
f2u = lambda f: struct.unpack('<I', struct.pack('<f', f))[0]

def pk_bc(reg):
    return v(reg & ~1, 2), reg & 1

def gen(cfg=None):
    cfg = cfg or {}
    P = Prog(); A = P
    tick = P.tick
    GAP = cfg.get('gap', 74)
    SPL = 0; SYM = cfg.get('sym', 0); AL = cfg.get('al', 1); PT = cfg.get('pt', 0) if AL else 0
    LEAD = cfg.get('lead', 3); NSLOT = cfg.get('nslot', LEAD + 1)
    XB = NSLOT * SLOT; PS = XB + 2 * XS
    assert PS + 32 * PP <= LDS_TOTAL
    vL16 = 1
    vWO = [2, 3, 4, 5]; vXO = 6; vAR = [7, 8]; vAX = [9, 10]; vB = [11, 12, 224, 225]
    FA = [20, 36]; FB = [52, 72]
    ACC = 92; GR = 172
    acc = lambda F, T: ACC + (T * 4 + F) * 4
    vFS = 254; vFV = 255; ONES = 240; XR = 244
    prof = cfg.get('prof'); P.stamps = ['entry', 'rt0']; P.prof = prof
    def stamp(name, lvl=1):
        if cfg.get('log'):
            tg = [x[1] for it in P.bg for x in it['ins'] if isinstance(x, tuple)]
            print(name, 't', P.t, 'bg', len(P.bg), tg[:1], tg[-1:], file=sys.stderr)
        if not prof or (prof < lvl and name not in cfg.get('stamps', ())): return
        A('s_memtime s[100:101]'); P.wait(lg=0)
        A(f'v_writelane_b32 v19, s100, {len(P.stamps)}'); P.stamps.append(name)
    def emit(it):
        if it is None: return
        if callable(it): it()
        elif isinstance(it, tuple): A(it[0], tag=it[1])
        else: A(it)
    def AT(*ins):
        for x in ins: emit(x); tick()
    def flush(n=10**9):
        while n > 0 and tick(force=True): n -= 1
    if prof: A('s_memtime s[100:101]'); A('s_memrealtime vcc')
    KA = 76
    A(f's_load_dwordx16 s[{KA}:{KA+15}], s[0:1], 0')
    A(f's_load_dwordx2 s[{SWS}:{SWS+1}], s[0:1], 80')
    A(f's_load_dwordx2 s[{SOUT}:{SOUT+1}], s[0:1], 64')
    A(f's_load_dwordx2 s[{SDBG}:{SDBG+1}], s[0:1], 72')
    A('s_cmp_ge_u32 s2, 256')
    A('s_cbranch_scc1 L_end')
    A('v_lshrrev_b32 v13, 6, v0')
    A('v_and_b32 v0, 63, v0')
    A(f'v_readfirstlane_b32 {sW}, v13')
    A('v_lshlrev_b32 v1, 4, v0')
    A('v_lshlrev_b32 v17, 7, v0')
    A(f's_bfe_u32 {sM}, s2, 0x30003')
    CPF = cfg.get('cpf', 4)
    if CPF:
        A('s_getpc_b64 s[64:65]'); A('L_pc:')
        if CPF == 4: A(f's_lshr_b32 {sT2}, s2, 3'); A(f's_lshl_b32 {sT2}, {sT2}, 2')
        else: A(f's_lshl_b32 {sT2}, {sM}, 2')
        A(f's_add_u32 {sT2}, {sT2}, {sW}'); A(f's_mul_i32 {sT2}, {sT2}, {CPF*128}')
        A(f'v_add_u32 v13, {sT2}, v17'); A('v_min_u32 v13, L_end-L_pc, v13')
        A(f's_mov_b64 exec, {(1 << CPF) - 1:#x}')
        A('global_load_dword v253, v13, s[64:65]', tag='pf')
        A('s_mov_b64 exec, -1')
    for b, n in ((SX, 2621440), (SWQ, 2457600), (SWS, WS_END), (SOUT, 2621440), (SDBG, 256), (SB1, 3072), (SB2, 1280)):
        A(f's_mov_b32 s{b+2}, {n}'); A(f's_mov_b32 s{b+3}, 0x20000')
    A(f's_mov_b32 s{SP0+3}, 0x20000'); A(f's_mov_b32 s{SPD+3}, 0x20000')
    A(f's_and_b32 {sRB}, s2, 7'); A(f's_lshl_b32 {sRB}, {sRB}, 2'); A(f's_lshr_b32 {sJ}, s2, 6'); A(f's_add_u32 {sRB}, {sRB}, {sJ}')
    A(f's_mul_i32 {sXT[1]}, {sRB}, {64*1280}')
    A(f's_and_b32 {sW0}, {sW}, 1'); A(f's_lshr_b32 {sW1h}, {sW}, 1')
    def setup_wx():
        A(f's_sub_u32 {sXT[0]}, {sXT[1]}, {16*1280}'); A(f's_cselect_b32 {sXT[0]}, 0, {sXT[0]}')
        for T in range(2, 5): A(f's_add_u32 {sXT[T]}, {sXT[1]}, {(T-1)*16*1280}')
        A(f's_mul_i32 {sWM0}, {sW0}, {8*1280}'); A(f's_lshl_b32 {sXM0}, {sW1h}, 7'); A(f's_add_u32 {sWM0}, {sWM0}, {sXM0}')
        A('v_lshrrev_b32 v13, 3, v0'); A(f'v_mul_u32_u24 v13, 1280, v13')
        A('v_lshrrev_b32 v14, 4, v0')
        A(f's_lshl_b32 {sXM0}, {sW0}, 2')
        A(f'v_add_u32 v15, {sXM0}, v14'); A('v_and_b32 v16, 7, v0'); A('v_xor_b32 v15, v15, v16')
        A(f'v_lshl_add_u32 v13, v15, 4, v13'); A(f'v_add_u32 {v(vXO)}, {sWM0}, v13')
        A(f's_mul_i32 {sXM0}, {sW1h}, 10240'); A(f's_lshl_b32 {sWM0}, {sW0}, 10'); A(f's_add_u32 {sXM0}, {sXM0}, {sWM0}')
        A(f's_mov_b32 s59, -1'); A(f's_cmp_eq_u32 {sW0}, 0'); A(f's_cselect_b32 s58, 0xffffff00, -1')
        A('v_mul_u32_u24 v13, 69, v0'); A('v_lshrrev_b32 v13, 11, v13')
        A('v_mul_u32_u24 v15, 30, v13'); A('v_sub_u32 v15, v0, v15')
        A('v_mul_u32_u24 v16, 26, v15'); A('v_lshrrev_b32 v16, 8, v16')
        A('v_mul_u32_u24 v13, 3840, v13')
        A('v_mul_u32_u24 v16, 1120, v16')
        A('v_lshl_add_u32 v13, v15, 4, v13'); A('v_add_u32 v13, v13, v16')
        A(f's_lshl_b32 s56, {sW0}, 4'); A(f's_lshl_b32 s57, {sW1h}, 2'); A(f's_add_u32 s56, s56, s57')
        A(f's_mul_i32 s56, s56, 3840'); A(f's_mul_i32 s57, {sM}, 160'); A(f's_add_u32 s56, s56, s57')
        A(f'v_add_u32 {v(vWO[0])}, s56, v13')
        for q in range(1, 4): A(f'v_add_u32 {v(vWO[q])}, {(8*(q>>1)+2*(q&1))*3840 - 960*q}, {v(vWO[0])}')
        A(f's_mul_i32 {sWM0}, {sW1h}, {HALF}'); A(f's_mul_i32 s57, {sW0}, {8*480}'); A(f's_add_u32 {sWM0}, {sWM0}, s57')
        A(f's_mov_b32 s56, -1'); A(f's_mov_b32 s57, 0x0fffffff')
        for p in range(4):
            A(f's_add_u32 {sROT[p]}, {sJ}, {p}'); A(f's_and_b32 {sROT[p]}, {sROT[p]}, 3'); A(f's_mul_i32 {sROT[p]}, {sROT[p]}, {32*3840}')
    sPR = ['s64', 's65']; sPP, sPD0, sPD1, sPD2, sPTYPE = 's66', 's67', 's68', 's69', 's70'
    sEXP = 's[72:73]'; kap, part = 's74', 's75'
    u0, u1, u2, u3 = 's97', 's98', 's99', 's71'
    sPM0 = 's62'
    def setup_p0():
        A(f's_mov_b32 {sPTYPE}, 0')
        A(f's_mov_b32 {sT2}, s2')
        A(f's_mov_b32 s{SP0+2}, 819200'); A(f's_mov_b32 s{SPD+2}, {WS_END}')
        A(f's_mov_b32 {sPP}, 1280'); A(f's_mov_b32 s72, -1'); A(f's_mov_b32 s73, 0xff')
        A(f's_mov_b32 {sT4}, 20'); A(f's_mov_b32 {sT5}, {WO}')
        A('s_cmp_lt_u32 s2, 40'); A('s_cbranch_scc1 L_p0t')
        A(f's_mov_b32 {sPTYPE}, 1'); A(f's_sub_u32 {sT2}, s2, 40')
        A(f's_mov_b32 s{SP0+2}, 1966080')
        A(f's_mov_b32 {sT4}, 48'); A(f's_mov_b32 {sT5}, {W2}')
        A('s_cmp_lt_u32 s2, 136'); A('s_cbranch_scc1 L_p0t')
        A(f's_mov_b32 {sPTYPE}, 2'); A(f's_sub_u32 {sT2}, s2, 136')
        A(f's_mov_b32 {sPP}, 3072'); A(f's_mov_b32 s73, 0xffff')
        A('s_cmp_lt_u32 s2, 216'); A('s_cbranch_scc1 L_p0t')
        A(f's_mov_b32 s{SP0+2}, 0'); A(f's_mov_b32 s{SPD+2}, 0')
        A('L_p0t:')
        A(f's_lshr_b32 {kap}, {sT2}, 1'); A(f's_and_b32 {part}, {sT2}, 1')
        A(f's_lshr_b32 {sT3}, {sT2}, 2'); A(f's_and_b32 {u0}, {sT2}, 3')
        A(f's_cmp_eq_u32 {sPTYPE}, 2'); A(f's_cselect_b32 {kap}, {sT3}, {kap}'); A(f's_cselect_b32 {part}, {u0}, {part}')
        A(f's_cselect_b32 {u0}, 6, 5'); A(f's_mul_i32 {u0}, {u0}, {part}'); A(f's_lshl_b32 {u0}, {u0}, 7')
        A(f's_lshl_b32 {u1}, {kap}, 1'); A(f's_add_u32 {u1}, {u1}, {sW0}')
        A(f's_lshl_b32 {u2}, {u1}, 4'); A(f's_lshl_b32 {u3}, {sW1h}, 2'); A(f's_add_u32 {sPR[0]}, {u2}, {u3}')
        A(f's_mov_b32 {sPR[1]}, 8')
        A(f's_cmp_lg_u32 {sPTYPE}, 0'); A('s_cbranch_scc1 L_p0r')
        A(f's_mul_i32 {u2}, {u1}, 20'); A(f's_add_u32 {sPR[0]}, {u2}, {u3}')
        A(f's_cmp_lt_u32 {kap}, 16'); A('s_cbranch_scc1 L_p0r')
        A(f's_lshl_b32 {u2}, {kap}, 1'); A(f's_add_u32 {u2}, {u2}, {sW1h}'); A(f's_lshl_b32 {u2}, {u2}, 1'); A(f's_add_u32 {u2}, {u2}, {sW0}')
        A(f's_mul_i32 {u2}, {u2}, 40'); A(f's_sub_u32 {sPR[0]}, {u2}, {2560 - 16}'); A(f's_mov_b32 {sPR[1]}, 20')
        A('L_p0r:')
        A(f's_add_u32 {sPR[1]}, {sPR[1]}, {sPR[0]}')
        for e in range(2): A(f's_mul_i32 {sPR[e]}, {sPR[e]}, {sPP}'); A(f's_add_u32 {sPR[e]}, {sPR[e]}, {u0}')
        A(f's_mul_i32 {sPM0}, {sW}, {8*PP}')
    XG = cfg.get('xgap', 74); WG = cfg.get('wgap', 108)
    def xdma(S):
        return [dict(st=[('m0', f's_add_u32 m0, {sXM0}, {XB + (S % 2)*XS + T*2048 - S*256}')], ex=sEXT0 if T == 0 else '-1', gap=XG,
                     ins=[(f'buffer_load_dwordx4 {v(vXO)}, {srd(SX)}, {sXT[T]} offen offset:{S*256} {cfg.get("xfl", "")} lds', f'x{S}')]) for T in range(5)]
    def wdma(ks):
        so = sROT[ks % 4] if ks < 4 else sOFF
        st = [('m0', f's_add_u32 m0, {sWM0}, {(ks % NSLOT)*SLOT}')]
        if ks >= 4: st.append((sOFF, f's_add_u32 {sOFF}, {sROT[ks % 4]}, {(ks//4)*4*32*3840}'))
        return [dict(st=st, ex=sEXW, gap=WG,
                     ins=[(f'buffer_load_dwordx4 {v(vWO[q])}, {srd(SWQ)}, {so} offen offset:{960*q} {cfg.get("wfl", "")} lds', f'w{ks}')]) for q in range(4)]
    order = cfg.get('ord', 'p x t P W0 X0 W1 | W2').split()
    if not PT: order = [t for t in order if t != 't']
    setup_p0(); setup_wx()
    A(f's_lshl_b32 {sT2}, s2, 2'); A(f's_add_u32 {sT2}, {sT2}, {sW}'); A(f's_mul_i32 {sT2}, {sT2}, {19*128}')
    A(f's_lshl_b32 {sT3}, {sM}, 2'); A(f's_add_u32 {sT3}, {sT3}, {sW}'); A(f's_mul_i32 {sT3}, {sT3}, 2560'); A(f's_add_u32 {sT3}, {sT3}, {sXT[1]}')
    if PT:
        A(f's_lshl_b32 s96, {sM}, 2'); A(f's_add_u32 s96, s96, {sW}'); A(f's_mul_i32 s96, s96, {(48 if PT == 2 else 7)*128}')
        if PT == 1:
            A('v_add_u32 v18, s96, v17'); A('v_lshrrev_b32 v13, 14, v18'); A('v_mul_u32_u24 v13, 86016, v13'); A('v_add_u32 v18, v18, v13'); A('s_mov_b32 s96, 81920')
        A(f's_mul_i32 s97, {sRB}, {4*49152}'); A('s_add_u32 s96, s96, s97'); A(f's_add_u32 s96, s96, {H1B}')
    if 'T' in order:
        A('v_lshlrev_b32 v18, 20, v0'); A('s_lshl_b32 s96, s2, 7'); A('v_add_u32 v18, s96, v18')
        A(f's_mul_i32 s97, {sRB}, {4*49152}'); A(f's_add_u32 s97, s97, {H1B}'); A('v_writelane_b32 v18, s97, 6')
        A(f's_add_u32 s97, s97, {4*49152 - 128}'); A('v_writelane_b32 v18, s97, 7'); A(f's_mov_b32 s97, {OB - 128}'); A('v_writelane_b32 v18, s97, 5')
    P.wait(lg=0)
    if 'T' in order: A(f's_mov_b64 s[{SB1}:{SB1+1}], s[{KA+10}:{KA+11}]'); A(f's_mov_b64 s[{SB2}:{SB2+1}], s[{KA+14}:{KA+15}]')
    if prof: A('v_writelane_b32 v19, s100, 0'); A('v_writelane_b32 v19, vcc_lo, 1')
    stamp('karg', 2)
    A(f's_mov_b64 s[{SWQ}:{SWQ+1}], s[{KA+2}:{KA+3}]'); A(f's_mov_b64 s[{SX}:{SX+1}], s[{KA}:{KA+1}]')
    A(f's_cmp_eq_u32 {sPTYPE}, 0'); A(f's_cselect_b64 s[{SP0}:{SP0+1}], s[{KA+4}:{KA+5}], s[{KA+12}:{KA+13}]')
    A(f's_cmp_eq_u32 {sPTYPE}, 2'); A(f's_cselect_b64 s[{SP0}:{SP0+1}], s[{KA+8}:{KA+9}], s[{SP0}:{SP0+1}]')
    done = set()
    def tok_items(t):
        done.add(t)
        if t == 'p': return [dict(ex='0x7ffff', ins=[(f'buffer_load_dword v252, v17, {srd(SWQ)}, {sT2} offen', 'pf')])]
        if t == 'x': return [dict(ex='0xfffff', ins=[(f'buffer_load_dword v251, v17, {srd(SX)}, {sT3} offen', 'pf')])]
        if t == 't':
            if PT == 2: return [dict(ins=['s_mov_b32 exec_hi, 0xffff', (f'buffer_load_dword v250, v17, {srd(SWS)}, s96 offen', 'pf'), 's_mov_b32 exec_hi, -1'])]
            return [dict(ex='0x7f', ins=[(f'buffer_load_dword v250, v18, {srd(SWS)}, s96 offen', 'pf')])]
        if t == 'T':
            return [dict(ex='0xff', ins=[(f'buffer_load_dword v250, v18, {srd(SWS)}, 0 offen sc1', 'pf')]),
                    dict(ex='1', ins=[(f'buffer_load_dword v249, off, {srd(SOUT)}, {sXT[1]}', 'pf'), (f'buffer_load_dword v248, off, {srd(SDBG)}, 0 sc1', 'pf'),
                                      (f'buffer_load_dword v247, off, {srd(SB1)}, 0', 'pf'), (f'buffer_load_dword v246, off, {srd(SB2)}, 0', 'pf')])]
        if t == 'U': return [dict(ex='1', ins=[(f'buffer_load_dword v245, off, {srd(SP0)}, {sPR[0]}', 'pf'), (f'buffer_load_dword v244, off, {srd(SX)}, {sXT[1]}', 'pf')])]
        if t == 'P':
            L = []
            for e in range(2):
                for r in range(4):
                    L.append(dict(st=[('m0', f's_add_u32 m0, {sPM0}, {PS + (4*e + r)*PP}')], ex=sEXP,
                                  ins=([f's_add_u32 {sPR[e]}, {sPR[e]}, {sPP}'] if r else []) +
                                  [(f'buffer_load_dwordx4 {v(vL16)}, {srd(SP0)}, {sPR[e]} offen {cfg.get("p0fl", "nt")} lds', 'p0')]))
            return L
        if t[0] == 'W': return wdma(int(t[1:]))
        if t[0] == 'X': return xdma(int(t[1:]))
    cut = order.index('|')
    assert not set('pxtTU') & set(order[cut:]) and not (PT and 'T' in order) and ('U' not in order or order.index('U') < order.index('P'))
    P.unlock()
    for t in order[:cut]: P.bg += tok_items(t)
    flush(); P.lock()
    stamp('iss0', 2)
    A(f's_mov_b64 s[{SPD}:{SPD+1}], s[{SWS}:{SWS+1}]')
    if 'T' not in order: A(f's_mov_b64 s[{SB1}:{SB1+1}], s[{KA+10}:{KA+11}]'); A(f's_mov_b64 s[{SB2}:{SB2+1}], s[{KA+14}:{KA+15}]')
    A(f's_lshl_b32 {sFLOFF}, {sRB}, 7')
    A(f's_lshl_b32 {sT3}, {sW}, 3'); A(f's_add_u32 {sT2}, {sM}, {sT3}'); A(f's_lshl_b32 {sT2}, {sT2}, 2')
    A(f'v_mov_b32 {v(vFS)}, {sT2}'); A(f'v_mov_b32 {v(vFV)}, 0')
    clr = dict(ex='1', gap=16, ins=[(f'buffer_store_dword {v(vFV)}, {v(vFS)}, {srd(SWS)}, {sFLOFF} offen {cfg.get("p0sf", "sc1")}', 'p0s')])
    A(f's_lshl_b32 s77, {part}, 2'); A(f's_add_u32 s77, s77, {sW}')
    A(f's_mul_i32 s78, s77, {sT4}'); A(f's_add_u32 s78, s78, {kap}'); A('s_mul_i32 s78, s78, 5120'); A(f's_add_u32 {sPD0}, s78, {sT5}')
    A(f's_add_u32 {sPD1}, {sPD0}, 3072')
    A('s_mul_i32 s78, s77, 40'); A(f's_add_u32 s78, s78, {kap}'); A('s_mul_i32 s78, s78, 3072'); A(f's_add_u32 s78, s78, {W1}')
    A('s_add_u32 s79, s78, 61440')
    A(f's_cmp_eq_u32 {sPTYPE}, 2'); A(f's_cselect_b32 {sPD0}, s78, {sPD0}'); A(f's_cselect_b32 {sPD1}, s79, {sPD1}')
    A(f's_cselect_b32 {sPD2}, s79, 0x40000000')
    A('s_cselect_b64 vcc, -1, 0'); A('s_cselect_b32 s79, 24, 0')
    A('s_cselect_b32 s78, 6, 5'); A(f's_mul_i32 s78, s78, {sW}'); A('s_lshl_b32 s78, s78, 5'); A(f's_add_u32 s78, s78, {PS}')
    vP, vS, vP2, vP3, vP4 = 192, 193, 194, 195, 220
    for x in ('v_lshrrev_b32 v13, 2, v0', 'v_and_b32 v15, 3, v0',
       f'v_mul_u32_u24 v16, {PP}, v13', f'v_add_u32 v16, s78, v16',
       f'v_lshl_add_u32 {v(vP)}, v15, 4, v16', f'v_lshl_add_u32 {v(vS)}, v15, 3, v16',
       f'v_cndmask_b32 {v(vP2)}, {v(vP)}, {v(vS)}, vcc', f'v_add_u32 {v(vP3)}, s79, {v(vP)}',
       f'v_add_u32 v16, 24, {v(vS)}', f'v_cndmask_b32 {v(vP4)}, v16, {v(vP)}, vcc',
       f's_mul_i32 {sT2}, {sW}, 40',
       f'v_mul_u32_u24 v16, 480, v13', f'v_add_u32 v16, {sT2}, v16',
       f'v_lshl_add_u32 {v(vAR[0])}, v15, 3, v16',
       f'v_mul_u32_u24 v17, 160, v15', f'v_add3_u32 v16, v16, v17, 32',
       'v_cmp_eq_u32 vcc, 3, v15', 'v_mov_b32 v17, 7680', f'v_cndmask_b32 {v(vAX[0])}, v16, v17, vcc',
       *([f'v_add_u32 {v(vAR[1])}, {4*SLOT}, {v(vAR[0])}', f'v_add_u32 {v(vAX[1])}, {4*SLOT}, {v(vAX[0])}'] if NSLOT > 4 else []),
       'v_and_b32 v16, 15, v0',
       'v_lshrrev_b32 v17, 1, v16', 'v_xor_b32 v17, v17, v14', 'v_lshlrev_b32 v17, 4, v17',
       f'v_lshl_add_u32 v17, v16, 7, v17',
       *[y for p in range(4) for y in (f's_add_u32 {sT2}, {sJ}, {p}', f's_bfe_u32 {sT3}, {sT2}, 0x10001', f's_mul_i32 {sT3}, {sT3}, 10240', f's_add_u32 {sT3}, {sT3}, {XB}',
                                       f's_and_b32 {sT2}, {sT2}, 1', f's_lshl_b32 {sT2}, {sT2}, 6', f'v_xor_b32 v18, {sT2}, v17', f'v_add_u32 {v(vB[p])}, {sT3}, v18')],
       f'v_min_u32 v17, {2*NSLOT-1}, v0', f'v_mul_u32_u24 v17, {HALF}, v17',
       'v_mov_b32 v222, 0x3f80', 'v_mov_b32 v223, 0',
       'ds_write_b64 v17, v[222:223] offset:7680',
       *[f'v_mov_b32 {v(ONES+i)}, 0x3f803f80' for i in range(4)],
       'v_bfe_u32 v17, v0, 3, 2', 'v_mul_u32_u24 v17, 10240, v17', 'v_and_b32 v18, 7, v0',
       f'v_lshl_add_u32 v17, v18, 4, v17', f'v_add_u32 v17, {XB}, v17',
       f'ds_write_b128 v17, {v(ONES,4)}'): A(x)
    P.unlock()
    for t in order[cut+1:]: P.bg += tok_items(t)
    flush(); P.lock()
    stamp('issued')
    BP, BC, BP1 = 228, 232, 236
    late = ['v_lshlrev_b32 v17, 2, v14', 'v_sub_u32 v17, v16, v17', 'v_mov_b32 v222, 0xf149f2ca']
    for r in range(4):
        for (dst, add) in ((BC, -r), (BP, 16 - r)):
            late += [f'v_add_u32 v18, {add}, v17', 'v_and_b32 v18, 0xfffffff1, v18',
                     'v_cmp_eq_u32 vcc, 0, v18', None, f'v_cndmask_b32 {v(dst+r)}, v222, 0, vcc']
    late += [lambda: (A(f's_cmp_eq_u32 {sRB}, 0'), A('s_cselect_b64 vcc, -1, 0'))]
    for r in range(4): late.append(f'v_cndmask_b32 {v(BP1+r)}, {v(BP+r)}, v222, vcc')
    late += [f's_lshl_b32 {sW10}, {sW}, 10',
       f's_mul_i32 {sWOS}, {sM}, 102400', f's_add_u32 {sWOS}, {sWOS}, {sW10}', f's_add_u32 {sWOS}, {sWOS}, {WO}',
       f's_lshl_b32 {sT2}, {sM}, 2', f's_add_u32 {sT2}, {sT2}, {sW}',
       f's_mul_i32 {sW1S}, {sT2}, 61440', f's_add_u32 {sW1S}, {sW1S}, {W1}',
       f's_getreg_b32 {sXCC}, hwreg(HW_REG_XCC_ID)', f's_and_b32 {sXCC}, {sXCC}, 7', f's_or_b32 {sXCC}, {sXCC}, 0x80']

    def frag_reads(ks):
        b = ks & 1; sl = ks % NSLOT; st = sl // 4; so = (sl % 4) * SLOT
        S = ks // 4; xo = (S % 2) * XS
        L = []
        L.append(f'ds_read_b128 {v(FB[b],4)}, {v(vB[ks&3])} offset:{xo}')
        for F in range(4):
            for jj in range(2):
                if F < 3: L.append(f'ds_read_b64_tr_b16 {v(FA[b]+4*F+2*jj,2)}, {v(vAR[st])} offset:{so + jj*HALF + F*160}')
                else: L.append(f'ds_read_b64_tr_b16 {v(FA[b]+4*F+2*jj,2)}, {v(vAX[st])} offset:{so + jj*HALF}')
        for T in range(1, 5): L.append(f'ds_read_b128 {v(FB[b]+4*T,4)}, {v(vB[ks&3])} offset:{xo + T*2048}')
        return L
    SP = cfg.get('sp', 1); SA = cfg.get('sa', 7); SC = cfg.get('sc', 15)
    def free_at(lo, hi):
        t = SC
        for ks in range(20):
            s0 = (ks % NSLOT) * SLOT
            if lo < s0 + SLOT and hi > s0: t = max(t, ks)
        for S in range(5):
            s0 = XB + (S % 2) * XS
            if lo < s0 + XS and hi > s0: t = max(t, 4*S + 3)
        return t
    groups = sorted([(l, free_at(l, l + 4096)) for l in range(61440, LDS_TOTAL, 4096)], key=lambda x: (x[1], -x[0]))
    assert len(groups) == 25
    sRW1 = ['s43', 's45', 's46', 's47']; sRO = ['s49', 's58', 's59', 's91']; sRW2 = sROT; sRQ = ['s56', 's57', 's48', 's96']
    idx = [('o', i) for i in range(5)] + [('1', i) for i in range(15)] + [('2', i) for i in range(15)]
    LQ = cfg.get('lq', 4); seq = []
    for i in range(-LQ, 35):
        if i + LQ < 35: seq.append(idx[i + LQ] + (0,))
        if i >= 0: seq += [idx[i] + (q,) for q in (1, 2, 3)]
    for i in range(5): seq.insert(cfg.get('wt0', 1) + i * cfg.get('wts', 2), ('o', i, 4))
    so = [x for x in seq if x[0] == 'o']; s1 = [x for x in seq if x[0] == '1']; s2_ = [x for x in seq if x[0] == '2']
    wo_loc = lambda f: groups[so.index(('o', (f // 4) % 5, f // 20))][0] + (f % 4) * 1024
    W2T = [(a(240 + 4*i, 4), 100) for i in range(4)] + [(v(192 + 4*i, 4), 150) for i in range(9)] + \
          [(v(100 + 4*i, 4), 200 + i + 3 if i < 18 else 310) for i in range(23)] + [(v(244, 4), 310), (v(248, 4), 310)] + \
          [(v(228 + 4*i, 4), 330) for i in range(3)] + [(a(48 + 4*i, 4), 400) for i in range(19)]
    w2pos = lambda r: s2_.index(('2', 5*(r // 20) + r % 5, (r // 5) % 4))
    w2reg = lambda r: W2T[w2pos(r)][0]
    def rot(regs, stride, base):
        L = [f's_lshr_b32 {sT3}, s2, 6' if cfg.get('rot', 1) else f's_mov_b32 {sT3}, 0']
        for q in range(4): L += [f's_add_u32 {sT2}, {sT3}, {q}', f's_and_b32 {sT2}, {sT2}, 3', f's_mul_i32 {sT2}, {sT2}, {stride}', f's_add_u32 {regs[q]}, {sT2}, {base}']
        return L
    def w_item(x):
        t, i, q = x; GAP = cfg.get('wg', 74); SF = cfg.get('sf', ['sc1']*5)[q]
        if t == 'o':
            g = groups[so.index(x)]
            return dict(st=[('m0', f's_add_u32 m0, {sW10}, {g[0]}'), (sBG, f's_add_u32 {sBG}, {sRO[q]}, {i*4096}' if q < 4 else f's_add_u32 {sBG}, {sWOS}, {(20 + i)*4096}')],
                        ins=[(f'buffer_load_dwordx4 {v(vL16)}, {srd(SWS)}, {sBG} offen {SF} lds', 'wo')], avail=g[1], gap=GAP)
        if t == '1':
            f = 15*q + i
            return dict(st=[(sBG, f's_add_u32 {sBG}, {sRW1[q]}, {(i & ~3)*1024}')] if i > 3 else [], gap=GAP,
                        ins=[(f'buffer_load_dwordx4 {a(4*f, 4)}, {v(vL16)}, {srd(SWS)}, {sBG if i > 3 else sRW1[q]} offen offset:{(i & 3)*1024} {SF}', f'w1_{f}')])
        c = s2_.index(x); r = 5*(4*(i // 5) + q) + i % 5
        st = [(sBG, f's_add_u32 {sBG}, {sRW2[q]}, {(i // 5)*20480 + (i % 5)*1024}')]
        if c < 41: return dict(st=st, gap=GAP, avail=W2T[c][1], ins=[(f'buffer_load_dwordx4 {W2T[c][0]}, {v(vL16)}, {srd(SWS)}, {sBG} offen {SF}', f'w2_{r}')])
        return dict(st=st + [('m0', f's_add_u32 m0, {sSTG}, {(c - 41)*1024}')], gap=GAP, avail=330 if cfg.get('sgb', 0) or SYM else 400,
                    ins=[(f'buffer_load_dwordx4 {v(vL16)}, {srd(SWS)}, {sBG} offen {SF} lds', f'sg{c - 41}')])
    def ld_items(regf, sbase, tagp, lo, hi, avail=-1, gap=GAP, sreg=sBG, off=0):
        return [dict(st=[(sreg, f's_add_u32 {sreg}, {sbase}, {off + (f//4)*4096}')], avail=avail(f) if callable(avail) else avail, gap=gap,
                     ins=[(f'buffer_load_dwordx4 {regf(f)}, {v(vL16)}, {srd(SWS)}, {sreg} offen offset:{(f%4)*1024} sc1', f'{tagp}{f}')]) for f in range(lo, hi)]
    w1reg = lambda f: a(4*f, 4)

    TB = 196
    def p0_reads():
        return [f'ds_read_b64_tr_b16 {v(TB+4*j+2*jj,2)}, {v(vr)} offset:{off + jj*16*PP}'
                for j, (vr, off) in enumerate([(vP, 0), (vP, 8), (vP2, 64), (vP3, 72), (vP4, 104), (vS, 160)]) for jj in range(2)]
    p0st = [dict(ins=[(f'buffer_store_dwordx4 {v(TB+4*j,4)}, {v(vL16)}, {srd(SPD)}, {(sPD0, sPD0, sPD0, sPD1, sPD1, sPD2)[j]} offen offset:{(j%3)*1024} {cfg.get("p0sf", "sc1")}', 'p0s')], gap=256) for j in range(6)]
    plan = {ks: [] for ks in range(20)}
    for k in range(20):
        if f'W{k}' not in done: plan[max(0, k - LEAD)] += wdma(k)
    for S in range(5):
        if f'X{S}' in done: continue
        xs = xdma(S); s0 = 4*S - 5 + cfg.get('xd', 0)
        for i, it in enumerate(xs): plan[max(0, s0 + i // 2)].append(it)
    if 'P' not in done: plan[cfg.get('pl', 0)] += tok_items('P')
    plan[cfg.get('cl', 0)].append(clr)
    spn = cfg.get('spn', 2)
    if SP < 0:
        P.wait(vm='p0', lg=0); A('s_barrier')
        stamp('p0in', 2)
        for s in p0_reads(): A(s)
    for j in range(6): plan[SP + 1 + j // spn].append(p0st[j])
    assert SP + 1 + 5 // spn < SA
    P.wait(vm=['x0', 'w0'], lg=0); A('s_barrier')
    stamp('first')
    for s in frag_reads(0): A(s)
    sc = (20 ** -0.5) * math.log2(math.e)
    vBA, vBB = 226, 227
    CS = 20; KXV = 56; QF = 192; VT0 = 208; VT1 = 218
    SB = [GR, GR + 4, GR + 8, 52, GR + 16]
    RQ, RS, NM, RX = [[x + i for x in SB] for i in range(4)]
    stats = []
    for T in range(5):
        g = GR + 4*T
        stats += [f'v_cndmask_b32 {v(g)}, {v(g)}, {v(g+1)}, {sM1}', f'v_cndmask_b32 {v(g+2)}, {v(g+2)}, {v(g+3)}, {sM3}',
                  f'v_cndmask_b32 {v(g)}, {v(g)}, {v(g+2)}, {sM23}',
                  (f'ds_bpermute_b32 {v(NM[T])}, {v(vBB)}, {v(acc(3,T))}', 'st'), (f'ds_bpermute_b32 {v(RS[T])}, {v(vBA)}, {v(g)}', 'st')]
    stats += [f'v_mov_b32_dpp {v(CS+4*F+r)}, {v(acc(F,0)+r)} row_newbcast:0 row_mask:0xf bank_mask:0xf' for F in (3, 0, 1, 2) for r in range(4)]
    stats.insert(len(stats) - cfg.get('stw', 8), lambda: P.wait(lg='st'))
    ch = [f'v_mul_f32 {v(NM[T])}, {f2u(-1.0/640):#x}, {v(NM[T])}' for T in range(5)] + [f'v_mul_f32 {v(RS[T])}, {f2u(1.0/640):#x}, {v(RS[T])}' for T in range(5)]
    ch += [f'v_fma_f32 {v(RS[T])}, -{v(NM[T])}, {v(NM[T])}, {v(RS[T])}' for T in range(5)] + [f'v_max_f32 {v(RS[T])}, 0, {v(RS[T])}' for T in range(5)]
    ch += [f'v_add_f32 {v(RS[T])}, {f2u(1e-5):#x}, {v(RS[T])}' for T in range(5)] + [f'v_rsq_f32 {v(RS[T])}, {v(RS[T])}' for T in range(5)]
    ch += [f'v_mul_f32 {v(RX[T])}, v221, {v(RS[T])}' for T in range(5)] + [f'v_mul_f32 {v(RQ[T])}, {f2u(sc):#x}, {v(RS[T])}' for T in range(1, 5)]
    stats += ch
    for ks in range(20):
        tags = []
        if ks + 1 < 20: tags = [f'w{ks+1}', f'x{(ks+1)//4}']
        assert not P.pending(tags)
        if ks == SP: tags.append('p0')
        if ks == cfg.get('wb', SA): tags.append('p0s')
        P.wait(vm=tags, lg=0); A('s_barrier')
        P.step = ks
        stamp(f'k{ks}', 1 if ks % 4 == 0 or ks == 19 else 2)
        fill = list(frag_reads(ks + 1)) if ks + 1 < 20 else []
        if ks == SP: fill += p0_reads()
        if ks == cfg.get('wb'):
            assert ks + 2 <= SA and not any(y[1] == 'p0s' for k2 in range(ks, 20) for it in plan[k2] for y in it['ins'] if isinstance(y, tuple))
            A(f's_cmp_lg_u32 {sW}, 0'); A('s_cbranch_scc1 L_wb')
            P.L.append('buffer_wbl2 sc1 ; nocheck')
            A('L_wb:')
        if ks == SA:
            A(f's_cmp_eq_u32 {sW}, 0'); A('s_cbranch_scc0 L_arr' if cfg.get('inla', 0) else 's_cbranch_scc1 L_arr0'); no = len(P.ool)
            P.ool += ['L_arr0:', f's_and_b32 {sT2}, {sM}, 3', f's_lshl_b32 {sT2}, {sT2}, 3', f's_lshl_b32 {sT2}, {sXCC}, {sT2}',
                      f's_lshl_b32 {sT3}, {sRB}, 3', f's_and_b32 {sT4}, {sM}, 4', f's_add_u32 {sT3}, {sT3}, {sT4}',
                      f'v_mov_b32 v13, {sT2} ; nocheck', f'v_mov_b32 v15, {sT3} ; nocheck', 's_mov_b64 exec, 1',
                      f'buffer_atomic_or v13, v15, {srd(SDBG)}, 0 offen sc1 ; nocheck', 's_mov_b64 exec, -1', 's_branch L_arr']
            if cfg.get('inla', 0): P.L += P.ool[no+1:-1]; del P.ool[no:]
            A('L_arr:')
            assert not late
            late = [f's_mul_i32 {sH1BASE}, {sRB}, {4*49152}', f's_add_u32 {sH1BASE}, {sH1BASE}, {H1B}'] + (
                   [f's_mov_b32 {sOBASE}, {sH1BASE}', f's_add_u32 {sHBASE}, {sH1BASE}, 98304'] if AL else
                   [f's_mul_i32 {sOBASE}, {sRB}, {4*20480}', f's_add_u32 {sOBASE}, {sOBASE}, {OB}',
                     f's_mul_i32 {sHBASE}, {sRB}, {4*21504}', f's_add_u32 {sHBASE}, {sHBASE}, {HB}']) + [
                     f's_add_u32 {sW2S}, {sW1S}, {W2 - W1}',
                     's_mov_b32 s68, 0x22222222', 's_mov_b32 s69, 0x22222222', 's_mov_b32 s70, 0x88888888', 's_mov_b32 s71, 0x88888888',
                     's_mov_b32 s72, 0xcccccccc', 's_mov_b32 s73, 0xcccccccc',
                     's_mov_b32 s82, 0xffff', 's_mov_b32 s83, 0xffff', 's_mov_b32 s84, 0x03ff03ff', 's_mov_b32 s85, 0x03ff03ff',
                     f's_lshl_b32 {sT2}, {sM}, 2', f's_add_u32 {sT2}, {sT2}, {sW}',
                     f's_lshl_b32 {sO1}, {sT2}, 9', f's_add_u32 {sO1}, {sO1}, {sOBASE}',
                     f's_lshl_b32 {sO2}, {sT2}, 7', f's_add_u32 {sO2}, {sO2}, {sOBASE}', f's_add_u32 {sO2}, {sO2}, 16384',
                     f's_mul_i32 {sH1}, {sT2}, 1536', f's_add_u32 {sH1}, {sH1}, {sH1BASE}',
                     f's_add_u32 {sNEED}, {sW1h}, 1',
                     f's_mul_i32 {sA}, {sW}, 20480', f's_add_u32 {sA}, {sA}, {sOBASE}',
                     f's_mul_i32 {sSTG}, {sW}, {STW}', f's_add_u32 {sSTG}, {sSTG}, {STG}',
                     f's_mul_i32 {sG}, {sW}, 12288', f's_add_u32 {sG}, {sG}, {sH1BASE}',
                     f's_mul_i32 {sT5}, {sW}, {16*1280}', f's_add_u32 {sT5}, {sT5}, {sXT[1]}', f's_mul_i32 {sT4}, {sM}, 160', f's_add_u32 {sT5}, {sT5}, {sT4}',
                     f'v_lshrrev_b32 {v(vBA)}, 2, v16', f'v_lshl_add_u32 {v(vBA)}, {v(vBA)}, 4, v16', f'v_lshlrev_b32 {v(vBA)}, 2, {v(vBA)}',
                     f'v_add_lshl_u32 {v(vBB)}, v16, 48, 2',
                     f'v_mov_b32 v221, 1.0', f'v_mov_b32 v222, {f2u(sc):#x}', 'v_mov_b32 v223, 0', None,
                     'v_mov_b32_dpp v221, v222 quad_perm:[0,1,2,3] row_mask:0x1 bank_mask:0xf', None,
                     'v_mov_b32_dpp v221, v223 quad_perm:[0,1,2,3] row_mask:0x8 bank_mask:0xf',
                     'v_mul_u32_u24 v13, 1280, v16', 'v_lshl_add_u32 v15, v14, 4, v13', 'v_lshl_add_u32 v13, v14, 3, v13']
        if ks == SC - cfg.get('sd', 2):
            A('v_lshlrev_b32 v17, 2, v0')
            A(f'buffer_load_dword v18, v17, {srd(SDBG)}, 0 offen sc1', tag='dbg')
        if ks == SC:
            assert not late
            A(f's_mov_b32 {sCNT}, 0'); A(f's_mov_b32 {sT2}, 0x80808080')
            P.wait(vm='dbg')
            A('L_dbg:')
            A(f'v_and_b32 v222, {sT2}, v18'); A(f'v_cmp_ne_u32 vcc, {sT2}, v222')
            A('s_cbranch_vccnz L_dbgr')
            P.ool += ['L_dbgr:', f'buffer_load_dword v18, v17, {srd(SDBG)}, 0 offen sc1 ; nocheck',
                      f's_add_u32 {sCNT}, {sCNT}, 1', f's_cmp_gt_u32 {sCNT}, {SPIN}', 's_cbranch_scc1 L_end',
                      's_waitcnt vmcnt(0) ; nocheck', 's_branch L_dbg']
            A(f's_mul_i32 {sT2}, {sXCC}, 0x01010101'); A(f's_lshl_b32 {sT3}, {sRB}, 1')
            A(f'v_cmp_ne_u32 vcc, {sT2}, v18')
            A(f's_lshr_b64 vcc, vcc, {sT3}'); A(f's_and_b32 {sFAST}, vcc_lo, 3')
            if cfg.get('slow'): A(f's_mov_b32 {sFAST}, 1')
            if AL:
                A(f's_cmp_lg_u32 {sFAST}, 0'); A('s_cbranch_scc1 L_sb')
                P.ool += ['L_sb:', f's_add_u32 {sH1}, {sH1}, {H1S - H1B}', f's_add_u32 {sG}, {sG}, {H1S - H1B}']
                if PT == 2:
                    P.ool += [f's_mul_i32 {sT2}, {sRB}, {4*49152 - 4*20480}', f's_add_u32 {sT2}, {sT2}, {H1B - OB}'] + [f's_sub_u32 {x}, {x}, {sT2}' for x in (sO1, sO2, sA)]
                    P.ool += [f's_mul_i32 {sHBASE}, {sRB}, {4*21504}', f's_add_u32 {sHBASE}, {sHBASE}, {HB}']
                P.ool += ['s_branch L_sbj']
                A('L_sbj:')
            stream = [w_item(x) for x in seq]
            assert 20 - LEAD >= SC
            xr = [(f'buffer_load_dwordx4 {v(XR,4)}, v15, {srd(SX)}, {sT5} offen', 'xr'),
                  (f'buffer_load_dwordx4 {v(XR+4,4)}, v15, {srd(SX)}, {sT5} offen offset:64', 'xr'),
                  (f'buffer_load_dwordx2 {v(XR+8,2)}, v13, {srd(SX)}, {sT5} offen offset:128', 'xr')]
            stream.insert(cfg.get('xri', 19), dict(ins=xr, gap=4*GAP))
            if cfg.get('fpt', 1): stream.insert(0, dict(ins=[(f'buffer_load_dword v18, {v(vFS)}, {srd(SWS)}, {sFLOFF} offen sc1', 'pf')], gap=16))
        if ks == 14: assert SC > 14 and not late; fill += rot(sRW1, 15360, sW1S) + rot(sRO, 20480, sWOS)
        if ks == cfg.get('cp2'):
            assert ks > SA; n2 = cfg.get('cn2', 2)
            fill += [lambda: (A('s_getpc_b64 s[36:37]'), A('L_pc2:')), 's_lshr_b32 s38, s2, 3', f's_lshl2_add_u32 s38, s38, {sW}', f's_mul_i32 s38, s38, {n2*128}',
                     'v_lshl_add_u32 v214, v0, 7, s38', 'v_min_u32 v214, L_end-L_pc2, v214']
            plan[ks].append(dict(ex=f'{(1 << n2) - 1:#x}', ins=[('global_load_dword v214, v214, s[36:37]', 'pf')]))
        if ks == 19 - cfg.get('s19', 0): late += rot(sRW2, 5120, sW2S) + rot(sRQ, 4096, sA)
        if ks == 16: late += [f'v_mov_b32 {v(QF+4*(T-1)+2+h)}, 0' for T in range(1, 5) for h in range(2)]
        if ks == 20 - LEAD:
            late += [f's_mul_i32 {sT2}, {sW}, 5120',
               'v_bfe_u32 v3, v0, 1, 2', 'v_xor_b32 v3, v3, v14', 'v_lshlrev_b32 v2, 6, v16', 'v_lshl_add_u32 v2, v3, 4, v2', f'v_add_u32 v2, {sT2}, v2',
               'v_lshrrev_b32 v3, 2, v0', 'v_lshlrev_b32 v3, 6, v3', f'v_add_u32 v3, {sT2}, v3',
               'v_bfe_u32 v5, v0, 3, 2', 'v_and_b32 v4, 3, v0', 'v_xor_b32 v4, v4, v5', 'v_lshl_add_u32 v4, v4, 4, v3',
               'v_xor_b32 v5, 2, v5', 'v_lshl_add_u32 v3, v5, 4, v3',
               'v_and_b32 v5, 1, v14', 'v_mul_u32_u24 v5, 20480, v5', 'v_lshl_add_u32 v6, v16, 3, v5',
               'v_lshrrev_b32 v17, 1, v14', 'v_lshl_add_u32 v5, v17, 8, v5', 'v_lshl_add_u32 v5, v16, 4, v5']
        b = ks & 1
        mf = []
        for T in range(5):
            for F in range(4):
                c = '0' if ks == 0 else v(acc(F, T), 4)
                mf.append(f'{MF} {v(acc(F,T),4)}, {v(FA[b]+4*F,4)}, {v(FB[b]+4*T,4)}, {c}')
            c = '0' if ks == 0 else v(GR + 4*T, 4)
            mf.append(f'{MF} {v(GR+4*T,4)}, {v(FB[b]+4*T,4)}, {v(FB[b]+4*T,4)}, {c}')
        if ks == 19 and cfg.get('s19', 0): mf = [mf[i] for i in [4, 3, 9, 8, 14, 13, 19, 18, 24, 23] + [i for i in range(25) if i % 5 < 3]]
        items = plan[ks]
        if ks >= SC:
            nx = cfg.get('wn', {}).get(ks, 0 if ks < 20 - LEAD else 6)
            i = 0
            while nx and i < len(stream):
                if stream[i].get('avail', -1) <= ks: items.append(stream.pop(i)); nx -= 1
                else: i += 1
        nl = min(len(late), cfg.get('nl', 12) if ks < 18 else 99)
        fill += late[:nl]; late = late[nl:]
        if ks == 19 and cfg.get('s19', 0): nf = len(stats); fill += stats
        g0 = (len(fill) + 1) // 2
        allx = all(it.get('ex', '-1') == '-1' for it in items)
        if allx: g0 = 0
        g0 = min(g0, 24 - len(items))
        pos = [g0 + 1 + (i * (24 - g0)) // len(items) for i in range(len(items))]
        P.bg = list(items)
        for i, m in enumerate(mf):
            A(m)
            if i == g0 and not allx:
                while fill: emit(fill.pop(0))
                P.unlock()
            n = 2
            if ks == 19 and cfg.get('s19', 0):
                if i not in pos: P.pre(1)
                else: assert tick(force=True); pos.remove(i)
                while fill and P.room() >= 4 and (len(fill) > nf or i >= 2): emit(fill.pop(0))
                continue
            while i in pos:
                assert tick(force=True); pos.remove(i); n = 0
            if n and (i + 1 in pos or i + 2 in pos) and (allx or i >= g0): n -= P.pre(2)
            for _ in range(n):
                if fill: emit(fill.pop(0))
        assert not P.bg
        P.lock()
        if ks == 19 and cfg.get('s19', 0): assert len(fill) <= nf and allx; stats = fill; fill = []
        for s in fill: emit(s)
    assert not late
    P.bg = stream
    P.step = 100

    stamp('gemm_end')
    P.busy(0, True)
    P.scale = cfg.get('ascale', 1.1); P.slack = cfg.get('aslack', 100)
    AT(*stats)
    def U(T):
        L = []
        for F in ((3, 2, 1) if T == 0 else (3, 2, 1, 0)):
            nm, s1 = pk_bc(NM[T])
            rs, s2 = pk_bc({0: RQ, 1: RS, 2: RS, 3: RX}[F][T])
            ac = acc(F, T)
            for h in range(2):
                L.append(f'v_pk_fma_f32 {v(ac+2*h,2)}, {v(CS+4*F+2*h,2)}, {nm}, {v(ac+2*h,2)} op_sel:[0,{s1},0] op_sel_hi:[1,{s1},1]')
            for h in range(2):
                L.append(f'v_pk_mul_f32 {v(ac+2*h,2)}, {v(ac+2*h,2)}, {rs} op_sel:[0,{s2}] op_sel_hi:[1,{s2}]')
            dst = {1: KXV + 6*T, 3: KXV + 6*T + 2, 2: KXV + 6*T + 4, 0: QF + 4*(T-1)}[F]
            for h in range(2): L.append(f'v_cvt_pk_bf16_f32 {v(dst+h)}, {v(ac+2*h)}, {v(ac+2*h+1)}')
            if F == 2: L.append((f'ds_write_b128 v2, {v(KXV+6*T+2,4)} offset:{T*1024}', 'vw'))
            if F == 1:
                L.append((f'ds_read_b64_tr_b16 {v(VT0+2*T,2)}, v4 offset:{T*1024+8}', f'vt{T}'))
                L.append((f'ds_read_b64_tr_b16 {v(VT1+2*T,2)}, v3 offset:{T*1024}', f'vt{T}'))
        if T:
            for h in range(2): L.append(f'v_permlane16_swap_b32 {v(QF+4*(T-1)+2+h)}, {v(KXV+6*T+2+h)}')
        return L
    SFL = cfg.get('sfl', 'sc1')
    def dual(L, plain, sf=sFAST):
        if plain:
            l1, l2 = P.lab('L_ds'), P.lab('L_dj')
            alt = [x[0] + ' sc1 ; nocheck' if isinstance(x, tuple) else x for x in L] + [f's_branch {l2}']
            A(f's_cmp_lg_u32 {sf}, 0')
            if sf != sFAST and cfg.get('inl2', 0): A(f's_cbranch_scc0 {l1}'); P.L += alt + [f'{l1}:']
            else: A(f's_cbranch_scc1 {l1}'); P.ool += [f'{l1}:'] + alt
        for x in L:
            if isinstance(x, tuple): A(x[0] + (cfg.get('pfl', '') if plain else ' ' + SFL), tag=x[1])
            else: A(x)
        if plain: A(f'{l2}:')
    def Spair(p):
        SS, MX, PF, O0, O1, SM, OP, OL = [(92, 108, 112, 120, 128, 172, 180, 184), (140, 156, 160, 20, 28, 36, 44, 48)][p]
        L = []; I = (0, 1)
        for i in I:
            t = 2*p + i
            L += [f'{MF} {v(SS+8*i,4)}, {v(KXV+6*t,4)}, {v(QF+4*t,4)}, {v(BP1 if t == 0 else BP,4)}',
                  f'{MF} {v(SS+8*i+4,4)}, {v(KXV+6*(t+1),4)}, {v(QF+4*t,4)}, {v(BC,4)}']
        L += [None]*7
        for i in I: L += [f'v_max3_f32 {v(MX+2*i)}, {v(SS+8*i)}, {v(SS+8*i+1)}, {v(SS+8*i+2)}', f'v_max3_f32 {v(MX+2*i+1)}, {v(SS+8*i+3)}, {v(SS+8*i+4)}, {v(SS+8*i+5)}']
        for i in I: L.append(f'v_max3_f32 {v(MX+2*i)}, {v(MX+2*i)}, {v(SS+8*i+6)}, {v(SS+8*i+7)}')
        for i in I: L.append(f'v_max_f32 {v(MX+2*i)}, {v(MX+2*i)}, {v(MX+2*i+1)}')
        for sw in ('v_permlane16_swap_b32', 'v_permlane32_swap_b32'):
            for i in I: L.append(f'v_mov_b32 {v(MX+2*i+1)}, {v(MX+2*i)}')
            L.append(None)
            for i in I: L.append(f'{sw} {v(MX+2*i)}, {v(MX+2*i+1)}')
            for i in I: L.append(f'v_max_f32 {v(MX+2*i)}, {v(MX+2*i)}, {v(MX+2*i+1)}')
        for i in I:
            s = SS + 8*i
            for h in range(4): L.append(f'v_pk_add_f32 {v(s+2*h,2)}, {v(s+2*h,2)}, {v(MX+2*i,2)} op_sel:[0,0] op_sel_hi:[1,0] neg_lo:[0,1] neg_hi:[0,1]')
            for h in range(8): L.append(f'v_exp_f32 {v(s+h)}, {v(s+h)}')
            for h in range(4): L.append(f'v_cvt_pk_bf16_f32 {v(PF+4*i+h)}, {v(s+2*h)}, {v(s+2*h+1)}')
            if i == 0: L.append(lambda: P.wait(lg=[f'vt{2*p+x}' for x in range(3)]))
            mm = [f'{MF} {v(SM+4*i,4)}, {v(ONES,4)}, {v(PF+4*i,4)}, 0', f'{MF} {v(O0+4*i,4)}, {v(VT0+2*(2*p+i),4)}, {v(PF+4*i,4)}, 0',
                  f'{MF} {v(O1+4*i,4)}, {v(VT1+2*(2*p+i),4)}, {v(PF+4*i,4)}, 0']
            if i == 0: hold = mm
            else:
                k = len(L) - 14
                for j, m in enumerate(hold): L.insert(k + 3*j, m)
                L += [None, None] + mm
        def fin(i):
            R = [f'v_rcp_f32 {v(SM+4*i)}, {v(SM+4*i)}', None]
            for h in range(2): R.append(f'v_pk_mul_f32 {v(O0+4*i+2*h,2)}, {v(O0+4*i+2*h,2)}, {v(SM+4*i,2)} op_sel:[0,0] op_sel_hi:[1,0]')
            for h in range(2): R.append(f'v_pk_mul_f32 {v(O1+4*i+2*h,2)}, {v(O1+4*i+2*h,2)}, {v(SM+4*i,2)} op_sel:[0,0] op_sel_hi:[1,0]')
            for h in range(2): R.append(f'v_cvt_pk_bf16_f32 {v(OP+2*i+h)}, {v(O0+4*i+2*h)}, {v(O0+4*i+2*h+1)}')
            for h in range(2): R.append(f'v_cvt_pk_bf16_f32 {v(OL+2*i+h)}, {v(O1+4*i+2*h)}, {v(O1+4*i+2*h+1)}')
            return R
        L += fin(0) + fin(1)
        for h in range(2): L.append(f'v_permlane16_swap_b32 {v(OP+h)}, {v(OP+2+h)}')
        for h in range(2): L.append(f'v_mov_b32_dpp {v(OL+h)}, {v(OL+2+h)} quad_perm:[0,1,2,3] row_mask:0x2 bank_mask:0xf')
        def pub():
            if p: A(f's_add_u32 {sO1}, {sO1}, 40960'); A(f's_add_u32 {sO2}, {sO2}, 40960')
            dual([(f'buffer_store_dwordx4 {v(OP,4)}, v5, {srd(SWS)}, {sO1} offen', f'opub{p}'), 's_mov_b32 exec_hi, 0',
                  (f'buffer_store_dwordx2 {v(OL,2)}, v6, {srd(SWS)}, {sO2} offen', f'opub{p}')], cfg.get('plo', 0))
            A('s_mov_b32 exec_hi, -1')
            P.busy(160 if cfg.get('plo', 0) else 320)
        L.append(pub)
        return L
    def run(main, fill, quiet=0):
        for n, x in enumerate(main):
            if x is None:
                if fill: emit(fill.pop(0))
            else: emit(x)
            if n < len(main) - quiet: tick()
    def setflag(val, tag, cls=None):
        l1, l2 = P.lab('L_sl'), P.lab('L_j')
        if cls is not None:
            A(f's_cmp_lg_u32 {sW1h}, {cls}'); A(f's_cbranch_scc1 {l2}')
            A(f'v_mov_b32 {v(vFV)}, {val}')
            sv = (list(P.vm), list(P.vt)); P.wait(vm=tag); P.L[-1] += ' ; nocheck'; P.vm, P.vt = sv
            A('s_mov_b64 exec, 1')
            A(f's_cmp_lg_u32 {sFAST}, 0'); A(f's_cbranch_scc1 {l1}')
            P.track = False
            A(f'buffer_store_dword {v(vFV)}, {v(vFS)}, {srd(SWS)}, {sFLOFF} offen ; nocheck')
            P.track = True
            P.ool += [f'{l1}:', f'buffer_store_dword {v(vFV)}, {v(vFS)}, {srd(SWS)}, {sFLOFF} offen sc1 ; nocheck', f's_branch {l2}']
            A(f'{l2}:')
            A('s_mov_b64 exec, -1')
            return
        A(f'v_mov_b32 {v(vFV)}, {val}')
        P.wait(vm=tag)
        A('s_mov_b64 exec, 1')
        A(f's_cmp_lg_u32 {sFAST}, 0'); A(f's_cbranch_scc1 {l1}')
        A(f'buffer_store_dword {v(vFV)}, {v(vFS)}, {srd(SWS)}, {sFLOFF} offen')
        P.ool += [f'{l1}:', f'buffer_store_dword {v(vFV)}, {v(vFS)}, {srd(SWS)}, {sFLOFF} offen sc1 ; nocheck', f's_branch {l2}']
        A(f'{l2}:')
        A('s_mov_b64 exec, -1')
    vPT = 10
    def poll_issue(vaddr, off=0):
        A(f'buffer_load_dword {v(vPT)}, {v(vaddr)}, {srd(SWS)}, {sFLOFF} offen offset:{off} sc1', tag='poll')
    def poll_check(vaddr, val, off=0, inl=0):
        l1, l2 = P.lab('L_poll'), P.lab('L_ok')
        P.wait(vm='poll')
        A(f'{l1}:')
        A(f'v_cmp_gt_u32 vcc, {val}, {v(vPT)}')
        if inl:
            A(f's_cbranch_vccz {l2}')
            P.track = False
            A(f'buffer_load_dword {v(vPT)}, {v(vaddr)}, {srd(SWS)}, {sFLOFF} offen offset:{off} sc1 ; nocheck')
            A(f's_add_u32 {sCNT}, {sCNT}, 1'); A(f's_cmp_gt_u32 {sCNT}, {SPIN}'); A('s_cbranch_scc1 L_end')
            A('s_waitcnt vmcnt(0) ; nocheck'); A(f's_branch {l1}')
            P.track = True
            A(f'{l2}:')
            return
        A(f's_cbranch_vccnz {l2}')
        P.ool += [f'{l2}:', f'buffer_load_dword {v(vPT)}, {v(vaddr)}, {srd(SWS)}, {sFLOFF} offen offset:{off} sc1 ; nocheck',
                  f's_add_u32 {sCNT}, {sCNT}, 1', f's_cmp_gt_u32 {sCNT}, {SPIN}', 's_cbranch_scc1 L_end',
                  's_waitcnt vmcnt(0) ; nocheck', f's_branch {l1}']

    def spoll(n, mask, off=0):
        l1, l2 = P.lab('L_sp'), P.lab('L_sok')
        if off: A(f's_add_u32 {sT2}, {sFLOFF}, {off}')
        A(f'{l1}:')
        A(f's_load_dwordx{n} s[4:{3+n}], s[{SWS}:{SWS+1}], {sT2 if off else sFLOFF} glc')
        A(f's_add_u32 {sCNT}, {sCNT}, 1'); A(f's_cmp_gt_u32 {sCNT}, {SPIN}'); A('s_cbranch_scc1 L_end')
        P.wait(lg=0)
        if n == 8: A('s_and_b64 s[4:5], s[4:5], s[8:9]'); A('s_and_b64 s[6:7], s[6:7], s[10:11]')
        A('s_and_b64 s[4:5], s[4:5], s[6:7]'); A('s_and_b32 s4, s4, s5')
        A(f's_andn2_b32 s4, {mask}, s4')
        A(f's_cbranch_scc1 {l1}')
    BF = 92; AC2 = 172; AR = 20; NAR = 18
    CS1 = 28; CST = 228; FX = cfg.get('fx', 0)
    cq = [[15*q + i for _, i, q in s1 if i % 3 == j] for j in range(3)]
    cso = [cq[n % 3][n // 3] for n in range(60)]
    cs_next = [0]; cfill = []
    def colsum(n, age=None):
        for _ in range(n):
            c = cs_next[0]
            if c >= 60: P.step = max(P.step, 330); return
            f = cso[c]; j = c % 3
            if age is not None and (P.pending(f'w1_{f}') or P.age(f'w1_{f}') < age): return
            assert c < 57 or P.step >= 300
            P.drain(f'w1_{f}')
            P.wait(vm=f'w1_{f}')
            ab = f'{v(ONES,4)}, {w1reg(f)}' if FX else f'{w1reg(f)}, {v(ONES,4)}'
            A(f'{MF} {v((CS1 if c >= 57 else CST)+4*j,4)}, {ab}, {v(CST+4*j,4) if c >= 3 else "0"}')
            if not tick():
                for _ in range(3):
                    if cfill and P.room() >= 4: emit(cfill.pop(0))
            cs_next[0] += 1
    vPA = 7; vL8 = 8; vLB = [1, 3, 4]
    stamp('a_st', 3)
    AT(*U(0), *U(1), *U(2))
    stamp('a_u', 3)
    f34 = U(3) + U(4)
    run(Spair(0), f34, cfg.get('q0', 0))
    stamp('pub0')
    AT(*f34)
    xun = [f'v_and_b32 {v(vPA)}, 31, v0', f'v_lshlrev_b32 {v(vPA)}, 2, {v(vPA)}', f'v_lshlrev_b32 {v(vL8)}, 3, v0',
           lambda: (P.drain('xr'), P.wait(vm='xr'))]
    for j in range(5):
        for r in range(4):
            src = XR + (4*(j >> 1) + 2*(j & 1) + (r >> 1) if j < 4 else 8 + (r >> 1))
            xun.append(f'v_and_b32 {v(AC2+4*j+r)}, 0xffff0000, {v(src)}' if r & 1 else f'v_lshlrev_b32 {v(AC2+4*j+r)}, 16, {v(src)}')
    P.drain('wo')
    sp1 = Spair(1)
    if cfg.get('fl1', 20) and not SYM: sp1.insert(len(sp1) - cfg.get('fl1', 20), lambda: setflag(1, 'opub0'))
    run(sp1, xun, cfg.get('q1', 0))
    stamp('attn_end')
    P.step = 150
    P.scale = cfg.get('hscale', 1.0)
    flush(cfg.get('f1', 4))
    for x in xun: emit(x)
    A(f'v_add_u32 v3, 65536, v1'); A(f'v_add_u32 v4, 131072, v1')
    if cfg.get('fl1', 20): P.wait(vm='wo')
    else: setflag(1, ['opub0', 'wo'])
    stamp('flag1')
    A('s_barrier')
    def wo_read(f):
        loc = wo_loc(f)
        return f'ds_read_b128 {v(AR+4*(f%NAR),4)}, {v(vLB[loc>>16])} offset:{loc & 0xffff}'
    flush(cfg.get('f2', 6))
    for f in range(15): A(wo_read(f), tag=f'a{f//5}')
    if not SYM: poll_issue(vPA)
    flush(cfg.get('f2b', 6))
    colsum(cfg.get('c0', 30), cfg.get('ca', 300))
    setflag(2, 'opub1')
    stamp('flag2')
    flush(cfg.get('f2c', 0))
    colsum(cfg.get('c0b', 0), cfg.get('ca', 300))
    if SYM:
        poll_issue(vPA); flush(cfg.get('f2d', 0)); colsum(cfg.get('c0c', 0), cfg.get('ca', 300))
    poll_check(vPA, 2 if SYM else sNEED, inl=cfg.get('inl', 1))
    stamp('poll1')
    oit = [dict(gap=GAP, ins=[(f'buffer_load_dwordx4 {v(BF + 4*k, 4)}, {v(vL16)}, {srd(SWS)}, {sRQ[k // 4]} offen offset:{(k % 4)*1024} sc1', f'o{k}')]) for k in range(16)]
    for k in range(16, 20):
        oit.append(dict(st=[(sC, f's_add_u32 {sC}, {sA}, 16384')], gap=GAP,
                        ins=[(f'buffer_load_dwordx2 {v(BF+4*k+2*e,2)}, {v(vL8)}, {srd(SWS)}, {sC} offen offset:{(k-16)*1024 + 512*e} sc1', f'o{k}') for e in range(2)]))
    B1F = 40; AC3 = [52, 64]; BR = 76; NBR = 6
    P.bg = oit + P.bg
    flush(cfg.get('f3', 12))
    colsum(cfg.get('c0d', 0), cfg.get('ca', 300))
    P.scale = cfg.get('pscale', 1.0)
    vHS, vT8, vST, vPH = 6, 5, 9, 2
    pend = [f'v_lshrrev_b32 {v(vHS)}, 5, v0', f'v_lshlrev_b32 {v(vHS)}, 8, {v(vHS)}', f'v_lshl_add_u32 {v(vHS)}, v16, 4, {v(vHS)}',
            f'v_lshlrev_b32 {v(vT8)}, 3, v16', f'v_mov_b32 {v(vPH)}, {v(vPA)}' if SYM else f'v_lshlrev_b32 {v(vPH)}, 2, v16',
            f's_mul_i32 {sT2}, {sW}, 21504', f's_add_u32 {sT2}, {sT2}, {sHBASE}',
            f's_mul_i32 {sT3}, {sM}, 2560', f's_add_u32 {sT3}, {sT3}, {sT2}',
            f's_lshl_b32 {sT4}, {sM}, 7', f's_add_u32 {sT4}, {sT4}, {sT2}', f's_add_u32 {sT4}, {sT4}, 20480',
            *(['v_lshlrev_b32 v15, 16, v14', 'v_lshl_add_u32 v15, v16, 1, v15', 'v_and_b32 v13, 12, v16', 'v_lshl_add_u32 v13, v13, 1, v15'] if FX else
              ['v_lshlrev_b32 v13, 4, v14', 'v_lshlrev_b32 v15, 3, v14']),
            f's_mul_i32 {sB}, {sM}, 384', f's_mul_i32 {sD}, {sW}, 96', f's_add_u32 {sB}, {sB}, {sD}',
            f's_mul_i32 {sHL}, {sW}, 5120', f's_lshr_b32 {sD}, s2, 6' if cfg.get('rot', 1) else f's_mov_b32 {sD}, 0',
            f's_add_u32 {sD}, {sD}, {sW}', f's_and_b32 {sD}, {sD}, 3', f's_mul_i32 {sD}, {sD}, 5120', f's_add_u32 {sD}, {sD}, {sHBASE}',
            *([f's_mul_i32 {sHS}, {sW}, 21504'] if SYM else [f's_mul_i32 {sHS}, {sW0}, 21504', f's_lshl_b32 {sT5}, {sW1h}, 9', f's_add_u32 {sHS}, {sHS}, {sT5}']),
            f's_add_u32 {sHS}, {sHS}, 20480']
    for x in pend: emit(x)
    for k in range(20):
        P.step = 200 + k
        P.drain(f'o{k}')
        for j in range(5):
            f = 5*k + j
            if j == 0: P.wait(vm=f'o{k}', lg=f'a{k}')
            A(f'{MF} {v(AC2+4*j,4)}, {v(AR+4*(f%NAR),4)}, {v(BF+4*k,4)}, {v(AC2+4*j,4)}')
            if f + 15 < 100: A(wo_read(f + 15), tag=f'a{(f+15)//5}')
            if k < cfg.get('quiet2', 20): tick()
    P.step = 300
    stamp('p2_mfma')
    HP = XR
    for j in range(5):
        for h in range(2): A(f'v_cvt_pk_bf16_f32 {v(HP+2*j+h)}, {v(AC2+4*j+2*h)}, {v(AC2+4*j+2*h+1)}')
        if j == 1: dual([(f'buffer_store_dwordx4 {v(HP,4)}, {v(vL16)}, {srd(SWS)}, {sT3} offen', 'hpub')], cfg.get('plh', 0))
        if j == 3: dual([(f'buffer_store_dwordx4 {v(HP+4,4)}, {v(vL16)}, {srd(SWS)}, {sT3} offen offset:1024', 'hpub')], cfg.get('plh', 0))
    for h in range(2): A(f'v_mov_b32 {v(24+h)}, {v(HP+8+h)}')
    for i in range(10):
        A(f'v_dot2_f32_bf16 v20, {v(HP+i)}, {v(ONES)}, {"v20" if i else 0}'); A(f'v_dot2_f32_bf16 v21, {v(HP+i)}, {v(HP+i)}, {"v21" if i else 0}')
        if i == 0:
            for h in range(2): A(f'v_permlane16_swap_b32 {v(24+h)}, {v(26+h)}')
            A(f's_mov_b64 exec, {sEVN}')
            dual([(f'buffer_store_dwordx4 v[24:27], {v(vHS)}, {srd(SWS)}, {sT3} offen offset:2048', 'hpub')], cfg.get('plh', 0))
            A('s_mov_b64 exec, -1')
    for sw in ('v_permlane16_swap_b32', 'v_permlane32_swap_b32'):
        for h in range(2): A(f'v_mov_b32 {v(22+h)}, {v(20+h)}')
        for h in range(2): A(f'{sw} {v(20+h)}, {v(22+h)}')
        A('v_pk_add_f32 v[20:21], v[20:21], v[22:23]')
    A('s_mov_b64 exec, 0xffff')
    dual([(f'buffer_store_dwordx2 v[20:21], {v(vT8)}, {srd(SWS)}, {sT4} offen', 'hpub')], cfg.get('plh', 0))
    A('s_mov_b64 exec, -1')
    P.busy(cfg.get('hb', 500), True)
    P.scale = cfg.get('hscale', 1.0)
    stamp('hpub', 2)

    if FX: P.bg.insert(0, dict(ins=[(f'buffer_load_ushort {v(AC3[1]+j)}, {("v13", "v13", "v15")[j]}, {srd(SB1)}, {sB} offen offset:{(0, 8, 64)[j]}', 'b1') for j in range(3)], gap=32))
    else: P.bg.insert(0, dict(ins=[(f'buffer_load_dwordx4 {v(AC3[1],4)}, v13, {srd(SB1)}, {sB} offen', 'b1'),
                       (f'buffer_load_dwordx2 {v(AC3[1]+4,2)}, v15, {srd(SB1)}, {sB} offen offset:64', 'b1')], gap=32))
    P.step = 310
    vP4a, vRW, vRW4, vRR, vHR, vOUT, vSG = 11, 12, 13, 15, 17, 18, 14
    cfill += ['v_mul_u32_u24 v3, 192, v14', 'v_and_b32 v3, 192, v3', 'v_xor_b32 v3, v3, v1', 'v_add_u32 v4, 65536, v3',
              f'v_and_b32 {v(vST)}, 1, v14', f'v_mul_u32_u24 {v(vST)}, 21504, {v(vST)}', f'v_lshrrev_b32 v7, 1, v14',
              f'v_lshl_add_u32 {v(vST)}, v7, 9, {v(vST)}', f'v_add_u32 {v(vST)}, {v(vST)}, {v(vT8)}', f'v_add_u32 {v(vST)}, 20480, {v(vST)}']
    for x in [f'v_and_b32 {v(vP4a)}, 31, v0', f'v_lshlrev_b32 {v(vP4a)}, 2, {v(vP4a)}',
              f'v_mul_u32_u24 {v(vRW)}, {PIT}, v16', f'v_add_u32 {v(vRW)}, {sSTG}, {v(vRW)}',
              f'v_and_b32 v7, 1, v14', f'v_mul_u32_u24 v7, 152, v7', f'v_lshl_add_u32 v7, v14, 3, v7', f'v_add_u32 {v(vRW4)}, v7, {v(vRW)}',
              f'v_lshl_add_u32 {v(vRW)}, v14, 4, {v(vRW)}',
              f's_lshl_b32 {sT2}, {sW}, 2', f'v_add_u32 v7, {sT2}, v14',
              *(['v_lshlrev_b32 v51, 2, v7'] if FX else []),
              f'v_mul_u32_u24 {v(vRR)}, {PIT}, v7', f'v_lshl_add_u32 {v(vRR)}, v16, 4, {v(vRR)}', f'v_add_u32 {v(vRR)}, {STG}, {v(vRR)}',
              f's_mul_i32 {sT2}, {sM}, 10', f'v_add_u32 v8, {sT2}, v16', f'v_mul_u32_u24 {v(vHR)}, 12, v8', f'v_and_b32 {v(vHR)}, 12, {v(vHR)}',
              f'v_xor_b32 {v(vHR)}, {v(vHR)}, v7', f'v_lshlrev_b32 {v(vHR)}, 4, {v(vHR)}', f'v_lshl_add_u32 {v(vHR)}, v8, 8, {v(vHR)}',
              *rot(sRQ, 1024, sG), f's_mul_i32 {sT3}, {sT3}, 5120', f'v_subrev_u32 {v(vHR)}, {sT3}, {v(vHR)}', f'v_add_u32 v8, 20480, {v(vHR)}', f'v_min_u32 {v(vHR)}, {v(vHR)}, v8',
              f'v_mul_u32_u24 {v(vOUT)}, 1280, v7', f'v_lshlrev_b32 v7, 4, v16', f'v_add_u32 {v(vOUT)}, {v(vOUT)}, v7',
              f's_mul_i32 {sT5}, {sM}, 160', f's_add_u32 {sXT[1]}, {sXT[1]}, {sT5}',
              f'v_add_u32 {v(vSG)}, {sSTG}, v1',
              f's_lshl_b32 {sT2}, {sM}, 2', f's_add_u32 {sT2}, {sT2}, {sW}', lambda: (A(f's_cmp_ge_u32 {sT2}, 21'), A(f's_cselect_b32 s90, 1, {sFAST}')),
              lambda: (A(f's_cmp_ge_u32 {sT2}, 24'), A(f's_cselect_b32 s91, 1, {sFAST}'))]: cfill.append(x)
    NCF = len(cfill)
    flush(cfg.get('f6', 4)); assert not P.pending('b1')
    colsum(cfg.get('c1', 40))
    if cfg.get('pe', 1) and not SPL: poll_issue(vPH)
    colsum(cfg.get('c1b', 10))
    setflag(3, 'hpub', 0 if cfg.get('pe', 1) == 2 else None)
    stamp('flag3')
    if cfg.get('sgb', 0): A('s_barrier')
    if not cfg.get('pe', 1):
        flush(cfg.get('f7', 4))
        colsum(cfg.get('c2', 10))
        if not SPL: poll_issue(vPH)
    flush(cfg.get('f8', 0))
    colsum(cfg.get('c3', 0))
    while len(cfill) > NCF - 10: emit(cfill.pop(0))
    if SPL: spoll(4, '0x04040404')
    else: poll_check(vPH, 3, inl=cfg.get('inl', 1))
    stamp('poll2')
    def h_items(p):
        L = []
        for T in (2*p, 2*p + 1):
            for i in range(5):
                i0 = 4 if i == 4 else 0
                L.append(dict(st=[('m0', f's_add_u32 m0, {sHL}, {T*21504 + i0*1024}'), (sC, f's_add_u32 {sC}, {sD}, {T*21504 + i0*1024}')], gap=GAP,
                              ins=[(f'buffer_load_dwordx4 v3, {srd(SWS)}, {sC} offen offset:{(i%4)*1024} sc1 lds', f'h{T}')]))
        if SYM:
            if p == 0: L.insert(5, dict(st=[('m0', f's_mov_b32 m0, {sHS}'), (sC, f's_add_u32 {sC}, {sHBASE}, {sHS}')], gap=GAP,
                                        ins=[(f'buffer_load_dwordx4 {v(vL16)}, {srd(SWS)}, {sC} offen sc1 lds', 'h0')]))
            return L
        L.insert(5, dict(st=[('m0', f's_add_u32 m0, {sHS}, {p*43008}'), (sC, f's_add_u32 {sC}, {sHBASE}, m0')], gap=GAP // 2,
                         ins=['s_mov_b32 exec_hi, 0', (f'buffer_load_dwordx4 {v(vL16)}, {srd(SWS)}, {sC} offen sc1 lds', f'h{2*p}'), 's_mov_b32 exec_hi, -1']))
        return L
    hx = cfg.get('hx', 0)
    P.bg = h_items(0) + P.bg[:hx] + (h_items(1) if SYM else []) + P.bg[hx:]
    flush(cfg.get('f4', 11))
    if cfg.get('pe', 1) == 2: setflag(3, 'hpub', 1); flush(cfg.get('f5', 0))
    colsum(61)
    flush(cfg.get('f9', 0))
    def h_read(n):
        loc = (n // 20)*21504 + (n % 20)*1024
        return f'ds_read_b128 {v(BR+4*(n%NBR),4)}, {v(3 + (loc>>16))} offset:{loc & 0xffff}'
    NMR = [(252, 253), (240, 241), (242, 243), (2, 5) if SYM else (252, 253)]
    if FX: NMR = [(40 + 2*T, 41 + 2*T) for T in range(4)]
    RS = [252, 253, 0, 16]; vBP = 51
    def stats3(p, R):
        L = []
        if p: L.append(f'v_add_u32 {v(vST)}, 43008, {v(vST)}')
        for i in range(2): L.append((f'ds_read2_b64 {v(R+4*i,4)}, {v(vST)} offset0:{32*i} offset1:{32*i+16}', 'st'))
        L.append(('Z', 6))
        L.append(lambda: P.wait(lg='st'))
        for i in range(4): L.append(f'v_add_f32 {v(R+i)}, {v(R+i)}, {v(R+4+i)}')
        for i in range(2): L.append(f'v_add_f32 {v(R+4+i)}, {v(R+i)}, {v(R+2+i)}')
        for i in range(2): L.append(f'v_add_f32 {v(R+i)}, {v(R+i)}, {v(R+2+i)}')
        L.append(None)
        for i in range(2): L.append(f'v_permlane32_swap_b32 {v(R+i)}, {v(R+4+i)}')
        for i in range(2): L.append(f'v_add_f32 {v(R+i)}, {v(R+i)}, {v(R+4+i)}')
        X, Y = NMR[2*p], NMR[2*p + 1]
        n, r = v(X[0]), v(X[1])
        if FX:
            n2, r2, q2, h2 = v(R+2), v(R+3), v(R+4), v(R+5)
            L += [f'v_mul_f32 {n2}, {f2u(-1.0/640):#x}, {v(R)}', f'v_mul_f32 {r2}, {f2u(1.0/640):#x}, {v(R+1)}', f'v_fma_f32 {r2}, -{n2}, {n2}, {r2}',
                  f'v_max_f32 {r2}, 0, {r2}', f'v_add_f32 {r2}, {f2u(1e-5):#x}, {r2}', f'v_sqrt_f32 {q2}, {r2}',
                  f'v_and_b32 {h2}, 0xffff0000, {n2}', f'v_sub_f32 {n2}, {n2}, {h2}', f'v_cvt_pk_bf16_f32 {n}, {h2}, {n2}', f'v_cvt_pk_bf16_f32 {v(Y[0])}, {h2}, {n2}',
                  f'v_and_b32 {h2}, 0xffff0000, {q2}', f'v_sub_f32 {q2}, {q2}, {h2}', f'v_cvt_pk_bf16_f32 {r}, {h2}, {q2}', f'v_cvt_pk_bf16_f32 {v(Y[1])}, {h2}, {q2}',
                  f'v_rcp_f32 {v(RS[2*p+1])}, {r2}',
                  f'v_permlane16_swap_b32 {n}, {v(Y[0])}', f'v_permlane16_swap_b32 {r}, {v(Y[1])}', ('M', f's{p}')]
            return L
        L += [f'v_mul_f32 {n}, {f2u(-1.0/640):#x}, {v(R)}', f'v_mul_f32 {r}, {f2u(1.0/640):#x}, {v(R+1)}', f'v_fma_f32 {r}, -{n}, {n}, {r}',
              f'v_max_f32 {r}, 0, {r}', f'v_add_f32 {r}, {f2u(1e-5):#x}, {r}', f'v_rsq_f32 {r}, {r}',
              f'v_mov_b32 {v(Y[0])}, {n}', f'v_mov_b32 {v(Y[1])}, {r}', None,
              f'v_permlane16_swap_b32 {n}, {v(Y[0])}', f'v_permlane16_swap_b32 {r}, {v(Y[1])}']
        return L
    def epi3(T):
        ac = AC3[T & 1]; L = []; nm, rs = v(NMR[T][0]), v(NMR[T][1])
        O = (8, 9, 10, 11, 0, 1, 2, 3, 4, 5, 6, 7)
        if not FX:
            for i in range(12): L.append(f'v_fmac_f32 {v(ac+i)}, {v(CS1+i)}, {nm}')
            for i in O: L.append(f'v_fma_f32 {v(ac+i)}, {v(ac+i)}, {rs}, {v(B1F+i)}')
        for i in O: L.append(f'v_mul_f32 {v(ac+i)}, {v(ac+i)}, |{v(ac+i)}|')
        for i in (4, 5, 0, 1, 2, 3): L.append(f'v_cvt_pk_bf16_f32 {v(20+i)}, {v(ac+2*i)}, {v(ac+2*i+1)}')
        L.append(('M', f'c{T}'))
        for i in (4, 5, 0, 1): L.append(f'v_pk_max_i16 {v(20+i)}, {v(20+i)}, 0')
        for h in range(2): L.append(f'v_permlane16_swap_b32 {v(24+h)}, {v(26+h)}')
        for i in (2, 3): L.append(f'v_pk_max_i16 {v(20+i)}, {v(20+i)}, 0')
        if T: L.append(f's_add_u32 {sH1}, {sH1}, 49152')
        def pub():
            assert not AL or T < 2 or T - 2 in gok
            assert hok
            dual([(f'buffer_store_dwordx4 v[20:23], {v(vL16)}, {srd(SWS)}, {sH1} offen', f'pub{T}'), f's_mov_b64 exec, {sEVN}',
                  (f'buffer_store_dwordx4 v[24:27], {v(vHS)}, {srd(SWS)}, {sH1} offen offset:1024', f'pub{T}')], AL, sFAST if PT or not T & 1 else ['s90', 's91'][T >> 1])
            P.busy(192 if AL else 384); published(T)
        L.append(('B', pub, T))
        return L
    PRE = 4
    su = [lambda: (P.drain('b1'), P.wait(vm='b1'))]
    for j in range(3):
        for r in range(4):
            src = AC3[1] + 2*j + (r >> 1)
            su.append(f'v_and_b32 {v(B1F+4*j+r)}, 0xffff0000, {v(src)}' if r & 1 else f'v_lshlrev_b32 {v(B1F+4*j+r)}, 16, {v(src)}')
    if FX:
        su = ['v_and_b32 v50, 48, v0', 'v_mov_b32 v48, 0', 'v_mov_b32 v49, -1', 'v_ashrrev_i64 v[48:49], v50, v[48:49]', 'v_mov_b32 v50, 0x03020302']
        for j in range(3): su.append(f'v_and_b32 {v(CS1+4*j+1)}, v48, {v(CS1+4*j)}')
        for j in range(3): su.append(f'v_sub_f32 {v(CS1+4*j+1)}, {v(CS1+4*j)}, {v(CS1+4*j+1)}')
        for j in range(3): su.append(f'v_perm_b32 {v(CS1+4*j+2)}, {v(CS1+4*j+1)}, {v(CS1+4*j+1)}, v50')
        su.append(lambda: (P.drain('b1'), P.wait(vm='b1')))
        for j in range(3): su.append(f'v_mul_u32_u24 {v(CS1+4*j+3)}, 0x10001, {v(AC3[1]+j)}')
    bperm = lambda p: [(f'ds_bpermute_b32 {v(RS[2*p+i])}, {v(vBP)}, {v(RS[2*p+1])} offset:{64*i}', f'rs{p}') for i in range(2)] if FX else []
    su.append(('M', 'c-1'))
    P.drain('h0'); P.wait(vm='h0'); A('s_barrier')
    stamp('p3_t0')
    P.busy(0, True); P.slack = cfg.get('cslack', 100); P.scale = cfg.get('cscale', 1.05)
    for n in range(PRE): A(h_read(n), tag=f'b{n}')
    GB = [0, 124, 172, 0]
    def g_items(T):
        av = lambda kk: (400 + 180 + 3*((GB[T] + 4*kk + 3)//12 + 1)) if T < 3 else 400 + 240 + 5*(kk + 1)
        return [dict(st=[(sC, f's_add_u32 {sC}, {sRQ[kk % 4]}, {T*49152 + (kk // 4)*4096}')], avail=av(kk), gap=cfg.get('g4', GAP),
                     ins=[(f'buffer_load_dwordx4 {a(GB[T] + 4*kk, 4)}, {v(vL16)}, {srd(SWS)}, {sC} offen {cfg.get("gfl", "sc1")}', f'g{T}_{kk}')]) for kk in range(12)]
    AC4 = [76, 28]
    B2F = 2; HR = 96; R1 = 48; R2 = [64, 68, 20, 24]
    def red_w(T, j):
        ac = AC4[T & 1]; o = (T & 1) * 16 * PIT
        upto(f'bar{T-1}'); unmask()
        if j < 4: A(f'ds_write_b128 {v(vRW)}, {v(ac+4*j,4)} offset:{o + (j >> 1)*64 + (j & 1)*160}', tag='pw')
        else: A(f'ds_write_b128 {v(vRW4)}, {v(ac+16,4)} offset:{o + 128}', tag='pw')
    HBR = [72, 240]
    def red_h(T):
        L = [(f'ds_read_b128 {v(HR,4)}, {v(vHR)} offset:{T*21504}', 'rh'), ('Z', 6), lambda: P.wait(lg='rh')]
        for r in range(8): L.append(f'v_and_b32 {v(HBR[r>>2]+(r&3))}, 0xffff0000, {v(HR+(r>>1))}' if r & 1 else f'v_lshlrev_b32 {v(HBR[r>>2]+(r&3))}, 16, {v(HR+(r>>1))}')
        for r in range(8): L.append(f'v_add_f32 {v(HBR[r>>2]+(r&3))}, {v(HBR[r>>2]+(r&3))}, {v(B2F+r)}')
        return L
    def red_r(T, gate, mid=None):
        mid = list(mid or [])
        o = (T & 1) * 16 * PIT
        D = [R1, R1 + 4, R1 + 8, R1 + 12] + R2
        L = [('G', gate), lambda: P.wait(lg='pw'), 's_barrier', ('M', f'bar{T}')]
        rd = [(f'ds_read_b128 {v(D[i],4)}, {v(vRR)} offset:{(i >> 1)*STW + o + (i & 1)*160}', f'rr{i >> 1}') for i in range(8)]
        if T < 3 and cfg.get('r1', 0):
            for x in rd: L += [x] + mid[:1] + [None]; del mid[:1]
        else: L += rd
        L += mid
        L.append(('Z', cfg.get('z2', 6)))
        pa = lambda d, s: [f'v_pk_add_f32 {v(d+2*h,2)}, {v(d+2*h,2)}, {v(s+2*h,2)}' for h in range(2)]
        if T < 3: pa = lambda d, s: [f'v_add_f32 {v(d+h)}, {v(d+h)}, {v(s+h)}' for h in range(4)]
        if not FX:
            L.append(lambda: P.wait(lg='rr0'))
            L += pa(D[0], HBR[0]) + pa(D[1], HBR[1])
        for i in range(1, 4):
            L.append(lambda i=i: P.wait(lg=f'rr{i}'))
            L += pa(D[0], D[2*i]) + pa(D[1], D[2*i+1])
        if FX and T < 3: L += [f'v_fma_f32 {v(D[i>>2]+(i&3))}, {v(D[i>>2]+(i&3))}, {v(RS[T])}, {v(HBR[i>>2]+(i&3))}' for i in range(8)]
        elif FX: L += [f'v_pk_fma_f32 {v(D[i>>1]+2*(i&1),2)}, {v(D[i>>1]+2*(i&1),2)}, {v(RS[T],2)}, {v(HBR[i>>1]+2*(i&1),2)} op_sel_hi:[1,0,1]' for i in range(4)]
        for i in range(4): L.append(f'v_cvt_pk_bf16_f32 {v(72+i)}, {v(R1+2*i)}, {v(R1+2*i+1)}')
        if T: L.append(f's_add_u32 {sXT[1]}, {sXT[1]}, {16*1280}')
        L.append(('X', sOUTM, lambda: (A(f'buffer_store_dwordx4 v[72:75], {v(vOUT)}, {srd(SOUT)}, {sXT[1]} offen {cfg.get("ofl", "nt")}'), P.busy(128))))
        return L
    def dmap(T, r):
        if T < 3: return divmod(r, 5)
        return (r // 3, r % 3) if r < 36 else ((r - 36) // 2, 3 + (r - 36) % 2)
    ev = {}
    def at(n, f): ev.setdefault(n, []).append(f)
    if not SYM: at(cfg.get('hpi', 4), lambda: poll_issue(vPH, 64))
    def hchk():
        poll_check(vPH, 3, 64, inl=cfg.get('inl3', 0) & 1); P.bg = h_items(1) + P.bg; hok.append(1)
    if not SYM: at(cfg.get('hpc', 40), hchk)
    FK, PI, PC = cfg.get('fk', 50), cfg.get('pi', 70), cfg.get('pc', 105)
    def published(T):
        n0 = P.step - 400; hot[0] = False
        if cfg.get('log'): print('pub', T, n0, file=sys.stderr)
        assert n0 + FK > [HB2, HB3, 0, 0][T]
        at(n0 + FK, lambda: setflag(4 + T, f'pub{T}'))
        at(n0 + PI, lambda: poll_issue(vP4a))
        def gchk():
            poll_check(vP4a, 4 + T, inl=cfg.get('inl3', 0) >> (T + 1) & 1); P.bg = P.bg + g_items(T) if T else g_items(T) + P.bg
            gok.add(T)
        at(n0 + PC, gchk)
    gok = set(); hot = [False]; hok = [1] if SYM else []
    b2l = dict(ins=[(f'buffer_load_dwordx4 {v(HR,4)}, v7, {srd(SB2)}, {sT5} offen', 'b2')], gap=16, avail=400 + 240)
    at(240, lambda: P.bg.insert(0, b2l))
    st0 = stats3(0, 20)
    pend = st0[:2] + su + st0[3:] + cfill + bperm(0) + (stats3(1, 20) if SYM and cfg.get('st1', 0) == 0 else [])
    cp = [0]; xm = [False]; HB2 = cfg.get('hb2', 100); assert HB2 <= 120 - 3*PRE; HB3 = HB2 if cfg.get('hb3', 0) else 180 - 3*PRE
    def kind(x):
        if x is None: return 'N'
        if callable(x): return 'S'
        if isinstance(x, tuple): return x[0] if len(x[0]) == 1 else 'D'
        if x.startswith('s_'): return 'S'
        return 'W' if x.startswith(('v_permlane', 'v_rsq', 'v_sqrt', 'v_rcp', 'v_ashrrev_i64')) else 'D'
    def unmask():
        if xm[0]: A('s_mov_b64 exec, -1'); xm[0] = False; return 1
        return 0
    def pop():
        x = pend.pop(0); k = kind(x)
        if k in 'MGZ': return
        if k == 'X': A(f's_mov_b64 exec, {x[1]}'); x[2](); xm[0] = True; return
        if k == 'B': unmask(); x[1](); xm[0] = True; return
        if k != 'S': unmask()
        if k == 'V': x[1]()
        else: emit(x)
    def upto(m):
        while ('M', m) in pend: pop()
    def prewait(n):
        if n >= 480: return
        T, r = divmod(n % 240, 60)
        if n < 240:
            k, j = divmod(r, 3)
            if j == 0: P.wait(lg=f'b{20*T + k}')
        else:
            kk, j = dmap(T, r); r = 5*kk + j
            assert T in gok, n
            if P.pending([f'g{T}_{kk}', f'w2_{r}']): unmask(); P.drain([f'g{T}_{kk}', f'w2_{r}'])
            if T == 0:
                while cp[0] <= w2pos(r) - 41: unmask(); P.drain(f'sg{cp[0]}'); copy()
            P.wait(vm=[f'g{T}_{kk}', f'w2_{r}'], lg=f'cp{w2pos(r)-41}' if T == 0 else None)
    def copy():
        P.wait(vm=f'sg{cp[0]}')
        A(f'ds_read_b128 {a(48+4*cp[0],4)}, {v(vSG)} offset:{cp[0]*1024}', tag=f'cp{cp[0]}'); cp[0] += 1
    prewait(0)
    for n in range(480):
        P.step = 400 + n
        T, r = divmod(n % 240, 60)
        if r == 0: upto(f'c{T-2}' if n < 240 else f'c{T+2}')
        if n < 240:
            k, j = divmod(r, 3); ac = AC3[T & 1]; q = 20*T + k
            A(f'{MF} {v(ac+4*j,4)}, {w1reg(3*k+j)}, {v(BR+4*(q%NBR),4)}, {"0" if k == 0 else v(ac+4*j,4)}')
        else:
            kk, j = dmap(T, r); ac = AC4[T & 1]
            A(f'{MF} {v(ac+4*j,4)}, {w2reg(5*kk + j)}, {a(GB[T]+4*kk,4)}, {"0" if kk == 0 else v(ac+4*j,4)}')
        l0 = len(P.L)
        unmask()
        if n in (60 - 3*PRE, HB2, HB3):
            ht = 'h3' if n == HB3 else f'h{T+1}'
            P.drain(ht); P.wait(vm=ht); A('s_barrier')
        prewait(n + 1)
        for f in ev.get(n, []): f()
        while pend and kind(pend[0]) == 'M' or pend and kind(pend[0]) == 'G' and pend[0][1] <= n: pop()
        if len(P.L) == l0:
            if pend and kind(pend[0]) in 'SXB' and r >= 2 and not (kind(pend[0]) == 'B' and AL and pend[0][2] >= 2 and pend[0][2] - 2 not in gok): pop()
            elif P.bg and P.now() >= P.nxt - 40: P.pre(1)
        if n < 240 and j == 0 and q + PRE < 80: unmask(); A(h_read(q + PRE), tag=f'b{q+PRE}')
        if P.room() >= 8 and not xm[0] and P.ready() and not (hot[0] and r >= 2 and r % cfg.get('hot', 8) and P.bg[0]['ins'][-1][1][0] in 'sw'): tick()
        c = cp[0]
        if c < 19 and n >= 180 + 3*((48 + 4*c + 3)//12 + 1) and P.room() >= 4 and not xm[0] and not hot[0] and not P.pending(f'sg{c}') and P.age(f'sg{c}') > cfg.get('sga', 900): copy()
        while pend and r >= 2 and not xm[0]:
            kd = kind(pend[0])
            if kd == 'N':
                pend.pop(0)
                if pend and pend[0] is None: pend.pop(0)
                break
            if kd == 'M': pop(); continue
            if kd == 'Z': pend[0] = ('G', n + pend[0][1]); break
            if kd in 'XGB' or P.room() < {'S': 4, 'D': 4, 'W': 8, 'V': 8}[kd]: break
            pop()
        if r == 59:
            if n < 240 and FX:
                xf = [f'v_mfma_f32_16x16x16_bf16 {v(ac+4*j,4)}, {v(CS1+4*j+2,2)}, {v(NMR[T][0],2)}, {v(ac+4*j,4)}' for j in (2, 0, 1)]
                if cfg.get('log'): print('xf', T, [i for i, x in enumerate(pend) if x == ('M', f's{T>>1}')], file=sys.stderr)
                if cfg.get('fxq', 0) and ('M', f's{T>>1}') in pend: pend += xf + [('Z', 2)]
                else:
                    upto(f's{T>>1}'); unmask()
                    for x in (xf[1], xf[2], xf[0]):
                        A(x)
                        if P.room() >= 8 and P.ready(): tick()
                        while pend and kind(pend[0]) in 'DS' and P.room() >= 4 and not xm[0]: pop()
            if n < 240: pend += epi3(T) + ([('G', 0 if SYM else HB2)] + stats3(1, 20) + bperm(1) if T == cfg.get('stt', 0) and (not SYM or cfg.get('st1', 0)) else []); hot[0] = True
            elif T < 3:
                Z0 = cfg.get('z0', 4)
                for j in range(5): at(n + 2 + Z0*j, lambda T=T, j=j: red_w(T, j))
                if cfg.get('hm', 0):
                    k0 = max(i for i, x in enumerate(pend) if isinstance(x, tuple) and x[1] == 'rh') if any(isinstance(x, tuple) and x[1] == 'rh' for x in pend) else None
                    mid = []
                    if k0 is not None: mid = pend[k0 + 3 + cfg.get('hk', 0):]; del pend[k0 + 3 + cfg.get('hk', 0):]
                    pend += red_r(T, n + 2 + 4*Z0 + cfg.get('z1', 5), mid) + red_h(T + 1)
                else: pend += red_r(T, n + 2 + 4*Z0 + cfg.get('z1', 5)) + red_h(T + 1)
                if T == 2:
                    for j in range(3): at(n + 39 + Z0*j, lambda j=j: red_w(3, j))
            else:
                mid = []
                if cfg.get('tr', 0):
                    while any(isinstance(x, tuple) and x[1] == 'rh' for x in pend): pop()
                    mid = [x for x in pend if isinstance(x, str)]; assert len(mid) <= 16; del pend[:]
                while pend: pop()
                red_w(3, 3); red_w(3, 4)
                pend += red_r(T, 0, mid)
            if n == 239:
                pend.append(lambda: (unmask(), P.drain('b2'), P.wait(vm='b2')))
                for r2 in range(8): pend.append(f'v_and_b32 {v(B2F+r2)}, 0xffff0000, {v(HR+(r2>>1))}' if r2 & 1 else f'v_lshlrev_b32 {v(B2F+r2)}, 16, {v(HR+(r2>>1))}')
                pend += red_h(0)
            if cfg.get('log'): print('pend', len(pend), file=sys.stderr)
            unmask()
            stamp(f'p3_e{T}' if n < 240 else f'p4_t{T}', 1 if T == 3 else 2)
    assert cp[0] == 19
    while pend: pop()
    unmask()
    stamp('stored')
    if prof: P.wait(vm=0)
    stamp('end')
    assert not P.bg, P.bg
    return finish(P)

def finish(P):
    if P.prof:
        P('s_memrealtime s[100:101]'); P.wait(lg=0); P(f'v_writelane_b32 v19, s100, {len(P.stamps)}'); P.stamps.append('rt1')
        P(f's_lshl_b32 s100, s2, 2'); P(f's_add_u32 s100, s100, {sW}'); P('s_lshl_b32 s100, s100, 8'); P(f's_add_u32 s100, s100, {PROFB}')
        P('v_lshrrev_b32 v18, 2, v1'); P(f'buffer_store_dword v19, v18, {srd(SWS)}, s100 offen')
        P.L.insert(0, '; stamps: ' + ' '.join(P.stamps))
    P('s_endpgm')
    P.track = False
    for x in P.ool: P(x)
    P('L_end:')
    body = P.finish()
    hdr = f"""; generated by gen/gen4.py
; @launch grid=(256,1,1) block=(256,1,1) lds={LDS_TOTAL}
.amdgcn_target "amdgcn-amd-amdhsa--gfx950"
.text
.globl {NAME}_kernel
.p2align 8
.type {NAME}_kernel,@function
{NAME}_kernel:
"""
    ftr = f"""
s_endpgm
.section .rodata,"a"
.p2align 6
.amdhsa_kernel {NAME}_kernel
  .amdhsa_next_free_vgpr 512
  .amdhsa_next_free_sgpr 102
  .amdhsa_accum_offset 256
  .amdhsa_group_segment_fixed_size 0
  .amdhsa_kernarg_size 88
  .amdhsa_user_sgpr_count 2
  .amdhsa_user_sgpr_kernarg_segment_ptr 1
  .amdhsa_system_sgpr_workgroup_id_x 1
.end_amdhsa_kernel
"""
    print('model time', P.t, 'nops', P.nnops, 'short waits', P.warn, file=sys.stderr)
    return hdr + body + ftr

if __name__ == '__main__':
    out = sys.argv[1]
    cfg = eval(sys.argv[3]) if len(sys.argv) > 3 else {}
    s = gen(cfg)
    if cfg.get('prof'): s = f'; cfg {cfg}\n' + s
    open(out, 'w').write(s)
    print('lines', s.count('\n'))
```
